```python
import torch

def _softmax(x, axis=-1):
    return torch.softmax(x, dim=axis)
def _gelu(x):
    return torch.nn.functional.gelu(x, approximate="tanh")
def _silu(x):
    return torch.nn.functional.silu(x)
def _sigmoid(x):
    return torch.sigmoid(x)
def _layernorm(x, axis=-1, eps=1e-5):
    m = x.mean(dim=axis, keepdim=True)
    v = x.var(dim=axis, keepdim=True, unbiased=False)
    return (x - m) / torch.sqrt(v + eps)
def _scatter_add(tgt, idx, src, axis=0):
    return tgt.clone().index_add_(axis, idx, src)
def _segment_sum(src, seg, n):
    out = torch.zeros((n,) + src.shape[1:], dtype=src.dtype)
    return out.index_add_(0, seg, src)
def _pad(x, pw):
    flat = tuple(v for pair in reversed(pw) for v in pair)
    return torch.nn.functional.pad(x, flat)

kernel_name = 'standalone__glu_gated_glu__prompt'

def setup_inputs():

    _w = (lambda a: (lambda t: t.to(torch.bfloat16) if t.is_floating_point() else t)(torch.as_tensor(a)))
    B, S, D, F = 1, 2048, 448, 1792
    return {
        "x": _w((lambda *s: torch.randn(*s, dtype=torch.bfloat16) * 0.2)(B, S, D)),
        "w_gate": _w((lambda *s: torch.randn(*s, dtype=torch.bfloat16) * 0.2)(D, F)),
        "w_up": _w((lambda *s: torch.randn(*s, dtype=torch.bfloat16) * 0.05)(D, F)),
        "w_down": _w((lambda *s: torch.randn(*s, dtype=torch.bfloat16) * 0.05)(F, D)),
    }

def reference(x, w_gate, w_up, w_down):
    g = torch.einsum("bsd,df->bsf", x, w_gate)
    u = torch.einsum("bsd,df->bsf", x, w_up)
    h = _sigmoid(g) * u
    return torch.einsum("bsf,fd->bsd", h, w_down)
```

```python
KN = "standalone__glu_gated_glu__prompt_kernel"
class Asm:
    def __init__(self):
        self.L = []
    def __call__(self, s):
        for line in s.strip("\n").split("\n"):
            self.L.append("    " + line.strip() if not line.strip().endswith(":") else line.strip())
    def label(self, n):
        self.L.append(n + ":")
    def text(self):
        return "\n".join(self.L) + "\n"

HEADER = """; Kernarg layout for this problem (56 bytes, ptrs only, base s[0:1]):
"""
def kernel_begin(name):
    return ".globl %s\n.p2align 8\n.type %s,@function\n%s:\n" % (name, name, name)
def kd(name, vgpr, sgpr, accum):
    return """.amdhsa_kernel %s
  .amdhsa_next_free_vgpr %d
  .amdhsa_next_free_sgpr %d
  .amdhsa_accum_offset %d
  .amdhsa_group_segment_fixed_size 0
  .amdhsa_kernarg_size 56
  .amdhsa_user_sgpr_count 2
  .amdhsa_user_sgpr_kernarg_segment_ptr 1
  .amdhsa_system_sgpr_workgroup_id_x 1
.end_amdhsa_kernel
""" % (name, vgpr, sgpr, accum)
```

```python
import re
def regs(tok):
    tok = tok.strip()
    m = re.match(r'^-?(?:abs\()?([vas])\[(\d+):(\d+)\]\)?$', tok)
    if m: return [(m.group(1), i) for i in range(int(m.group(2)), int(m.group(3)) + 1)]
    m = re.match(r'^-?(?:abs\()?([vas])(\d+)\)?$', tok)
    if m: return [(m.group(1), int(m.group(2)))]
    if tok in ('m0', 'vcc', 'exec'): return [(tok, 0)]
    return []
TRANS = ('v_exp_f32', 'v_rcp_f32', 'v_log_f32', 'v_rsq_f32', 'v_sqrt_f32')
def parse(line):
    line = line.split(';')[0].strip()
    if not line or line.endswith(':'): return None
    parts = line.split(None, 1)
    op = parts[0]
    ops = []
    if len(parts) > 1:
        rest = parts[1]
        ops = [o.strip().split(' ')[0] for o in re.split(r',(?![^\[]*\])', rest)]
    W, R = [], []
    kind = 'other'
    if op.startswith('v_mfma'):
        kind = 'mfma'; W = regs(ops[0]); R = regs(ops[1]) + regs(ops[2]); C = regs(ops[3])
        return dict(op=op, kind=kind, W=W, R=R, C=C, line=line)
    if op.startswith('v_cmp'):
        kind = 'valu'; W = regs(ops[0]); R = sum((regs(o) for o in ops[1:]), [])
    elif op.startswith('v_permlane') :
        kind = 'valu'; W = regs(ops[0]) + regs(ops[1]); R = W
    elif op.startswith('v_'):
        kind = 'valu'; W = regs(ops[0]); R = sum((regs(o) for o in ops[1:]), [])
        if op.startswith('v_fmac'): R += W
    elif op.startswith('ds_read'):
        kind = 'ds'; W = regs(ops[0]); R = regs(ops[1])
    elif op.startswith('ds_add_rtn'):
        kind = 'ds'; W = regs(ops[0]); R = sum((regs(o) for o in ops[1:]), [])
    elif op.startswith('ds_write') or op.startswith('ds_add'):
        kind = 'ds'; R = sum((regs(o) for o in ops), [])
    elif op.startswith('buffer_load'):
        kind = 'vmem'
        if ' lds' in line: R = sum((regs(o) for o in ops), []) + [('m0', 0)]
        else: W = regs(ops[0]); R = sum((regs(o) for o in ops[1:]), [])
    elif op.startswith('buffer_store') or op.startswith('global_store') or op.startswith('global_atomic'):
        kind = 'vmem'; R = sum((regs(o) for o in ops), [])
    elif op.startswith('global_load'):
        kind = 'vmem'; W = regs(ops[0]); R = sum((regs(o) for o in ops[1:]), [])
    elif op.startswith('s_'):
        kind = 'salu'
        if op.startswith('s_cmp') or op.startswith('s_bitcmp') or op.startswith('s_cbranch') or op in ('s_branch', 's_waitcnt', 's_barrier', 's_nop', 's_sleep', 's_endpgm', 's_setprio'):
            R = sum((regs(o) for o in ops), [])
        else:
            W = regs(ops[0]); R = sum((regs(o) for o in ops[1:]), [])
            if op.startswith('s_addk'): R += W
    return dict(op=op, kind=kind, W=W, R=R, C=[], line=line)
def check_hazards(lines):
    ins = [p for p in (parse(l) for l in lines) if p]
    pos = 0
    last = {}
    errs = []
    def passes(op): return 8 if '32x32x16' in op else 4
    for n, I in enumerate(ins):
        def need(key, ws, why):
            if key in last and pos - last[key] - 1 < ws:
                errs.append("%s: need %d have %d @%d: %s" % (why, ws, pos - last[key] - 1, n, I['line']))
        k = I['kind']
        if k == 'mfma':
            for r in I['R'] + I['C']: need(('valuW', r), 2, 'valu->mfma')
            for r in I['R']:
                need(('mfma8W', r), 12, 'mfma->mfmaAB'); need(('mfma4W', r), 8, 'mfma->mfmaAB')
            if I['C']:
                for r in I['C']:
                    key = ('mfmaD', r)
                    if key in last and last[key][1] != tuple(I['C']) and pos - last[key][0] - 1 < 10:
                        errs.append("mfma C partial overlap @%d %s" % (n, I['line']))
            else:
                for r in I['W']:
                    need(('mfma8W', r), 12, 'mfma->mfma WAW(C=0)')
            need(('valuW', ('exec', 0)), 4, 'valu exec->mfma')
        if k in ('valu', 'ds', 'vmem'):
            for r in I['R'] + I['W']:
                need(('mfma8W', r), 12, 'mfma->use'); need(('mfma4W', r), 8, 'mfma->use')
        if k == 'valu':
            if I['op'] not in TRANS:
                for r in I['R']: need(('transW', r), 1, 'trans->valu')
            for r in I['W']:
                need(('storeR', r), 2, 'store data WAR'); need(('mfmaC', r), 7, 'mfma C WAR')
            for r in I['R']:
                if r[0] in ('s', 'vcc'): need(('valuW', r), 2, 'valu sgpr->valu')
            if I['op'].startswith('v_readfirstlane') or I['op'].startswith('v_readlane'):
                for r in I['R']: need(('valuW', r), 1, 'valu->readlane')
            if I['op'].startswith('v_permlane'):
                for r in I['R']: need(('valuW', r), 2, 'valu->permlane')
        if k in ('ds', 'vmem'):
            for r in I['W']: need(('storeR', r), 1, 'store data WAR')
            for r in I['R']: need(('transW', r), 1, 'trans->mem')
        if k == 'vmem':
            for r in I['R']:
                if r[0] == 's': need(('valuW', r), 5, 'valu sgpr->vmem')
                if r[0] == 'm0': need(('saluW', r), 1, 'm0->dma')
        if k == 'mfma':
            for r in I['W']:
                last[('mfma%dW' % passes(I['op']), r)] = pos
                last[('mfmaD', r)] = (pos, tuple(I['W']))
            for r in I['C']: last[('mfmaC', r)] = pos
        if k == 'valu':
            for r in I['W']:
                last[('valuW', r)] = pos
                if I['op'] in TRANS: last[('transW', r)] = pos
        if k == 'salu':
            for r in I['W']: last[('saluW', r)] = pos
        if k == 'vmem' and ('store_dwordx4' in I['op'] or 'store_dwordx3' in I['op']):
            d = I['R'][:4] if I['op'].startswith('buffer') else I['R'][1:5]
            for r in d: last[('storeR', r)] = pos
        if I['op'] == 's_nop':
            pos += int(I['line'].split()[1]) + 1
        else:
            pos += 1
    if errs:
        print("\n".join(errs[:40]))
        raise SystemExit("hazards: %d" % len(errs))
```

```python
import sys, re
from asmlib import *
from hazard import check_hazards

class Gen:
    def __init__(self, stamps=False):
        self.L = []
        self.vm = []
        self.lg = []
        self.cur = {}
        self.stamps = stamps
        self.nst = 0
    def e(self, s):
        self.L.append(s)
    def label(self, n):
        self.L.append(n + ":")
    def vmop(self, s, tag):
        self.L.append(s); self.vm.append(tag)
    def lgop(self, s, tag):
        self.L.append(s); self.lg.append(tag)
    def _n(self, lst, tag):
        idx = [i for i, t in enumerate(lst) if t == tag]
        assert idx, tag
        return len(lst) - 1 - idx[-1]
    def wait(self, vm=None, lg=None):
        parts = []
        if vm is not None:
            if vm == 0: n = 0
            else:
                tags = vm if isinstance(vm, list) else [vm]
                n = min(self._n(self.vm, t) for t in tags)
            if n > 63: n = 63
            parts.append("vmcnt(%d)" % n)
        if lg is not None:
            n = 0 if lg == 0 else self._n(self.lg, lg)
            if n > 15: n = 15
            parts.append("lgkmcnt(%d)" % n)
        self.e("s_waitcnt " + " ".join(parts))
    def setoff(self, reg, target):
        d = target - self.cur[reg]
        self.cur[reg] = target
        if d == 0:
            return "s_nop 0"
        if -32768 <= d <= 32767:
            return "s_addk_i32 %s, %d" % (reg, d)
        return "s_add_u32 %s, %s, 0x%x" % (reg, reg, d & 0xffffffff)
    def stamp(self):
        if self.stamps:
            r = 64 + 2 * self.nst
            assert r + 1 < 100
            self.e("s_memrealtime s[%d:%d]" % (r, r + 1))
            self.nst += 1

def rng(p, a, n):
    return "%s[%d:%d]" % (p, a, a + n - 1)

def build(stamps=False, opt=None):
    opt = opt or {}
    g = Gen(stamps)
    e = g.e
    vXe, vXo, vW, vD, vL16, vFlag = 1, 2, 3, 4, 5, 6
    vXB = lambda ks, b: 10 + b * 4 + ks
    vWA = lambda jf, b: 22 + b * 2 + jf
    vDA = lambda cbh, b: 28 + b * 2 + cbh
    vAbuf = lambda buf, j: 36 + buf * 8 + j * 4
    ACC = [64, 128]
    ACC2 = 64
    T = 192
    sX, sW, sWD, sH, sO = 20, 24, 28, 32, 36
    sMB, sFB, sWV, sTB, sCB = 40, 41, 42, 43, 44
    sXo, sWo, sDo, sLB, sHs, sHl = "s45", "s46", "s47", "s48", "s49", "s50"
    srd = lambda b: rng("s", b, 4)

    g.stamp()
    e("s_load_dwordx8 s[4:11], s[0:1], 0")
    e("s_load_dwordx4 s[12:15], s[0:1], 32")
    e("s_load_dwordx2 s[16:17], s[0:1], 48")
    e("s_cmp_ge_u32 s2, 224")
    e("s_cbranch_scc1 L_end")
    e("v_lshrrev_b32 v%d, 6, v0" % T)
    e("v_and_b32 v0, 63, v0")
    e("v_readfirstlane_b32 s%d, v%d" % (sWV, T))
    e("s_and_b32 s51, s2, 7")
    e("s_lshr_b32 s52, s2, 3")
    e("s_cmp_ge_u32 s52, 14")
    e("s_cselect_b32 s53, 1, 0")
    e("s_cselect_b32 s54, 14, 0")
    e("s_sub_u32 s%d, s52, s54" % sFB)
    e("s_lshl_b32 s%d, s51, 1" % sMB)
    e("s_add_u32 s%d, s%d, s53" % (sMB, sMB))
    r8, p7, rh, t0, t1 = T, T + 1, T + 2, T + 3, T + 4
    e("v_lshrrev_b32 v%d, 3, v0" % r8)
    e("v_and_b32 v%d, 7, v0" % p7)
    e("v_lshrrev_b32 v%d, 1, v%d" % (rh, r8))
    e("v_xor_b32 v%d, v%d, v%d" % (t0, p7, rh))
    e("v_lshlrev_b32 v%d, 4, v%d" % (t0, t0))
    e("v_mul_u32_u24 v%d, 896, v%d" % (t1, r8))
    e("v_add_u32 v%d, v%d, v%d" % (vXe, t1, t0))
    e("v_xor_b32 v%d, 64, v%d" % (t0, t0))
    e("v_add_u32 v%d, v%d, v%d" % (vXo, t1, t0))
    e("s_lshr_b32 s55, s%d, 1" % sWV)
    e("s_lshl_b32 s56, s55, 6")
    e("v_and_b32 v%d, 1, v%d" % (rh, rh))
    e("v_lshlrev_b32 v%d, 5, v%d" % (t0, rh))
    e("v_or_b32 v%d, s56, v%d" % (t0, t0))
    e("v_lshlrev_b32 v%d, 4, v%d" % (p7, p7))
    e("v_xor_b32 v%d, v%d, v%d" % (t0, t0, p7))
    e("v_mul_u32_u24 v%d, 3584, v%d" % (vW, r8))
    e("v_add_u32 v%d, v%d, v%d" % (vW, vW, t0))
    e("s_mul_i32 %s, s%d, %d" % (sXo, sMB, 128 * 896))
    e("s_mul_i32 s57, s%d, %d" % (sWV, 32 * 896))
    e("s_add_u32 %s, %s, s57" % (sXo, sXo))
    e("s_and_b32 s57, s%d, 1" % sWV)
    e("s_mul_i32 %s, s57, %d" % (sWo, 32 * 3584))
    e("s_lshl_b32 s58, s%d, 8" % sFB)
    e("s_add_u32 %s, %s, s58" % (sWo, sWo))
    e("s_lshl_b32 %s, s%d, 12" % (sLB, sWV))
    e("s_mov_b32 s%d, %d" % (sX + 2, 2048 * 896))
    e("s_mov_b32 s%d, 0x20000" % (sX + 3))
    e("s_mov_b32 s%d, %d" % (sW + 2, 448 * 3584))
    e("s_mov_b32 s%d, 0x20000" % (sW + 3))
    e("s_cmp_eq_u32 s55, 0")
    e("s_waitcnt lgkmcnt(0)")
    e("s_mov_b32 s%d, s4" % sX)
    e("s_and_b32 s%d, s5, 0xffff" % (sX + 1))
    e("s_cmp_eq_u32 s55, 0")
    e("s_cselect_b32 s%d, s6, s8" % sW)
    e("s_cselect_b32 s%d, s7, s9" % (sW + 1))
    e("s_and_b32 s%d, s%d, 0xffff" % (sW + 1, sW + 1))
    for r in (sXo, sWo, sDo, sHs, sHl):
        g.cur[r] = 0

    def item_pieces(i):
        slot = i % 10
        out = []
        for jj in range(4):
            def mk(jj=jj):
                if jj == 0:
                    e("s_add_u32 m0, %s, 0x%x" % (sLB, slot * 16384))
                else:
                    e("s_addk_i32 m0, 0x400")
                if i < 14 and i % 2 == 0:
                    c = i // 2
                    e(g.setoff(sXo, jj * 7168 + c * 128))
                    g.vmop("buffer_load_dwordx4 v%d, %s, %s offen lds" % (vXo if jj & 1 else vXe, srd(sX), sXo), ("it", i))
                elif i < 21:
                    c, ph = (i // 2, 0) if i < 14 else (i - 14, 1)
                    e(g.setoff(sWo, (64 * c + 8 * jj) * 3584 + ph * 128))
                    g.vmop("buffer_load_dwordx4 v%d, %s, %s offen lds" % (vW, srd(sW), sWo), ("it", i))
                else:
                    c, ph = (i - 21) % 7, (i - 21) // 7
                    fbp = 2 * c + (jj >> 1)
                    row = 16 * (8 * fbp + 4 * ph) + 8 * (jj & 1)
                    e(g.setoff(sDo, row * 896))
                    g.vmop("buffer_load_dwordx4 v%d, %s, %s offen lds" % (vD, srd(sWD), sDo), ("it", i))
            out.append(mk)
        return out

    for i in range(10):
        for pc in item_pieces(i):
            pc()
    g.stamp()
    e("s_cmp_ge_u32 s%d, 7" % sFB)
    e("s_cselect_b32 s53, 1, 0")
    e("s_cselect_b32 s54, 7, 0")
    e("s_sub_u32 s%d, s%d, s54" % (sCB, sFB))
    e("s_lshl_b32 s%d, s%d, 1" % (sTB, sMB))
    e("s_add_u32 s%d, s%d, s53" % (sTB, sTB))
    for (d, b, n) in ((sWD, 10, 1792 * 896), (sH, 16, 2048 * 1792 * 2), (sO, 12, 2048 * 896)):
        e("s_mov_b32 s%d, s%d" % (d, b))
        e("s_and_b32 s%d, s%d, 0xffff" % (d + 1, b + 1))
        e("s_mov_b32 s%d, %d" % (d + 2, n))
        e("s_mov_b32 s%d, 0x20000" % (d + 3))
    e("s_mul_i32 %s, s%d, %d" % (sDo, sWV, 16 * 896))
    e("s_lshl_b32 s57, s%d, 7" % sCB)
    e("s_add_u32 %s, %s, s57" % (sDo, sDo))
    e("v_lshlrev_b32 v%d, 6, v%d" % (t0, rh))
    e("v_xor_b32 v%d, v%d, v%d" % (t0, t0, p7))
    e("v_add_u32 v%d, v%d, v%d" % (vD, t1, t0))
    e("v_lshlrev_b32 v%d, 4, v0" % vL16)
    e("s_and_b32 s57, s%d, 1" % sWV)
    e("s_lshr_b32 s58, s%d, 1" % sWV)
    e("s_lshl_b32 s59, s%d, 2" % sMB)
    e("s_lshl_b32 s60, s57, 1")
    e("s_add_u32 s59, s59, s60")
    e("s_mul_i32 s59, s59, 112")
    e("s_lshl_b32 s60, s%d, 3" % sFB)
    e("s_add_u32 s59, s59, s60")
    e("s_lshl_b32 s60, s58, 1")
    e("s_add_u32 s59, s59, s60")
    e("s_lshl_b32 %s, s59, 10" % sHs)
    e("s_mul_i32 s59, s%d, 224" % sTB)
    e("s_add_u32 s59, s59, s%d" % sWV)
    e("s_lshl_b32 %s, s59, 10" % sHl)
    e("s_lshl_b32 s59, s%d, 4" % sMB)
    e("v_mov_b32 v%d, s59" % vFlag)
    tk, hi, sw = T + 5, T + 6, T + 7
    e("v_and_b32 v%d, 31, v0" % tk)
    e("v_lshrrev_b32 v%d, 5, v0" % hi)
    e("v_bfe_u32 v%d, v0, 1, 3" % sw)
    e("v_xor_b32 v%d, v%d, v%d" % (sw, sw, hi))
    e("v_lshlrev_b32 v%d, 4, v%d" % (sw, sw))
    e("v_lshl_add_u32 v%d, v%d, 7, v%d" % (sw, tk, sw))
    e("s_lshl_b32 s59, s57, 13")
    e("v_add_u32 v%d, s59, v%d" % (sw, sw))
    for ks in range(4):
        e("v_xor_b32 v%d, %d, v%d" % (vXB(ks, 0), ks * 32, sw))
        e("v_add_u32 v%d, 0x10000, v%d" % (vXB(ks, 1), vXB(ks, 0)))
        e("v_add_u32 v%d, 0x20000, v%d" % (vXB(ks, 2), vXB(ks, 0)))
    mt, rr, cc, a0 = T + 8, T + 9, T + 10, T + 11
    e("v_bfe_u32 v%d, v0, 4, 1" % mt)
    e("v_bfe_u32 v%d, v0, 2, 2" % rr)
    e("v_and_b32 v%d, 3, v0" % cc)
    e("v_lshlrev_b32 v%d, 3, v%d" % (cc, cc))
    e("v_lshl_add_u32 v%d, v%d, 3, v%d" % (a0, hi, rr))
    e("v_lshl_add_u32 v%d, v%d, 7, v%d" % (a0, a0, cc))
    e("v_lshl_add_u32 v%d, v%d, 13, v%d" % (a0, mt, a0))
    e("v_lshrrev_b32 v%d, 1, v%d" % (t0, rr))
    e("v_lshl_or_b32 v%d, v%d, 1, v%d" % (t1, mt, t0))
    e("s_lshl_b32 s59, s58, 1")
    e("v_xor_b32 v%d, s59, v%d" % (t1, t1))
    e("v_lshl_add_u32 v%d, v%d, 5, v%d" % (vWA(0, 0), t1, a0))
    e("v_xor_b32 v%d, 32, v%d" % (vWA(1, 0), vWA(0, 0)))
    for jf in range(2):
        e("v_add_u32 v%d, 0x10000, v%d" % (vWA(jf, 1), vWA(jf, 0)))
        e("v_add_u32 v%d, 0x20000, v%d" % (vWA(jf, 2), vWA(jf, 0)))
    e("v_lshl_add_u32 v%d, v%d, 2, v%d" % (a0, hi, rr))
    e("v_lshl_add_u32 v%d, v%d, 7, v%d" % (a0, a0, cc))
    e("v_lshl_add_u32 v%d, v%d, 5, v%d" % (a0, mt, a0))
    e("v_lshl_add_u32 v%d, v%d, 6, v%d" % (a0, t0, a0))
    e("v_add_u32 v%d, %s, v%d" % (vDA(0, 0), sLB, a0))
    e("v_xor_b32 v%d, 64, v%d" % (vDA(1, 0), vDA(0, 0)))
    for cbh in range(2):
        e("v_add_u32 v%d, 0x10000, v%d" % (vDA(cbh, 1), vDA(cbh, 0)))
        e("v_add_u32 v%d, 0x20000, v%d" % (vDA(cbh, 2), vDA(cbh, 0)))

    def lds_ref(vfun, byte):
        b, off = byte >> 16, byte & 0xffff
        return "v%d offset:%d" % (vfun(b), off)

    def s1_reads(s):
        n, ks = s // 4, s % 4
        ph = 0 if n < 7 else 1
        out = []
        wi = 2 * n + 1 if ph == 0 else n + 7
        wbase = (wi % 10) * 16384
        for jf in range(2):
            for j2 in range(2):
                def mk(jf=jf, j2=j2):
                    d = vAbuf(s % 3, jf) + 2 * j2
                    g.lgop("ds_read_b64_tr_b16 %s, %s" % (rng("v", d, 2), lds_ref(lambda b: vWA(jf, b), wbase + ks * 2048 + j2 * 512)), ("rd", s))
                out.append(mk)
        if ph == 0:
            xbase = ((2 * n) % 10) * 16384
            for t in range(2):
                def mk(t=t):
                    d = (s * 2 + t) * 4
                    g.lgop("ds_read_b128 %s, %s" % (rng("a", d, 4), lds_ref(lambda b: vXB(ks, b), xbase + t * 4096)), ("rd", s))
                out.insert(2 + 3 * t if t == 0 else len(out), mk)
        return out

    def epilogue_ops(ph):
        ops = []
        for tile in range(4):
            jf, t = tile >> 1, tile & 1
            D = ACC[ph] + tile * 16
            def V(s, c=4):
                ops.append((c, lambda s=s: e(s)))
            for i in range(8): V("v_mul_f32 v%d, 0xbfb8aa3b, v%d" % (D + i, D + i))
            for i in range(8): V("v_exp_f32 v%d, v%d" % (D + i, D + i), 8)
            for i in range(8): V("v_add_f32 v%d, 1.0, v%d" % (D + i, D + i))
            for i in range(8): V("v_rcp_f32 v%d, v%d" % (D + i, D + i), 8)
            for i in range(8): V("v_mul_f32 v%d, v%d, v%d" % (D + i, D + i, D + 8 + i))
            for i in range(4): V("v_cvt_pk_bf16_f32 v%d, v%d, v%d" % (D + 8 + i, D + 2 * i, D + 2 * i + 1))
            def st(jf=jf, t=t, D=D):
                e(g.setoff(sHs, (t * 112 + 4 * ph + jf) * 1024))
                g.vmop("buffer_store_dwordx4 %s, v%d, %s, %s offen sc1" % (rng("v", D + 8, 4), vL16, srd(sH), sHs), ("hst", ph))
            ops.append((8, st))
        return ops

    def signal(ph):
        e("s_cmp_lg_u32 s%d, 0" % sWV)
        e("s_cbranch_scc1 L_nosig%d" % ph)
        e("s_mov_b64 exec, 1")
        e("v_mov_b32 v%d, 1" % T)
        e("global_atomic_add v%d, v%d, s[14:15] offset:%d sc1" % (vFlag, T, 4 * ph))
        e("s_mov_b64 exec, -1")
        g.label("L_nosig%d" % ph)

    def poll(ph):
        e("s_mov_b32 s61, 0")
        g.label("L_poll%d" % ph)
        e("global_load_dword v%d, v%d, s[14:15] offset:%d sc1" % (T, vFlag, 4 * ph))
        e("s_waitcnt vmcnt(0)")
        e("v_readfirstlane_b32 s57, v%d" % T)
        e("s_addk_i32 s61, 1")
        e("s_cmp_ge_u32 s61, 0x40000")
        e("s_cbranch_scc1 L_polled%d" % ph)
        e("s_cmp_ge_u32 s57, 14")
        e("s_cbranch_scc1 L_polled%d" % ph)
        e("s_sleep 2")
        e("s_branch L_poll%d" % ph)
        g.label("L_polled%d" % ph)

    next_item = 10
    g.wait(vm=[("it", 0), ("it", 1)])
    e("s_barrier")
    g.stamp()
    for s in (0, 1):
        for r in s1_reads(s): r()
    dmaq = []
    epq = []
    for s in range(56):
        n, ks = s // 4, s % 4
        ph = 0 if n < 7 else 1
        if s == 28: g.stamp()
        if ks == 2 and n + 1 <= 13:
            nb = n + 1
            need = [("it", 2 * nb), ("it", 2 * nb + 1)] if nb < 7 else [("it", nb + 7)]
            while dmaq: dmaq.pop(0)()
            if nb == 13:
                while epq: epq.pop(0)[1]()
                need.append(("hst", 0))
            g.wait(vm=need, lg=("rd", s))
            e("s_barrier")
            if nb == 13:
                signal(0)
            if nb >= 2:
                cnt = 2 if nb - 2 <= 6 else 1
                for _ in range(cnt):
                    dmaq += item_pieces(next_item); next_item += 1
        elif s == 55:
            g.wait(lg=0)
            e("s_barrier")
            while dmaq: dmaq.pop(0)()
            for _ in range(2):
                dmaq += item_pieces(next_item); next_item += 1
        else:
            g.wait(lg=("rd", s))
        if s == 29:
            epq = epilogue_ops(0)
        rds = s1_reads(s + 2) if s + 2 < 56 else []
        xs = s % 28
        for m in range(4):
            jf, t = m >> 1, m & 1
            D = ACC[ph] + m * 16
            C = "0" if xs == 0 else rng("v", D, 16)
            e("v_mfma_f32_32x32x16_bf16 %s, %s, %s, %s" % (rng("v", D, 16), rng("v", vAbuf(s % 3, jf), 4), rng("a", (xs * 2 + t) * 4, 4), C))
            budget = 24
            k = (len(rds) + (3 - m)) // (4 - m)
            for _ in range(k):
                rds.pop(0)(); budget -= 4
            if dmaq and (m & 1) == 1:
                dmaq.pop(0)(); budget -= 8
            while epq and budget >= epq[0][0]:
                c, f = epq.pop(0); f(); budget -= c
    while dmaq: dmaq.pop(0)()
    g.stamp()
    e("s_nop 7")
    for c, f in epilogue_ops(1): f()
    g.stamp()
    poll(0)
    g.vm.append("poll")
    g.stamp()
    e("s_barrier")
    signal(1)
    def h_loads(ph):
        for kk in range(14):
            for t in range(2):
                d = ph * 112 + (kk * 2 + t) * 4
                e(g.setoff(sHl, (t * 112 + 8 * kk + 4 * ph) * 1024))
                g.vmop("buffer_load_dwordx4 %s, v%d, %s, %s offen sc1" % (rng("a", d, 4), vL16, srd(sH), sHl), ("hl", ph, kk))
    def s2_reads(u):
        ph, kk = u // 14, u % 14
        it = 21 + ph * 7 + kk // 2
        base = (it % 10) * 16384 + (kk & 1) * 2048
        out = []
        for cbh in range(2):
            for j2 in range(2):
                def mk(cbh=cbh, j2=j2):
                    d = vAbuf(u % 3, cbh) + 2 * j2
                    g.lgop("ds_read_b64_tr_b16 %s, %s" % (rng("v", d, 2), lds_ref(lambda b: vDA(cbh, b), base + j2 * 1024)), ("r2", u))
                out.append(mk)
        return out
    h_loads(0)
    for u in (0, 1):
        for r in s2_reads(u): r()
    for u in range(28):
        ph, kk = u // 14, u % 14
        if u == 14:
            g.stamp()
            poll(1)
            g.vm.append("poll")
            g.stamp()
            h_loads(1)
        need = [("hl", ph, kk)]
        if u + 2 < 28:
            need.append(("it", 21 + (u + 2) // 14 * 7 + ((u + 2) % 14) // 2))
        g.wait(vm=need, lg=("r2", u))
        if (u & 1) == 1 and next_item <= 34 and next_item - 10 == 21 + u // 2:
            dmaq += item_pieces(next_item); next_item += 1
        rds = s2_reads(u + 2) if u + 2 < 28 else []
        for m in range(4):
            cbh, t = m >> 1, m & 1
            D = ACC2 + m * 16
            C = "0" if u == 0 else rng("v", D, 16)
            e("v_mfma_f32_32x32x16_bf16 %s, %s, %s, %s" % (rng("v", D, 16), rng("v", vAbuf(u % 3, cbh), 4), rng("a", ph * 112 + (kk * 2 + t) * 4, 4), C))
            if rds: rds.pop(0)()
            if dmaq: dmaq.pop(0)()
    assert next_item == 35 and not dmaq
    g.stamp()
    PITCH = 272
    WREG = 64 * PITCH
    e("s_barrier")
    wa, ra = T, T + 1
    e("v_and_b32 v%d, 31, v0" % wa)
    e("v_mul_u32_u24 v%d, %d, v%d" % (wa, PITCH, wa))
    e("v_lshrrev_b32 v%d, 5, v0" % ra)
    e("v_lshl_add_u32 v%d, v%d, 4, v%d" % (wa, ra, wa))
    e("s_mul_i32 s57, s%d, %d" % (sWV, WREG))
    e("v_add_u32 v%d, s57, v%d" % (wa, wa))
    e("s_nop 7")
    for m in range(4):
        cbh, t = m >> 1, m & 1
        for q in range(4):
            e("ds_write_b128 v%d, %s offset:%d" % (wa, rng("v", ACC2 + m * 16 + 4 * q, 4), t * 32 * PITCH + (32 * cbh + 8 * q) * 4))
    e("v_lshrrev_b32 v%d, 2, v0" % ra)
    e("s_lshl_b32 s57, s%d, 4" % sWV)
    e("v_add_u32 v%d, s57, v%d" % (ra, ra))
    e("v_mul_u32_u24 v%d, 896, v%d" % (T + 2, ra))
    e("v_mul_u32_u24 v%d, %d, v%d" % (ra, PITCH, ra))
    e("v_and_b32 v%d, 3, v0" % (T + 3))
    e("v_lshl_add_u32 v%d, v%d, 6, v%d" % (ra, T + 3, ra))
    e("v_lshl_add_u32 v%d, v%d, 5, v%d" % (T + 2, T + 3, T + 2))
    e("s_mul_i32 s57, s%d, %d" % (sTB, 64 * 896))
    e("s_lshl_b32 s58, s%d, 7" % sCB)
    e("s_add_u32 s57, s57, s58")
    e("s_waitcnt lgkmcnt(0)")
    e("s_barrier")
    R = 128
    for w in range(4):
        for q in range(4):
            e("ds_read_b128 %s, v%d offset:%d" % (rng("v", R + w * 16 + q * 4, 4), ra, w * WREG + q * 16))
    e("s_waitcnt lgkmcnt(8)")
    for i in range(16): e("v_add_f32 v%d, v%d, v%d" % (R + i, R + i, R + 16 + i))
    e("s_waitcnt lgkmcnt(0)")
    for i in range(16): e("v_add_f32 v%d, v%d, v%d" % (R + 32 + i, R + 32 + i, R + 48 + i))
    for i in range(16): e("v_add_f32 v%d, v%d, v%d" % (R + i, R + i, R + 32 + i))
    for i in range(8): e("v_cvt_pk_bf16_f32 v%d, v%d, v%d" % (R + 16 + i, R + 2 * i, R + 2 * i + 1))
    e("buffer_store_dwordx4 %s, v%d, %s, s57 offen" % (rng("v", R + 16, 4), T + 2, srd(sO)))
    e("buffer_store_dwordx4 %s, v%d, %s, s57 offen offset:16" % (rng("v", R + 20, 4), T + 2, srd(sO)))
    if stamps:
        e("s_waitcnt vmcnt(0)")
        g.stamp()
        e("s_waitcnt lgkmcnt(0)")
        e("s_add_u32 s16, s16, 0x8000000")
        e("s_addc_u32 s17, s17, 0")
        e("s_lshl_b32 s57, s2, 2")
        e("s_add_u32 s57, s57, s%d" % sWV)
        e("s_lshl_b32 s57, s57, 7")
        e("v_mov_b32 v1, s57")
        e("s_mov_b64 exec, 1")
        for j in range(g.nst):
            e("v_mov_b32 v2, s%d" % (64 + 2 * j))
            e("v_mov_b32 v3, s%d" % (65 + 2 * j))
            e("global_store_dwordx2 v1, v[2:3], s[16:17] offset:%d" % (8 * j))
            e("s_nop 1")
    g.label("L_end")
    e("s_endpgm")
    return g

def emit(g, path):
    check_hazards(g.L)
    body = "\n".join(l if l.endswith(":") else "    " + l for l in g.L) + "\n"
    src = HEADER + "; @launch grid=(224,1,1) block=(256,1,1) lds=163840\n"
    src += '.amdgcn_target "amdgcn-amd-amdhsa--gfx950"\n.text\n' + kernel_begin(KN) + body
    src += '.section .rodata,"a"\n.p2align 6\n' + kd(KN, 512, 102, 256)
    open(path, "w").write(src)

if __name__ == "__main__":
    out = sys.argv[1]
    stamps = "--stamps" in sys.argv
    emit(build(stamps), out)
```

```python
import sys, re
from asmlib import *
from hazard import check_hazards

class Gen:
    def __init__(self, stamps=False):
        self.L = []
        self.vm = []
        self.lg = []
        self.cur = {}
        self.stamps = stamps
        self.nst = 0
    def e(self, s):
        self.L.append(s)
    def label(self, n):
        self.L.append(n + ":")
    def vmop(self, s, tag):
        self.L.append(s); self.vm.append(tag)
    def lgop(self, s, tag):
        self.L.append(s); self.lg.append(tag)
    def _n(self, lst, tag):
        idx = [i for i, t in enumerate(lst) if t == tag]
        assert idx, tag
        return len(lst) - 1 - idx[-1]
    def wait(self, vm=None, lg=None):
        parts = []
        if vm is not None:
            if vm == 0: n = 0
            else:
                tags = vm if isinstance(vm, list) else [vm]
                n = min(self._n(self.vm, t) for t in tags)
            if n > 63: n = 63
            parts.append("vmcnt(%d)" % n)
        if lg is not None:
            n = 0 if lg == 0 else self._n(self.lg, lg)
            if n > 15: n = 15
            parts.append("lgkmcnt(%d)" % n)
        self.e("s_waitcnt " + " ".join(parts))
    def setoff(self, reg, target):
        d = target - self.cur[reg]
        self.cur[reg] = target
        if d == 0:
            return "s_nop 0"
        if -32768 <= d <= 32767:
            return "s_addk_i32 %s, %d" % (reg, d)
        return "s_add_u32 %s, %s, 0x%x" % (reg, reg, d & 0xffffffff)
    def stamp(self):
        if self.stamps:
            r = 64 + 2 * self.nst
            assert r + 1 < 102
            self.e("%s s[%d:%d]" % ("s_memtime" if self.stamps == 2 else "s_memrealtime", r, r + 1))
            self.nst += 1

def rng(p, a, n):
    return "%s[%d:%d]" % (p, a, a + n - 1)

def build(stamps=False, opt=None):
    opt = opt or {}
    g = Gen(stamps)
    e = g.e
    vXe, vXo, vW, vD, vL16, vFlag = 1, 2, 3, 4, 5, 6
    vXB = lambda ks, b: 10 + b * 4 + ks
    vWA = lambda jf, b: 22 + b * 2 + jf
    vDA = lambda cbh, b: 28 + b * 2 + cbh
    vAbuf = lambda buf, j: 36 + buf * 8 + j * 4
    ACC = [64, 128]
    ACC2 = 64
    T = 192
    sX, sW, sWD, sH, sO = 20, 24, 28, 32, 36
    sMB, sFB, sWV, sTB, sCB = 40, 41, 42, 43, 44
    sXo, sWo, sDo, sLB, sHs, sHl = "s45", "s46", "s47", "s48", "s49", "s50"
    srd = lambda b: rng("s", b, 4)

    g.stamp()
    e("s_load_dwordx8 s[4:11], s[0:1], 0")
    e("s_load_dwordx4 s[12:15], s[0:1], 32")
    e("s_load_dwordx2 s[16:17], s[0:1], 48")
    e("s_cmp_ge_u32 s2, 224")
    e("s_cbranch_scc1 L_end")
    e("v_lshrrev_b32 v%d, 6, v0" % T)
    e("v_and_b32 v0, 63, v0")
    e("v_readfirstlane_b32 s%d, v%d" % (sWV, T))
    e("s_and_b32 s51, s2, 7")
    e("s_lshr_b32 s52, s2, 3")
    e("s_cmp_ge_u32 s52, 14")
    e("s_cselect_b32 s53, 1, 0")
    e("s_cselect_b32 s54, 14, 0")
    e("s_sub_u32 s%d, s52, s54" % sFB)
    e("s_lshl_b32 s%d, s51, 1" % sMB)
    e("s_add_u32 s%d, s%d, s53" % (sMB, sMB))
    r8, p7, rh, t0, t1 = T, T + 1, T + 2, T + 3, T + 4
    e("v_lshrrev_b32 v%d, 3, v0" % r8)
    e("v_and_b32 v%d, 7, v0" % p7)
    e("v_lshrrev_b32 v%d, 1, v%d" % (rh, r8))
    e("v_xor_b32 v%d, v%d, v%d" % (t0, p7, rh))
    e("v_lshlrev_b32 v%d, 4, v%d" % (t0, t0))
    e("v_mul_u32_u24 v%d, 896, v%d" % (t1, r8))
    e("v_add_u32 v%d, v%d, v%d" % (vXe, t1, t0))
    e("v_xor_b32 v%d, 64, v%d" % (t0, t0))
    e("v_add_u32 v%d, v%d, v%d" % (vXo, t1, t0))
    e("s_lshr_b32 s55, s%d, 1" % sWV)
    e("s_lshl_b32 s56, s55, 6")
    e("v_and_b32 v%d, 1, v%d" % (rh, rh))
    e("v_lshlrev_b32 v%d, 5, v%d" % (t0, rh))
    e("v_or_b32 v%d, s56, v%d" % (t0, t0))
    e("v_lshlrev_b32 v%d, 4, v%d" % (p7, p7))
    e("v_xor_b32 v%d, v%d, v%d" % (t0, t0, p7))
    e("v_mul_u32_u24 v%d, 3584, v%d" % (vW, r8))
    e("v_add_u32 v%d, v%d, v%d" % (vW, vW, t0))
    e("s_mul_i32 %s, s%d, %d" % (sXo, sMB, 128 * 896))
    e("s_mul_i32 s57, s%d, %d" % (sWV, 32 * 896))
    e("s_add_u32 %s, %s, s57" % (sXo, sXo))
    e("s_and_b32 s57, s%d, 1" % sWV)
    e("s_mul_i32 %s, s57, %d" % (sWo, 32 * 3584))
    e("s_lshl_b32 s58, s%d, 8" % sFB)
    e("s_add_u32 %s, %s, s58" % (sWo, sWo))
    e("s_lshl_b32 %s, s%d, 12" % (sLB, sWV))
    e("s_mov_b32 s%d, %d" % (sX + 2, 2048 * 896))
    e("s_mov_b32 s%d, 0x20000" % (sX + 3))
    e("s_mov_b32 s%d, %d" % (sW + 2, 448 * 3584))
    e("s_mov_b32 s%d, 0x20000" % (sW + 3))
    e("s_cmp_eq_u32 s55, 0")
    e("s_waitcnt lgkmcnt(0)")
    e("s_mov_b32 s%d, s4" % sX)
    e("s_and_b32 s%d, s5, 0xffff" % (sX + 1))
    e("s_cmp_eq_u32 s55, 0")
    e("s_cselect_b32 s%d, s6, s8" % sW)
    e("s_cselect_b32 s%d, s7, s9" % (sW + 1))
    e("s_and_b32 s%d, s%d, 0xffff" % (sW + 1, sW + 1))
    for r in (sXo, sWo, sDo, sHs, sHl):
        g.cur[r] = 0

    def item_pieces(i):
        slot = i % 10
        out = []
        for jj in range(4):
            def mk(jj=jj):
                if jj == 0:
                    e("s_add_u32 m0, %s, 0x%x" % (sLB, slot * 16384))
                else:
                    e("s_addk_i32 m0, 0x400")
                if i < 14 and i % 2 == 0:
                    c = i // 2
                    e(g.setoff(sXo, jj * 7168 + c * 128))
                    g.vmop("buffer_load_dwordx4 v%d, %s, %s offen lds" % (vXo if jj & 1 else vXe, srd(sX), sXo), ("it", i))
                elif i < 21:
                    c, ph = (i // 2, 0) if i < 14 else (i - 14, 1)
                    e(g.setoff(sWo, (64 * c + 8 * jj) * 3584 + ph * 128))
                    g.vmop("buffer_load_dwordx4 v%d, %s, %s offen lds" % (vW, srd(sW), sWo), ("it", i))
                else:
                    c, ph = (i - 21) % 7, (i - 21) // 7
                    fbp = 2 * c + (jj >> 1)
                    row = 16 * (8 * fbp + 4 * ph) + 8 * (jj & 1)
                    e(g.setoff(sDo, row * 896))
                    g.vmop("buffer_load_dwordx4 v%d, %s, %s offen lds" % (vD, srd(sWD), sDo), ("it", i))
            out.append(mk)
        return out

    for i in range(10):
        for pc in item_pieces(i):
            pc()
    g.stamp()
    e("s_cmp_ge_u32 s%d, 7" % sFB)
    e("s_cselect_b32 s53, 1, 0")
    e("s_cselect_b32 s54, 7, 0")
    e("s_sub_u32 s%d, s%d, s54" % (sCB, sFB))
    e("s_lshl_b32 s%d, s%d, 1" % (sTB, sMB))
    e("s_add_u32 s%d, s%d, s53" % (sTB, sTB))
    for (d, b, n) in ((sWD, 10, 1792 * 896), (sH, 16, 2048 * 1792 * 2), (sO, 12, 2048 * 896)):
        e("s_mov_b32 s%d, s%d" % (d, b))
        e("s_and_b32 s%d, s%d, 0xffff" % (d + 1, b + 1))
        e("s_mov_b32 s%d, %d" % (d + 2, n))
        e("s_mov_b32 s%d, 0x20000" % (d + 3))
    e("s_mul_i32 %s, s%d, %d" % (sDo, sWV, 16 * 896))
    e("s_lshl_b32 s57, s%d, 7" % sCB)
    e("s_add_u32 %s, %s, s57" % (sDo, sDo))
    e("v_lshlrev_b32 v%d, 6, v%d" % (t0, rh))
    e("v_xor_b32 v%d, v%d, v%d" % (t0, t0, p7))
    e("v_add_u32 v%d, v%d, v%d" % (vD, t1, t0))
    e("v_lshlrev_b32 v%d, 4, v0" % vL16)
    e("s_and_b32 s57, s%d, 1" % sWV)
    e("s_lshr_b32 s58, s%d, 1" % sWV)
    e("s_lshl_b32 s59, s%d, 2" % sMB)
    e("s_lshl_b32 s60, s57, 1")
    e("s_add_u32 s59, s59, s60")
    e("s_mul_i32 s59, s59, 112")
    e("s_lshl_b32 s60, s%d, 3" % sFB)
    e("s_add_u32 s59, s59, s60")
    e("s_lshl_b32 s60, s58, 1")
    e("s_add_u32 s59, s59, s60")
    e("s_lshl_b32 %s, s59, 10" % sHs)
    e("s_mul_i32 s59, s%d, 224" % sTB)
    e("s_add_u32 s59, s59, s%d" % sWV)
    e("s_lshl_b32 %s, s59, 10" % sHl)
    e("s_lshl_b32 s59, s%d, 4" % sMB)
    e("v_mov_b32 v%d, s59" % vFlag)
    tk, hi, sw = T + 5, T + 6, T + 7
    e("v_and_b32 v%d, 31, v0" % tk)
    e("v_lshrrev_b32 v%d, 5, v0" % hi)
    e("v_bfe_u32 v%d, v0, 1, 3" % sw)
    e("v_xor_b32 v%d, v%d, v%d" % (sw, sw, hi))
    e("v_lshlrev_b32 v%d, 4, v%d" % (sw, sw))
    e("v_lshl_add_u32 v%d, v%d, 7, v%d" % (sw, tk, sw))
    e("s_lshl_b32 s59, s57, 13")
    e("v_add_u32 v%d, s59, v%d" % (sw, sw))
    for ks in range(4):
        e("v_xor_b32 v%d, %d, v%d" % (vXB(ks, 0), ks * 32, sw))
        e("v_add_u32 v%d, 0x10000, v%d" % (vXB(ks, 1), vXB(ks, 0)))
        e("v_add_u32 v%d, 0x20000, v%d" % (vXB(ks, 2), vXB(ks, 0)))
    mt, rr, cc, a0 = T + 8, T + 9, T + 10, T + 11
    e("v_bfe_u32 v%d, v0, 4, 1" % mt)
    e("v_bfe_u32 v%d, v0, 2, 2" % rr)
    e("v_and_b32 v%d, 3, v0" % cc)
    e("v_lshlrev_b32 v%d, 3, v%d" % (cc, cc))
    e("v_lshl_add_u32 v%d, v%d, 3, v%d" % (a0, hi, rr))
    e("v_lshl_add_u32 v%d, v%d, 7, v%d" % (a0, a0, cc))
    e("v_lshl_add_u32 v%d, v%d, 13, v%d" % (a0, mt, a0))
    e("v_lshrrev_b32 v%d, 1, v%d" % (t0, rr))
    e("v_lshl_or_b32 v%d, v%d, 1, v%d" % (t1, mt, t0))
    e("s_lshl_b32 s59, s58, 1")
    e("v_xor_b32 v%d, s59, v%d" % (t1, t1))
    e("v_lshl_add_u32 v%d, v%d, 5, v%d" % (vWA(0, 0), t1, a0))
    e("v_xor_b32 v%d, 32, v%d" % (vWA(1, 0), vWA(0, 0)))
    for jf in range(2):
        e("v_add_u32 v%d, 0x10000, v%d" % (vWA(jf, 1), vWA(jf, 0)))
        e("v_add_u32 v%d, 0x20000, v%d" % (vWA(jf, 2), vWA(jf, 0)))
    e("v_lshl_add_u32 v%d, v%d, 2, v%d" % (a0, hi, rr))
    e("v_lshl_add_u32 v%d, v%d, 7, v%d" % (a0, a0, cc))
    e("v_lshl_add_u32 v%d, v%d, 5, v%d" % (a0, mt, a0))
    e("v_lshl_add_u32 v%d, v%d, 6, v%d" % (a0, t0, a0))
    e("v_add_u32 v%d, %s, v%d" % (vDA(0, 0), sLB, a0))
    e("v_xor_b32 v%d, 64, v%d" % (vDA(1, 0), vDA(0, 0)))
    for cbh in range(2):
        e("v_add_u32 v%d, 0x10000, v%d" % (vDA(cbh, 1), vDA(cbh, 0)))
        e("v_add_u32 v%d, 0x20000, v%d" % (vDA(cbh, 2), vDA(cbh, 0)))

    def lds_ref(vfun, byte):
        b, off = byte >> 16, byte & 0xffff
        return "v%d offset:%d" % (vfun(b), off)

    def s1_reads(s):
        n, ks = s // 4, s % 4
        ph = 0 if n < 7 else 1
        out = []
        wi = 2 * n + 1 if ph == 0 else n + 7
        wbase = (wi % 10) * 16384
        for jf in range(2):
            for j2 in range(2):
                def mk(jf=jf, j2=j2):
                    d = vAbuf(s % 3, jf) + 2 * j2
                    g.lgop("ds_read_b64_tr_b16 %s, %s" % (rng("v", d, 2), lds_ref(lambda b: vWA(jf, b), wbase + ks * 2048 + j2 * 512)), ("rd", s))
                out.append(mk)
        if ph == 0:
            xbase = ((2 * n) % 10) * 16384
            for t in range(2):
                def mk(t=t):
                    d = (s * 2 + t) * 4
                    g.lgop("ds_read_b128 %s, %s" % (rng("a", d, 4), lds_ref(lambda b: vXB(ks, b), xbase + t * 4096)), ("rd", s))
                out.insert(2 + 3 * t if t == 0 else len(out), mk)
        return out

    def epilogue_ops(ph):
        ops = []
        for tile in range(4):
            jf, t = tile >> 1, tile & 1
            D = ACC[ph] + tile * 16
            def V(s, c=4):
                ops.append((c, lambda s=s: e(s)))
            for i in range(8): V("v_mul_f32 v%d, 0xbfb8aa3b, v%d" % (D + i, D + i))
            for i in range(8): V("v_exp_f32 v%d, v%d" % (D + i, D + i), 8)
            for i in range(8): V("v_add_f32 v%d, 1.0, v%d" % (D + i, D + i))
            for i in range(8): V("v_rcp_f32 v%d, v%d" % (D + i, D + i), 8)
            for i in range(8): V("v_mul_f32 v%d, v%d, v%d" % (D + i, D + i, D + 8 + i))
            for i in range(4): V("v_cvt_pk_bf16_f32 v%d, v%d, v%d" % (D + 8 + i, D + 2 * i, D + 2 * i + 1))
            def st(jf=jf, t=t, D=D):
                e(g.setoff(sHs, (t * 112 + 4 * ph + jf) * 1024))
                g.vmop("buffer_store_dwordx4 %s, v%d, %s, %s offen sc1" % (rng("v", D + 8, 4), vL16, srd(sH), sHs), ("hst", ph))
            ops.append((8, st))
        return ops

    def signal(ph):
        e("s_cmp_lg_u32 s%d, 0" % sWV)
        e("s_cbranch_scc1 L_nosig%d" % ph)
        e("s_mov_b64 exec, 1")
        e("v_mov_b32 v%d, 1" % T)
        e("global_atomic_add v%d, v%d, s[14:15] offset:%d sc1" % (vFlag, T, 4 * ph))
        e("s_mov_b64 exec, -1")
        g.label("L_nosig%d" % ph)

    def poll(ph):
        e("s_mov_b32 s61, 0")
        g.label("L_poll%d" % ph)
        e("global_load_dword v%d, v%d, s[14:15] offset:%d sc1" % (T, vFlag, 4 * ph))
        e("s_waitcnt vmcnt(0)")
        e("v_readfirstlane_b32 s57, v%d" % T)
        e("s_addk_i32 s61, 1")
        e("s_cmp_ge_u32 s61, 0x40000")
        e("s_cbranch_scc1 L_polled%d" % ph)
        e("s_cmp_ge_u32 s57, 14")
        e("s_cbranch_scc1 L_polled%d" % ph)
        e("s_sleep 2")
        e("s_branch L_poll%d" % ph)
        g.label("L_polled%d" % ph)

    next_item = 10
    g.wait(vm=[("it", 0), ("it", 1)])
    e("s_barrier")
    g.stamp()
    for s in (0, 1):
        for r in s1_reads(s): r()
    dmaq = []
    epq = []
    for s in range(56):
        n, ks = s // 4, s % 4
        ph = 0 if n < 7 else 1
        if s == 28: g.stamp()
        if ks == 2 and n + 1 <= 13:
            nb = n + 1
            need = [("it", 2 * nb), ("it", 2 * nb + 1)] if nb < 7 else [("it", nb + 7)]
            while dmaq: dmaq.pop(0)()
            if nb == 13:
                while epq: epq.pop(0)[1]()
                need.append(("hst", 0))
            g.wait(vm=need, lg=("rd", s))
            if not opt.get("nobar"): e("s_barrier")
            if nb == 13:
                signal(0)
            if nb >= 2:
                cnt = 2 if nb - 2 <= 6 else 1
                for _ in range(cnt):
                    dmaq += item_pieces(next_item); next_item += 1
        elif s == 55:
            g.wait(lg=0)
            e("s_barrier")
            while dmaq: dmaq.pop(0)()
            for _ in range(2):
                dmaq += item_pieces(next_item); next_item += 1
        else:
            g.wait(lg=("rd", s))
        if s == 29:
            epq = epilogue_ops(0)
            if opt.get("noepi"):
                epq = [x for x in epq if x[0] == 8 and x[1].__name__ == "st"]
        rds = s1_reads(s + 2) if s + 2 < 56 else []
        xs = s % 28
        for m in range(4):
            jf, t = m >> 1, m & 1
            D = ACC[ph] + m * 16
            C = "0" if xs == 0 else rng("v", D, 16)
            e("v_mfma_f32_32x32x16_bf16 %s, %s, %s, %s" % (rng("v", D, 16), rng("v", vAbuf(s % 3, jf), 4), rng("a", (xs * 2 + t) * 4, 4), C))
            budget = 24
            k = (len(rds) + (3 - m)) // (4 - m)
            for _ in range(k):
                rds.pop(0)(); budget -= 4
            if dmaq and (m & 1) == 1:
                if opt.get("nodma"):
                    n0 = len(g.L); dmaq.pop(0)(); del g.L[n0:]
                else:
                    dmaq.pop(0)(); budget -= 8
            while epq and budget >= epq[0][0]:
                c, f = epq.pop(0); f(); budget -= c
    while dmaq: dmaq.pop(0)()
    g.stamp()
    e("s_nop 7")
    for c, f in epilogue_ops(1): f()
    g.stamp()
    poll(0)
    g.vm.append("poll")
    g.stamp()
    e("s_barrier")
    signal(1)
    def h_loads(ph):
        for kk in range(14):
            for t in range(2):
                d = ph * 112 + (kk * 2 + t) * 4
                e(g.setoff(sHl, (t * 112 + 8 * kk + 4 * ph) * 1024))
                g.vmop("buffer_load_dwordx4 %s, v%d, %s, %s offen sc1" % (rng("a", d, 4), vL16, srd(sH), sHl), ("hl", ph, kk))
    def s2_reads(u):
        ph, kk = u // 14, u % 14
        it = 21 + ph * 7 + kk // 2
        base = (it % 10) * 16384 + (kk & 1) * 2048
        out = []
        for cbh in range(2):
            for j2 in range(2):
                def mk(cbh=cbh, j2=j2):
                    d = vAbuf(u % 3, cbh) + 2 * j2
                    g.lgop("ds_read_b64_tr_b16 %s, %s" % (rng("v", d, 2), lds_ref(lambda b: vDA(cbh, b), base + j2 * 1024)), ("r2", u))
                out.append(mk)
        return out
    h_loads(0)
    for u in (0, 1):
        for r in s2_reads(u): r()
    for u in range(28):
        ph, kk = u // 14, u % 14
        if u == 14:
            g.stamp()
            poll(1)
            g.vm.append("poll")
            g.stamp()
            h_loads(1)
        need = [("hl", ph, kk)]
        if u + 2 < 28:
            need.append(("it", 21 + (u + 2) // 14 * 7 + ((u + 2) % 14) // 2))
        g.wait(vm=need, lg=("r2", u))
        if (u & 1) == 1 and next_item <= 34 and next_item - 10 == 21 + u // 2:
            dmaq += item_pieces(next_item); next_item += 1
        rds = s2_reads(u + 2) if u + 2 < 28 else []
        for m in range(4):
            cbh, t = m >> 1, m & 1
            D = ACC2 + m * 16
            C = "0" if u == 0 else rng("v", D, 16)
            e("v_mfma_f32_32x32x16_bf16 %s, %s, %s, %s" % (rng("v", D, 16), rng("v", vAbuf(u % 3, cbh), 4), rng("a", ph * 112 + (kk * 2 + t) * 4, 4), C))
            if rds: rds.pop(0)()
            if dmaq: dmaq.pop(0)()
    assert next_item == 35 and not dmaq
    g.stamp()
    PITCH = 272
    WREG = 64 * PITCH
    e("s_barrier")
    wa, ra = T, T + 1
    e("v_and_b32 v%d, 31, v0" % wa)
    e("v_mul_u32_u24 v%d, %d, v%d" % (wa, PITCH, wa))
    e("v_lshrrev_b32 v%d, 5, v0" % ra)
    e("v_lshl_add_u32 v%d, v%d, 4, v%d" % (wa, ra, wa))
    e("s_mul_i32 s57, s%d, %d" % (sWV, WREG))
    e("v_add_u32 v%d, s57, v%d" % (wa, wa))
    e("s_nop 7")
    for m in range(4):
        cbh, t = m >> 1, m & 1
        for q in range(4):
            e("ds_write_b128 v%d, %s offset:%d" % (wa, rng("v", ACC2 + m * 16 + 4 * q, 4), t * 32 * PITCH + (32 * cbh + 8 * q) * 4))
    e("v_lshrrev_b32 v%d, 2, v0" % ra)
    e("s_lshl_b32 s57, s%d, 4" % sWV)
    e("v_add_u32 v%d, s57, v%d" % (ra, ra))
    e("v_mul_u32_u24 v%d, 896, v%d" % (T + 2, ra))
    e("v_mul_u32_u24 v%d, %d, v%d" % (ra, PITCH, ra))
    e("v_and_b32 v%d, 3, v0" % (T + 3))
    e("v_lshl_add_u32 v%d, v%d, 6, v%d" % (ra, T + 3, ra))
    e("v_lshl_add_u32 v%d, v%d, 5, v%d" % (T + 2, T + 3, T + 2))
    e("s_mul_i32 s57, s%d, %d" % (sTB, 64 * 896))
    e("s_lshl_b32 s58, s%d, 7" % sCB)
    e("s_add_u32 s57, s57, s58")
    e("s_waitcnt lgkmcnt(0)")
    e("s_barrier")
    R = 128
    for w in range(4):
        for q in range(4):
            e("ds_read_b128 %s, v%d offset:%d" % (rng("v", R + w * 16 + q * 4, 4), ra, w * WREG + q * 16))
    e("s_waitcnt lgkmcnt(8)")
    for i in range(16): e("v_add_f32 v%d, v%d, v%d" % (R + i, R + i, R + 16 + i))
    e("s_waitcnt lgkmcnt(0)")
    for i in range(16): e("v_add_f32 v%d, v%d, v%d" % (R + 32 + i, R + 32 + i, R + 48 + i))
    for i in range(16): e("v_add_f32 v%d, v%d, v%d" % (R + i, R + i, R + 32 + i))
    for i in range(8): e("v_cvt_pk_bf16_f32 v%d, v%d, v%d" % (R + 16 + i, R + 2 * i, R + 2 * i + 1))
    e("buffer_store_dwordx4 %s, v%d, %s, s57 offen" % (rng("v", R + 16, 4), T + 2, srd(sO)))
    e("buffer_store_dwordx4 %s, v%d, %s, s57 offen offset:16" % (rng("v", R + 20, 4), T + 2, srd(sO)))
    if stamps:
        e("s_waitcnt vmcnt(0)")
        g.stamp()
        e("s_waitcnt lgkmcnt(0)")
        e("s_add_u32 s16, s16, 0x8000000")
        e("s_addc_u32 s17, s17, 0")
        e("s_lshl_b32 s57, s2, 2")
        e("s_add_u32 s57, s57, s%d" % sWV)
        e("s_lshl_b32 s57, s57, 7")
        e("v_mov_b32 v1, s57")
        e("s_mov_b64 exec, 1")
        for j in range(g.nst):
            e("v_mov_b32 v2, s%d" % (64 + 2 * j))
            e("v_mov_b32 v3, s%d" % (65 + 2 * j))
            e("global_store_dwordx2 v1, v[2:3], s[16:17] offset:%d" % (8 * j))
            e("s_nop 1")
    g.label("L_end")
    e("s_endpgm")
    return g

def emit(g, path):
    check_hazards(g.L)
    body = "\n".join(l if l.endswith(":") else "    " + l for l in g.L) + "\n"
    src = HEADER + "; @launch grid=(224,1,1) block=(256,1,1) lds=163840\n"
    src += '.amdgcn_target "amdgcn-amd-amdhsa--gfx950"\n.text\n' + kernel_begin(KN) + body
    src += '.section .rodata,"a"\n.p2align 6\n' + kd(KN, 512, 102, 256)
    open(path, "w").write(src)

if __name__ == "__main__":
    out = sys.argv[1]
    stamps = 1 if "--stamps" in sys.argv else (2 if "--cyc" in sys.argv else 0)
    opt = {}
    for a in sys.argv[2:]:
        if a.startswith("-o"):
            k, _, v = a[2:].partition("=")
            opt[k] = int(v) if v else 1
    emit(build(stamps, opt), out)
```

```python
import sys
from asmlib import *
from hazard import check_hazards
from gen import Gen, rng

NS = 9
MISC = NS * 16384
FLAGOFF = 8 << 20
def slot(i): return (i % NS) * 16384
PA, PB = 32, 48

def build(stamps=False, opt=None):
    opt = opt or {}
    O = lambda k, d=0: opt.get(k, d)
    srd = lambda b: rng("s", b, 4)
    sX, sW, sWD, sH, sO = 20, 24, 28, 32, 36
    sMB, sFB, sWV, sTB, sCB = 40, 41, 42, 43, 44
    sXo, sWo, sDo, sLB, sHs = "s45", "s46", "s47", "s48", "s49"
    sXb, sWb, sDb = "s50", "s18", "s19"
    sCur, sCur2, sRot = "s3", "s62", "s63"
    vXe, vXo, vW, vD, vL16, vFlag, vFlag2, vSync, vProg = 1, 2, 3, 4, 5, 6, 7, 8, 9
    vXB = lambda ks, b: 10 + b * 4 + ks
    vWA = lambda jf, b: 22 + b * 4 + jf
    vDA = lambda cbh, b: 34 + b * 2 + cbh
    vH = lambda ph, t: 40 + ph * 2 + t
    T = 44
    FR = 48
    ACC = 80
    TS = 48

    P = Gen(stamps)
    e = P.e
    P.stamp()
    e("s_load_dwordx8 s[4:11], s[0:1], 0")
    e("s_load_dwordx4 s[12:15], s[0:1], 32")
    e("s_load_dwordx2 s[16:17], s[0:1], 48")
    e("s_cmp_ge_u32 s2, 224")
    e("s_cbranch_scc1 %s" % ("L_help" if O("help") else "L_end"))
    e("v_lshrrev_b32 v%d, 6, v0" % TS)
    e("v_and_b32 v0, 63, v0")
    e("v_readfirstlane_b32 s60, v%d" % TS)
    e("s_and_b32 s51, s2, 7")
    e("s_lshr_b32 s52, s2, 3")
    e("s_mul_i32 s53, s52, 37")
    e("s_lshr_b32 s53, s53, 8")
    e("s_mul_i32 s54, s53, 7")
    e("s_sub_u32 s54, s52, s54")
    e("s_lshr_b32 s55, s51, 1")
    e("s_lshl_b32 s%d, s55, 2" % sMB)
    e("s_add_u32 s%d, s%d, s53" % (sMB, sMB))
    e("s_and_b32 s56, s51, 1")
    e("s_mul_i32 s%d, s56, 7" % sFB)
    e("s_add_u32 s%d, s%d, s54" % (sFB, sFB))
    e("s_lshl_b32 s56, s53, 1")
    e("s_add_u32 s56, s56, s54")
    e("s_add_u32 s56, s56, s55")
    e("s_and_b32 s%d, s60, 3" % sWV)
    r8, p7, rh, t0, t1 = TS, TS + 1, TS + 2, TS + 3, TS + 4
    e("v_lshrrev_b32 v%d, 3, v0" % r8)
    e("v_and_b32 v%d, 7, v0" % p7)
    e("v_lshrrev_b32 v%d, 1, v%d" % (rh, r8))
    e("v_xor_b32 v%d, v%d, v%d" % (t0, p7, rh))
    e("v_lshlrev_b32 v%d, 4, v%d" % (t0, t0))
    e("v_mul_u32_u24 v%d, 896, v%d" % (t1, r8))
    e("v_add_u32 v%d, v%d, v%d" % (vXe, t1, t0))
    e("v_xor_b32 v%d, 64, v%d" % (t0, t0))
    e("v_add_u32 v%d, v%d, v%d" % (vXo, t1, t0))
    e("s_lshr_b32 s55, s%d, 1" % sWV)
    e("s_lshl_b32 s57, s55, 6")
    e("v_and_b32 v%d, 1, v%d" % (rh, rh))
    e("v_lshlrev_b32 v%d, 5, v%d" % (t0, rh))
    e("v_or_b32 v%d, s57, v%d" % (t0, t0))
    e("v_lshlrev_b32 v%d, 4, v%d" % (p7, p7))
    e("v_xor_b32 v%d, v%d, v%d" % (t0, t0, p7))
    e("v_mul_u32_u24 v%d, 3584, v%d" % (vW, r8))
    e("v_add_u32 v%d, v%d, v%d" % (vW, vW, t0))
    e("s_mul_i32 %s, s%d, %d" % (sXb, sMB, 128 * 896))
    e("s_mul_i32 s57, s%d, %d" % (sWV, 32 * 896))
    e("s_add_u32 %s, %s, s57" % (sXb, sXb))
    e("s_and_b32 s57, s%d, 1" % sWV)
    e("s_mul_i32 %s, s57, %d" % (sWb, 32 * 3584))
    e("s_lshl_b32 s58, s%d, 8" % sFB)
    e("s_add_u32 %s, %s, s58" % (sWb, sWb))
    e("s_lshl_b32 %s, s%d, 12" % (sLB, sWV))
    e("s_mov_b32 s%d, %d" % (sX + 2, 2048 * 896))
    e("s_mov_b32 s%d, 0x20000" % (sX + 3))
    e("s_mov_b32 s%d, %d" % (sW + 2, 448 * 3584))
    e("s_mov_b32 s%d, 0x20000" % (sW + 3))
    BI = 15
    e("s_cmp_lt_u32 s60, 4")
    e("s_cselect_b32 s57, %d, 0" % (BI - 13))
    e("s_add_u32 s56, s56, s57")
    e("s_mul_i32 s57, s56, 37")
    e("s_lshr_b32 s57, s57, 8")
    e("s_mul_i32 s57, s57, 7")
    e("s_sub_u32 %s, s56, s57" % sCur)
    e("s_waitcnt lgkmcnt(0)")
    e("s_mov_b32 s%d, s4" % sX)
    e("s_and_b32 s%d, s5, 0xffff" % (sX + 1))
    e("s_cmp_eq_u32 s55, 0")
    e("s_cselect_b32 s%d, s6, s8" % sW)
    e("s_cselect_b32 s%d, s7, s9" % (sW + 1))
    e("s_and_b32 s%d, s%d, 0xffff" % (sW + 1, sW + 1))
    e("s_cmp_lt_u32 s60, 4")
    e("s_cbranch_scc1 L_A")

    def mk_prog(tag):
        g = Gen(stamps); g.nst = P.nst; g.tag = tag; g.nl = 0
        g.cur[sHs] = 0
        return g
    def adv(g, reg, step, lim):
        g.e("s_add_u32 %s, %s, %d" % (reg, reg, step))
        g.e("s_cmp_eq_u32 %s, %d" % (reg, lim))
        g.e("s_cselect_b32 %s, 0, %s" % (reg, reg))

    class Stream:
        def __init__(self, g, first, last):
            self.g = g; self.p = [(i, jj) for i in range(first, last + 1) for jj in range(4)]
            self.n = 0; self.allow = NS; self.first = first
        def one(self):
            g = self.g; e = g.e
            i, jj = self.p[self.n]; self.n += 1
            assert i < self.allow, (i, self.allow)
            m0 = "s_add_u32 m0, %s, 0x%x" % (sLB, slot(i)) if jj == 0 else "s_addk_i32 m0, 0x400"
            if i < 14 and i % 2 == 0:
                if jj == 0:
                    e("s_lshl_b32 %s, %s, 7" % (sXo, sCur)); e(m0); e("s_add_u32 %s, %s, %s" % (sXo, sXo, sXb))
                else:
                    e(m0); e("s_addk_i32 %s, 7168" % sXo)
                g.vmop("buffer_load_dwordx4 v%d, %s, %s offen lds" % (vXo if jj & 1 else vXe, srd(sX), sXo), ("it", i))
            elif i < 21:
                if jj == 0:
                    if i == 14 or (i == self.first and i > 14): e("s_addk_i32 %s, 128" % sWb)
                    e("s_mul_i32 %s, %s, %d" % (sWo, sCur, 64 * 3584))
                    adv(g, sCur, 1, 7)
                    e(m0); e("s_add_u32 %s, %s, %s" % (sWo, sWo, sWb))
                else:
                    e(m0); e("s_addk_i32 %s, 28672" % sWo)
                g.vmop("buffer_load_dwordx4 v%d, %s, %s offen lds" % (vW, srd(sW), sWo), ("it", i))
            else:
                if i == 21 and jj == 0: e("s_mov_b32 %s, %s" % (sCur, sRot))
                if i == 28 and jj == 0: e("s_add_u32 %s, %s, %d" % (sDb, sDb, 64 * 896))
                if jj & 1 == 0:
                    e("s_mul_i32 %s, %s, %d" % (sDo, sCur, 128 * 896))
                    adv(g, sCur, 1, 14)
                    e(m0); e("s_add_u32 %s, %s, %s" % (sDo, sDo, sDb))
                else:
                    e(m0); e("s_addk_i32 %s, 7168" % sDo)
                g.vmop("buffer_load_dwordx4 v%d, %s, %s offen lds" % (vD, srd(sWD), sDo), ("it", i))
        def can(self): return self.n < len(self.p) and self.p[self.n][0] < self.allow
        def issue(self, n=1):
            k = 0
            while k < n and self.can(): self.one(); k += 1
            return k
        def through(self, item):
            while self.n < len(self.p) and self.p[self.n][0] <= item: self.one()
        def upto(self, cnt):
            while self.n < cnt and self.can(): self.one()
        def nxt(self): return self.p[self.n][0] if self.n < len(self.p) else 99
    def allow_after(n):
        return NS if n < 2 else NS + 2 * (n - 1)

    def lds_ref(vfun, byte):
        return "v%d offset:%d" % (vfun(byte >> 16), byte & 0xffff)
    def bases(g, vfun, n):
        for j in range(n):
            g.e("v_add_u32 v%d, 0x10000, v%d" % (vfun(j, 1), vfun(j, 0)))
            g.e("v_add_u32 v%d, 0x20000, v%d" % (vfun(j, 2), vfun(j, 0)))
    def mk_srd(g, d, b, n):
        g.e("s_mov_b32 s%d, s%d" % (d, b))
        g.e("s_and_b32 s%d, s%d, 0xffff" % (d + 1, b + 1))
        g.e("s_mov_b32 s%d, %d" % (d + 2, n))
        g.e("s_mov_b32 s%d, 0x20000" % (d + 3))
    hi, mt, rr, cc, a0, sw, tk = TS + 5, TS + 6, TS + 7, TS + 8, TS + 9, TS + 10, TS + 11
    def flag_addr(g):
        g.e("s_lshl_b32 s59, s%d, 7" % sMB)
        g.e("s_lshl_b32 s61, s%d, 2" % sFB)
        g.e("s_add_u32 s59, s59, s61")
        g.e("s_add_u32 s59, s59, 0x%x" % FLAGOFF)
        g.e("v_mov_b32 v%d, s59" % vFlag)
    def common_addr(g, tokbase_sreg, sbase_sreg, progoff):
        e = g.e
        e("v_and_b32 v%d, 31, v0" % tk)
        e("v_lshrrev_b32 v%d, 5, v0" % hi)
        e("v_bfe_u32 v%d, v0, 1, 3" % sw)
        e("v_xor_b32 v%d, v%d, v%d" % (sw, sw, hi))
        e("v_lshlrev_b32 v%d, 4, v%d" % (sw, sw))
        e("v_lshl_add_u32 v%d, v%d, 7, v%d" % (sw, tk, sw))
        e("v_add_u32 v%d, %s, v%d" % (sw, tokbase_sreg, sw))
        for ks in range(4): e("v_xor_b32 v%d, %d, v%d" % (vXB(ks, 0), ks * 32, sw))
        bases(g, vXB, 4)
        e("v_bfe_u32 v%d, v0, 4, 1" % mt)
        e("v_bfe_u32 v%d, v0, 2, 2" % rr)
        e("v_and_b32 v%d, 3, v0" % cc)
        e("v_lshlrev_b32 v%d, 3, v%d" % (cc, cc))
        e("v_lshl_add_u32 v%d, v%d, 3, v%d" % (a0, hi, rr))
        e("v_lshl_add_u32 v%d, v%d, 7, v%d" % (a0, a0, cc))
        e("v_lshl_add_u32 v%d, v%d, 13, v%d" % (a0, mt, a0))
        e("v_lshrrev_b32 v%d, 1, v%d" % (t0, rr))
        e("v_lshl_or_b32 v%d, v%d, 1, v%d" % (sw, mt, t0))
        e("v_xor_b32 v%d, %s, v%d" % (sw, sbase_sreg, sw))
        e("v_lshl_add_u32 v%d, v%d, 5, v%d" % (vWA(0, 0), sw, a0))
        e("v_lshlrev_b32 v%d, 4, v0" % vL16)
        e("v_mov_b32 v%d, 0x%x" % (vSync, MISC))
        e("s_lshl_b32 s59, s%d, 2" % sWV)
        e("s_add_u32 s59, s59, 0x%x" % (MISC + progoff))
        e("v_mov_b32 v%d, s59" % vProg)
        mk_srd(g, sH, 16, 2048 * 1792 * 2)

    def epilogue_ops(g, ph, tiles):
        ops = []
        for D, dl in tiles:
            def V(s, c=4): ops.append((c, lambda s=s: g.e(s)))
            for i in range(8): V("v_mul_f32 v%d, 0xbfb8aa3b, v%d" % (D + i, D + i))
            for i in range(8): V("v_exp_f32 v%d, v%d" % (D + i, D + i), 8)
            for i in range(8): V("v_add_f32 v%d, 1.0, v%d" % (D + i, D + i))
            for i in range(8): V("v_rcp_f32 v%d, v%d" % (D + i, D + i), 8)
            for i in range(8): V("v_mul_f32 v%d, v%d, v%d" % (D + i, D + i, D + 8 + i))
            for i in range(4): V("v_cvt_pk_bf16_f32 v%d, v%d, v%d" % (D + 8 + i, D + 2 * i, D + 2 * i + 1))
            def stf(D=D, dl=dl):
                g.e(g.setoff(sHs, dl * 1024))
                g.vmop("buffer_store_dwordx4 %s, v%d, %s, %s offen sc1" % (rng("v", D + 8, 4), vL16, srd(sH), sHs), ("hst", ph))
            ops.append((8, stf))
        return ops

    def wg_signal(g, ph):
        e = g.e
        g.wait(vm=("hst", ph))
        e("s_mov_b64 exec, 1")
        e("v_mov_b32 v%d, 1" % T)
        e("ds_add_rtn_u32 v%d, v%d, v%d offset:%d" % (T + 1, vSync, T, 4 * ph))
        e("s_waitcnt lgkmcnt(0)")
        e("v_readfirstlane_b32 s57, v%d" % (T + 1))
        e("s_nop 0")
        e("s_cmp_lg_u32 s57, 3")
        e("s_cbranch_scc1 L_nosig%d" % ph)
        e("global_store_dword v%d, v%d, s[16:17] offset:%d sc1" % (vFlag, T, 64 * ph))
        g.label("L_nosig%d" % ph)
        e("s_mov_b64 exec, -1")

    def prog_write(g, val):
        g.e("v_mov_b32 v%d, %d" % (T, val))
        g.lgop("ds_write_b32 v%d, v%d" % (vProg, T), ("pw", val))
    def prog_min(g, sdst):
        g.e("v_min3_u32 v%d, v%d, v%d, v%d" % (T, T, T + 1, T + 2))
        g.e("v_min_u32 v%d, v%d, v%d" % (T, T, T + 3))
        g.e("s_nop 0")
        g.e("v_readfirstlane_b32 %s, v%d" % (sdst, T))
    def prog_spin(g, off, val, sreg, slp=1):
        e = g.e; n = "%s%d" % (g.tag, g.nl); g.nl += 1
        e("s_cmp_ge_u32 %s, %d" % (sreg, val))
        e("s_cbranch_scc1 L_psd%s" % n)
        e("s_mov_b32 s61, 0")
        g.label("L_ps%s" % n)
        e("ds_read_b128 %s, v%d offset:%d" % (rng("v", T, 4), vSync, off))
        e("s_waitcnt lgkmcnt(0)")
        prog_min(g, sreg)
        e("s_addk_i32 s61, 1")
        e("s_cmp_ge_u32 s61, 0x400000")
        e("s_cbranch_scc1 L_psd%s" % n)
        e("s_cmp_ge_u32 %s, %d" % (sreg, val))
        e("s_cbranch_scc1 L_psd%s" % n)
        if slp: e("s_sleep %d" % slp)
        e("s_branch L_ps%s" % n)
        g.label("L_psd%s" % n)

    def write_stamps(g):
        e = g.e
        e("s_waitcnt vmcnt(0)")
        g.stamp()
        e("s_waitcnt lgkmcnt(0)")
        e("s_add_u32 s16, s16, 0x8000000")
        e("s_addc_u32 s17, s17, 0")
        e("s_lshl_b32 s57, s2, 3")
        e("s_add_u32 s57, s57, s60")
        e("s_lshl_b32 s57, s57, 8")
        e("v_mov_b32 v1, s57")
        e("s_mov_b64 exec, 1")
        for j in range(g.nst):
            e("v_mov_b32 v2, s%d" % (64 + 2 * j))
            e("v_mov_b32 v3, s%d" % (65 + 2 * j))
            e("global_store_dwordx2 v1, v[2:3], s[16:17] offset:%d" % (8 * j))
            e("s_nop 1")

    PRIO = O("prio", 2)
    sPr = "s56"
    g = B = mk_prog("B"); e = g.e
    S = Stream(g, 0, BI)
    S.issue(O("pro", 10))
    e("s_lshl_b32 s57, s%d, 12" % sWV)
    e("s_mov_b32 s58, 0")
    common_addr(g, "s57", "s58", PB)
    flag_addr(g)
    for jf in range(1, 4): e("v_xor_b32 v%d, %d, v%d" % (vWA(jf, 0), 32 * jf, vWA(0, 0)))
    bases(g, vWA, 4)
    e("s_lshl_b32 s59, s%d, 2" % sMB)
    e("s_add_u32 s59, s59, s%d" % sWV)
    e("s_mul_i32 s59, s59, 112")
    e("s_lshl_b32 s58, s%d, 3" % sFB)
    e("s_add_u32 s59, s59, s58")
    e("s_lshl_b32 %s, s59, 10" % sHs)
    e("s_mov_b32 %s, 0" % sPr)
    D = O("d", 10)
    for n in range(8):
        last = 2 * n + 1 if n < 7 else 14
        S.upto(4 * (last + 1) + D)
        g.wait(vm=("it", last), lg=0)
        e("s_barrier")
        if n in (0, 7): g.stamp()
        S.allow = allow_after(n)
        if n < 7:
            for ks in range(4):
                g.lgop("ds_read_b128 %s, %s" % (rng("a", (4 * n + ks) * 4, 4), lds_ref(lambda b: vXB(ks, b), slot(2 * n))), ("cap", n))
    S.through(BI)
    if PRIO: e("s_setprio %d" % PRIO)
    def b_reads(i):
        s, jf = i // 4, i % 4
        n, ks = s // 4, s % 4
        for j2 in range(2):
            d = FR + (i % 8) * 4 + 2 * j2
            g.lgop("ds_read_b64_tr_b16 %s, %s" % (rng("v", d, 2), lds_ref(lambda b: vWA(jf, b), slot(14 + n) + ks * 2048 + j2 * 512)), ("rd", i))
    PD = 6
    for i in range(PD): b_reads(i)
    for i in range(112):
        s, jf = i // 4, i % 4
        if i == 8:
            g.wait(vm=("it", 15), lg=("rd", i))
            e("s_barrier")
        else:
            g.wait(lg=("rd", i))
        if O("sb") and i % 16 == 0 and i: g.stamp()
        if i % 16 == 15:
            prog_write(g, i // 16 + 1)
        Dd = ACC + jf * 16
        e("v_mfma_f32_32x32x16_bf16 %s, %s, %s, %s" % (rng("v", Dd, 16), rng("v", FR + (i % 8) * 4, 4), rng("a", s * 4, 4), "0" if s == 0 else rng("v", Dd, 16)))
        nx = i + PD
        if i % 16 == 2 and i >= 16 and i < 96:
            g.lgop("ds_read_b128 %s, v%d offset:%d" % (rng("v", T, 4), vSync, PA), ("pr", i))
        if i % 16 == 9 and i >= 16 and i < 96:
            prog_min(g, sPr)
        if nx % 16 == 0 and nx >= 32 and nx < 112:
            prog_spin(g, PA, 14 + nx // 16, sPr, 0)
        if nx < 112: b_reads(nx)
    g.stamp()
    if PRIO: e("s_setprio %d" % O("prioe", 2))
    e("s_nop 8")
    for c, f in epilogue_ops(g, 1, [(ACC + jf * 16, 4 + jf) for jf in range(4)]): f()
    g.stamp()
    wg_signal(g, 1)
    if stamps: write_stamps(g)
    e("s_endpgm")

    g = A = mk_prog("A"); e = g.e
    g.label("L_A")
    flag_addr(g)
    e("v_mov_b32 v%d, 0" % T); e("v_mov_b32 v%d, 0" % (T + 1)); e("v_mov_b32 v%d, 0" % (T + 2)); e("v_mov_b32 v%d, 0" % (T + 3))
    e("s_cmp_lg_u32 s%d, 0" % sWV)
    e("s_cbranch_scc1 L_noarm0")
    e("s_mov_b64 exec, 1")
    e("global_store_dword v%d, v%d, s[16:17] sc1" % (vFlag, T))
    e("global_store_dword v%d, v%d, s[16:17] offset:64 sc1" % (vFlag, T))
    e("s_mov_b64 exec, -1")
    g.label("L_noarm0")
    e("s_and_b32 s57, s%d, 1" % sWV)
    e("s_lshr_b32 s58, s%d, 1" % sWV)
    e("s_lshl_b32 s59, s%d, 2" % sMB)
    e("s_lshl_b32 s61, s57, 1")
    e("s_add_u32 s59, s59, s61")
    e("s_mul_i32 s59, s59, 112")
    e("s_lshl_b32 s61, s%d, 3" % sFB)
    e("s_add_u32 s59, s59, s61")
    e("s_lshl_b32 s58, s58, 1")
    e("s_add_u32 s59, s59, s58")
    e("s_lshl_b32 %s, s59, 10" % sHs)
    e("v_lshlrev_b32 v%d, 6, v%d" % (t0, rh))
    e("v_xor_b32 v%d, v%d, v%d" % (t0, t0, p7))
    e("v_add_u32 v%d, v%d, v%d" % (vD, t1, t0))
    e("s_lshl_b32 s57, s57, 13")
    common_addr(g, "s57", "s58", PA)
    e("v_xor_b32 v%d, 32, v%d" % (vWA(1, 0), vWA(0, 0)))
    bases(g, vWA, 2)
    for o in (0, 16, 32, 48): e("ds_write_b128 v%d, %s offset:%d" % (vSync, rng("v", T, 4), o))
    e("s_lshl_b32 s%d, s51, 2" % sTB)
    e("s_add_u32 s%d, s%d, s53" % (sTB, sTB))
    e("s_mov_b32 s%d, s54" % sCB)
    e("s_mul_i32 s56, s53, 7")
    e("s_add_u32 s56, s56, 1")
    e("s_lshr_b32 s56, s56, 1")
    e("s_lshl_b32 s57, s54, 1")
    e("s_add_u32 s56, s56, s57")
    e("s_add_u32 s56, s56, s51")
    for _ in range(2):
        e("s_cmp_ge_u32 s56, 14")
        e("s_cselect_b32 s57, 14, 0")
        e("s_sub_u32 s56, s56, s57")
    e("s_mov_b32 %s, s56" % sRot)
    e("s_mov_b32 %s, 0" % sPr)
    mk_srd(g, sWD, 10, 1792 * 896)
    mk_srd(g, sO, 12, 2048 * 896)
    e("s_mul_i32 %s, s%d, %d" % (sDb, sWV, 16 * 896))
    e("s_lshl_b32 s57, s%d, 7" % sCB)
    e("s_add_u32 %s, %s, s57" % (sDb, sDb))
    e("s_mul_i32 s59, s%d, 224" % sTB)
    e("s_add_u32 s59, s59, s%d" % sWV)
    e("s_lshl_b32 s59, s59, 10")
    e("v_add_u32 v%d, s59, v%d" % (vH(0, 0), vL16))
    e("v_add_u32 v%d, %d, v%d" % (vH(0, 1), 112 * 1024, vH(0, 0)))
    e("v_add_u32 v%d, %d, v%d" % (vH(1, 0), 4096, vH(0, 0)))
    e("v_add_u32 v%d, %d, v%d" % (vH(1, 1), 116 * 1024, vH(0, 0)))
    e("s_lshr_b32 s59, s%d, 1" % sTB)
    e("s_lshl_b32 s57, s59, 4")
    e("v_mov_b32 v%d, s57" % vXe)
    e("s_lshl_b32 s57, s%d, 4" % sMB)
    e("v_mov_b32 v%d, s57" % vXo)
    e("s_lshl_b32 s59, s59, 7")
    e("s_add_u32 s59, s59, 0x%x" % FLAGOFF)
    e("v_min_u32 v%d, 13, v0" % vFlag2)
    e("v_lshl_add_u32 v%d, v%d, 2, s59" % (vFlag2, vFlag2))
    e("v_lshl_add_u32 v%d, v%d, 2, v%d" % (a0, hi, rr))
    e("v_lshl_add_u32 v%d, v%d, 7, v%d" % (a0, a0, cc))
    e("v_lshl_add_u32 v%d, v%d, 5, v%d" % (a0, mt, a0))
    e("v_lshl_add_u32 v%d, v%d, 6, v%d" % (a0, t0, a0))
    e("v_add_u32 v%d, %s, v%d" % (vDA(0, 0), sLB, a0))
    e("v_xor_b32 v%d, 64, v%d" % (vDA(1, 0), vDA(0, 0)))
    bases(g, vDA, 2)
    e("s_cmp_lg_u32 s%d, 0" % sWV)
    e("s_cbranch_scc1 L_noarm1")
    e("s_waitcnt vmcnt(0)")
    e("s_mov_b64 exec, 1")
    e("v_mov_b32 v%d, 1" % T)
    e("global_atomic_add v%d, v%d, s[14:15] sc1" % (vXo, T))
    e("s_mov_b64 exec, -1")
    g.label("L_noarm1")
    vAb = lambda buf, j: FR + buf * 8 + j * 4
    aBb = lambda buf, t: buf * 8 + t * 4
    def a_reads(s):
        n, ks = s // 4, s % 4
        out = []
        for jf in range(2):
            for j2 in range(2):
                out.append(lambda jf=jf, j2=j2: g.lgop("ds_read_b64_tr_b16 %s, %s" % (rng("v", vAb(s % 3, jf) + 2 * j2, 2), lds_ref(lambda b: vWA(jf, b), slot(2 * n + 1) + ks * 2048 + j2 * 512)), ("rd", s)))
        for t in range(2):
            out.insert(2 + 3 * t, lambda t=t: g.lgop("ds_read_b128 %s, %s" % (rng("a", aBb(s % 3, t), 4), lds_ref(lambda b: vXB(ks, b), slot(2 * n) + t * 4096)), ("rd", s)))
        return out
    e("s_waitcnt lgkmcnt(0)")
    if PRIO: e("s_setprio %d" % PRIO)
    e("s_barrier")
    g.stamp()
    S = Stream(g, BI + 1, 34)
    for s in (0, 1):
        for r in a_reads(s): r()
    AS = O("as", 24)
    for s in range(28):
        g.wait(lg=("rd", s))
        if s % 4 == 2:
            e("s_barrier")
            S.allow = allow_after(s // 4 + 1)
        rds = a_reads(s + 2) if s + 2 < 28 else []
        for m in range(4):
            jf, t = m >> 1, m & 1
            Dd = ACC + m * 16
            e("v_mfma_f32_32x32x16_bf16 %s, %s, %s, %s" % (rng("v", Dd, 16), rng("v", vAb(s % 3, jf), 4), rng("a", aBb(s % 3, t), 4), "0" if s == 0 else rng("v", Dd, 16)))
            for _ in range((len(rds) + (3 - m)) // (4 - m)): rds.pop(0)()
            if s >= AS and m & 1: S.issue(1)
    g.stamp()
    if PRIO: e("s_setprio 0")
    PW = 1
    vArm = 72
    e("s_cmp_lg_u32 s%d, %d" % (sWV, PW))
    e("s_cbranch_scc1 L_nal")
    if O("noarm"): e("v_mov_b32 v%d, 14" % vArm)
    else: e("global_load_dword v%d, v%d, s[14:15] sc1" % (vArm, vXe))
    g.label("L_nal")
    e("s_barrier")
    S.allow = allow_after(8)
    S.issue(2)
    ep = epilogue_ops(g, 0, [(ACC + m * 16, (m & 1) * 112 + (m >> 1)) for m in range(4)])
    k = 0; pub = 16
    WBR = O("wbr", 9); PUBR = O("pubr", 30)
    while ep:
        ep.pop(0)[1](); k += 1
        if O("sb") and k % 45 == 0: g.stamp()
        if k % WBR == 0 and S.nxt() <= 20: S.issue(1)
        if k % PUBR == O("pub0", 4) and pub <= 20 and S.nxt() > pub:
            g.wait(vm=("it", pub)); prog_write(g, pub); pub += 1
    S.through(20)
    S.issue(O("wd0", 6))
    if pub <= 20:
        g.wait(vm=("it", 20)); prog_write(g, 20)
    g.stamp()
    wg_signal(g, 0)
    g.stamp()
    def wd_through(item):
        while S.nxt() <= item:
            i = S.nxt()
            if i >= S.allow:
                assert i - NS <= 20
                prog_spin(g, PB, i - NS - 13, sPr)
                S.allow = i + 1
            S.through(i)
    wd_through(O("wdp", 27))
    g.stamp()
    def poll(ph, asyncn=None):
        e("s_cmp_lg_u32 s%d, %d" % (sWV, PW))
        e("s_cbranch_scc1 L_lw%d" % ph)
        e("s_mov_b32 s61, 0")
        if ph == 0:
            g.label("L_arm")
            e("v_readfirstlane_b32 s57, v%d" % vArm)
            e("s_addk_i32 s61, 1")
            e("s_cmp_ge_u32 s61, 0x40000")
            e("s_cbranch_scc1 L_poll0")
            e("s_cmp_ge_u32 s57, 14")
            e("s_cbranch_scc1 L_poll0")
            e("s_sleep 8")
            e("global_load_dword v%d, v%d, s[14:15] sc1" % (vArm, vXe))
            e("s_waitcnt vmcnt(0)")
            e("s_branch L_arm")
        if asyncn is not None:
            e("s_waitcnt vmcnt(%d)" % min(63, asyncn))
            e("s_branch L_pchk%d" % ph)
        g.label("L_poll%d" % ph)
        e("global_load_dword v%d, v%d, s[16:17] offset:%d sc1" % (T + 2, vFlag2, 64 * ph))
        e("s_waitcnt vmcnt(0)")
        g.label("L_pchk%d" % ph)
        e("v_cmp_ne_u32 vcc, 1, v%d" % (T + 2))
        e("s_addk_i32 s61, 1")
        e("s_cmp_ge_u32 s61, 0x40000")
        e("s_cbranch_scc1 L_pok%d" % ph)
        e("s_and_b64 vcc, vcc, exec")
        e("s_cbranch_scc0 L_pok%d" % ph)
        e("s_sleep %d" % O("slp", 2))
        e("s_branch L_poll%d" % ph)
        g.label("L_pok%d" % ph)
        e("v_mov_b32 v%d, 1" % T)
        e("ds_write_b32 v%d, v%d offset:%d" % (vSync, T, 16 + 4 * ph))
        e("s_branch L_pdone%d" % ph)
        g.label("L_lw%d" % ph)
        e("s_mov_b32 s61, 0")
        g.label("L_sp%d" % ph)
        e("ds_read_b32 v%d, v%d offset:%d" % (T + 3, vSync, 16 + 4 * ph))
        e("s_waitcnt lgkmcnt(0)")
        e("v_readfirstlane_b32 s57, v%d" % (T + 3))
        e("s_addk_i32 s61, 1")
        e("s_cmp_ge_u32 s61, 0x400000")
        e("s_cbranch_scc1 L_pdone%d" % ph)
        e("s_cmp_ge_u32 s57, 1")
        e("s_cbranch_scc1 L_pdone%d" % ph)
        e("s_sleep 1")
        e("s_branch L_sp%d" % ph)
        g.label("L_pdone%d" % ph)
        e("s_waitcnt lgkmcnt(0)")
    poll(0)
    g.stamp()
    def h_load(u):
        ph, kk = u // 14, u % 14
        if kk == 0: e("s_lshl_b32 %s, %s, 13" % (sCur2, sRot))
        else: adv(g, sCur2, 8192, 14 * 8192)
        for t in range(2):
            g.vmop("buffer_load_dwordx4 %s, v%d, %s, %s offen sc1" % (rng("a", (kk * 2 + t) * 4, 4), vH(ph, t), srd(sH), sCur2), ("hl", u))
    s2_item = lambda u: 21 + u // 2
    def s2_reads(u):
        base = slot(s2_item(u)) + (u & 1) * 2048
        return [lambda cbh=cbh, j2=j2: g.lgop("ds_read_b64_tr_b16 %s, %s" % (rng("v", vAb(u % 3, cbh) + 2 * j2, 2), lds_ref(lambda b: vDA(cbh, b), base + j2 * 1024)), ("r2", u))
                for cbh in range(2) for j2 in range(2)]
    HD0 = O("hd0", 6); HD = O("hd", 6); PC1 = O("pc1", 12); PI1 = O("pi1", 9); WS = O("ws", 4)
    hn = 0
    for _ in range(HD0): h_load(hn); hn += 1
    g.wait(vm=("it", 21))
    for u in (0, 1):
        for r in s2_reads(u): r()
    for u in range(28):
        if u == WS:
            prog_spin(g, PB, 7, sPr)
            S.allow = max(S.allow, NS + 21)
            g.stamp()
        if u == PI1:
            e("s_cmp_lg_u32 s%d, %d" % (sWV, PW))
            e("s_cbranch_scc1 L_npi")
            e("global_load_dword v%d, v%d, s[16:17] offset:64 sc1" % (T + 2, vFlag2))
            g.label("L_npi")
            pi = len(g.vm)
        if u == PC1:
            S.issue(100)
            g.stamp()
            poll(1, len(g.vm) - pi)
            g.stamp()
        need = [("hl", u)]
        if u + 2 < 28:
            S.through(s2_item(u + 2))
            need.append(("it", s2_item(u + 2)))
        g.wait(vm=need, lg=("r2", u))
        if (u & 1) == 1 and u >= WS: S.allow = max(S.allow, s2_item(u) + NS + 1)
        rds = s2_reads(u + 2) if u + 2 < 28 else []
        for m in range(4):
            cbh, t = m >> 1, m & 1
            Dd = ACC + m * 16
            e("v_mfma_f32_32x32x16_bf16 %s, %s, %s, %s" % (rng("v", Dd, 16), rng("v", vAb(u % 3, cbh), 4), rng("a", ((u % 14) * 2 + t) * 4, 4), "0" if u == 0 else rng("v", Dd, 16)))
            if rds: rds.pop(0)()
            lim = 14 if u < PC1 else 28
            if m in (0, 2) and hn < lim and hn <= u + HD and hn - 14 < u: h_load(hn); hn += 1
            elif hn >= 14 or O("wdmix", 0): S.issue(1)
    assert S.n == len(S.p) and hn == 28
    g.stamp()
    e("v_add_u32 v%d, %s, v%d" % (T, sLB, vL16))
    e("s_and_b32 s57, s%d, 1" % sWV)
    e("s_lshr_b32 s58, s%d, 1" % sWV)
    e("v_and_b32 v%d, 31, v0" % (T + 1))
    e("v_mul_u32_u24 v%d, 896, v%d" % (T + 1, T + 1))
    e("v_lshrrev_b32 v%d, 5, v0" % (T + 2))
    e("v_lshl_add_u32 v%d, v%d, 4, v%d" % (T + 1, T + 2, T + 1))
    e("s_lshl_b32 s59, s%d, 1" % sTB)
    e("s_add_u32 s59, s59, s57")
    e("s_mul_i32 s59, s59, %d" % (32 * 896))
    e("s_lshl_b32 s57, s%d, 7" % sCB)
    e("s_add_u32 s59, s59, s57")
    e("s_lshl_b32 s57, s58, 6")
    e("s_add_u32 s59, s59, s57")
    e("s_lshl_b32 s57, s%d, 14" % sWV)
    e("v_add_u32 v%d, s57, v%d" % (T + 2, vL16))
    for m in range(4):
        for q in range(4):
            e("ds_write_b128 v%d, %s offset:%d" % (T, rng("v", ACC + m * 16 + 4 * q, 4), m * 16384 + q * 1024))
    e("s_waitcnt lgkmcnt(0)")
    e("s_barrier")
    R = ACC
    for w in range(4):
        for q in range(4):
            e("ds_read_b128 %s, v%d offset:%d" % (rng("v", R + w * 16 + q * 4, 4), T + 2, w * 4096 + q * 1024))
    e("s_waitcnt lgkmcnt(8)")
    for i in range(16): e("v_add_f32 v%d, v%d, v%d" % (R + i, R + i, R + 16 + i))
    e("s_waitcnt lgkmcnt(0)")
    for i in range(16): e("v_add_f32 v%d, v%d, v%d" % (R + 32 + i, R + 32 + i, R + 48 + i))
    for i in range(16): e("v_add_f32 v%d, v%d, v%d" % (R + i, R + i, R + 32 + i))
    for i in range(8): e("v_cvt_pk_bf16_f32 v%d, v%d, v%d" % (R + 16 + i, R + 2 * i, R + 2 * i + 1))
    e("s_nop 1")
    for pr in range(2):
        e("v_permlane32_swap_b32 v%d, v%d" % (R + 16 + 4 * pr, R + 18 + 4 * pr))
        e("v_permlane32_swap_b32 v%d, v%d" % (R + 17 + 4 * pr, R + 19 + 4 * pr))
    g.stamp()
    e("buffer_store_dwordx4 %s, v%d, %s, s59 offen" % (rng("v", R + 16, 4), T + 1, srd(sO)))
    e("buffer_store_dwordx4 %s, v%d, %s, s59 offen offset:32" % (rng("v", R + 20, 4), T + 1, srd(sO)))
    if stamps: write_stamps(g)
    g.label("L_end")
    e("s_endpgm")
    H = Gen(0); e = H.e
    if O("help"):
        H.label("L_help")
        e("s_cmp_ge_u32 s2, 256")
        e("s_cbranch_scc1 L_end2")
        e("s_sub_u32 s40, s2, 224")
        e("s_and_b32 s41, s40, 7")
        e("s_lshr_b32 s42, s40, 3")
        e("s_waitcnt lgkmcnt(0)")
        for (d, b, n) in ((20, 6, 448 * 3584), (24, 8, 448 * 3584), (28, 10, 1792 * 896)):
            mk_srd(H, d, b, n)
        e("s_lshr_b32 s43, s41, 1")
        e("s_lshl_b32 s43, s43, 2")
        e("s_add_u32 s43, s43, s42")
        e("s_mul_i32 s44, s43, %d" % (28 * 3584))
        e("s_and_b32 s45, s41, 1")
        e("s_mul_i32 s45, s45, %d" % (7 * 256))
        e("s_add_u32 s44, s44, s45")
        e("s_addk_i32 s44, 128")
        e("v_mul_u32_u24 v1, 9363, v0")
        e("v_lshrrev_b32 v1, 16, v1")
        e("v_mul_u32_u24 v2, 7, v1")
        e("v_sub_u32 v2, v0, v2")
        e("v_mul_u32_u24 v1, 3584, v1")
        e("v_lshl_add_u32 v1, v2, 8, v1")
        e("v_mov_b32 v3, 0x7fffffff")
        e("v_cmp_gt_u32 vcc, 196, v0")
        e("s_nop 1")
        e("v_cndmask_b32 v1, v3, v1, vcc")
        if O("help") & 1:
            e("buffer_load_dword v8, v1, s[20:23], s44 offen")
            e("buffer_load_dword v9, v1, s[24:27], s44 offen")
        e("v_lshlrev_b32 v4, 7, v0")
        e("v_cmp_gt_u32 vcc, 392, v0")
        e("s_nop 1")
        e("v_cndmask_b32 v4, v3, v4, vcc")
        e("s_lshl_b32 s46, s41, 2")
        e("s_add_u32 s46, s46, s42")
        e("s_mul_i32 s46, s46, %d" % (392 * 128))
        if O("help") & 2:
            for r in range(O("hn", 1)):
                if O("hser"): e("s_waitcnt vmcnt(0)"); e("s_barrier")
                e("buffer_load_dword v%d, v4, s[28:31], s46 offen" % (10 + r))
                e("s_add_u32 s46, s46, %d" % (4 * 392 * 128))
                e("s_cmp_ge_u32 s46, %d" % (32 * 392 * 128))
                e("s_cselect_b32 s47, %d, 0" % (32 * 392 * 128))
                e("s_sub_u32 s46, s46, s47")
        e("s_waitcnt vmcnt(0)")
        H.label("L_end2")
        e("s_endpgm")
    check_hazards(P.L + B.L); check_hazards(P.L + A.L); check_hazards(H.L)
    return P.L + B.L + A.L + H.L, (256 if O("help") else 224)

def emit(Ln, path):
    L, nwg = Ln
    body = "\n".join(l if l.endswith(":") else "    " + l for l in L) + "\n"
    src = HEADER + "; @launch grid=(%d,1,1) block=(512,1,1) lds=163840\n" % nwg
    src += '.amdgcn_target "amdgcn-amd-amdhsa--gfx950"\n.text\n' + kernel_begin(KN) + body
    src += '.section .rodata,"a"\n.p2align 6\n' + kd(KN, 256, 102, 144)
    open(path, "w").write(src)

if __name__ == "__main__":
    out = sys.argv[1]
    stamps = 1 if "--stamps" in sys.argv else (2 if "--cyc" in sys.argv else 0)
    opt = {}
    for a in sys.argv[2:]:
        if a.startswith("-o"):
            k, _, v = a[2:].partition("=")
            opt[k] = int(v) if v else 1
    emit(build(stamps, opt), out)
```

```python
import sys
from asmlib import *
from hazard import check_hazards
from gen import Gen, rng

NS = 10
FLAGOFF = 8 << 20
FS = 128
def slot(i): return (i % NS) * 16384

def build(stamps=False, opt=None):
    opt = opt or {}
    O = lambda k, d=0: opt.get(k, d)
    g = Gen(stamps); e = g.e
    SB = 78
    def stamp():
        if stamps:
            r = SB + 2 * g.nst
            assert r + 1 < 102
            e("%s s[%d:%d]" % ("s_memtime" if stamps == 2 else "s_memrealtime", r, r + 1)); g.nst += 1
    FINE = O("fine")
    stA = (lambda: None) if FINE else stamp
    stF = lambda k: stamp() if FINE == k else None
    srd = lambda b: rng("s", b, 4)
    sX, sW, sWD, sH, sO = 20, 24, 28, 32, 36
    sMB, sFB, sWV, sTB, sCB = 40, 41, 42, 43, 44
    sDo, sLB, sHs, sDb, sDb2, sH2, sOut = "s45", "s46", "s47", "s48", "s49", "s50", "s8"
    sCx = lambda i: "s%d" % (64 + i)
    sCw = lambda i: "s%d" % (71 + i)
    vX = lambda j: 2 + j
    vW = lambda j: 6 + j
    vXB = lambda ks, b: 10 + b * 4 + ks
    vWA = lambda jf, b: 22 + b * 2 + jf
    vDA = lambda c, b: 28 + b * 2 + c
    vL16, vFlag = 34, 35
    vAbuf = lambda buf, j: 36 + buf * 8 + j * 4
    vH = lambda ph, t: 60 + ph * 2 + t
    ACC = [64, 128]
    vD = lambda j: 192 + j
    vFlag2, vArmA, vArm, vOut, vPol = 196, 197, 198, 199, 200
    T = 204

    stamp()
    e("s_load_dwordx8 s[4:11], s[0:1], 0")
    e("s_load_dwordx4 s[12:15], s[0:1], 32")
    e("s_load_dwordx2 s[16:17], s[0:1], 48")
    e("s_cmp_ge_u32 s2, 224")
    e("s_cbranch_scc0 L_main")
    e("s_cmp_ge_u32 s2, 256")
    e("s_cbranch_scc1 L_end2")
    e("s_getpc_b64 s[30:31]")
    e("v_lshlrev_b32 v4, 7, v0")
    e("v_cmp_gt_u32 vcc, @NLINES@, v0")
    e("s_and_saveexec_b64 s[32:33], vcc")
    e("s_cbranch_execz L_ncp")
    e("global_load_dword v7, v4, s[30:31]")
    g.label("L_ncp")
    e("s_mov_b64 exec, -1")
    e("s_branch L_help2")
    g.label("L_main")
    e("v_lshrrev_b32 v%d, 6, v0" % T)
    e("v_and_b32 v0, 63, v0")
    e("v_readfirstlane_b32 s%d, v%d" % (sWV, T))
    e("s_and_b32 s51, s2, 7")
    e("s_lshr_b32 s52, s2, 3")
    e("s_mul_i32 s53, s52, 37")
    e("s_lshr_b32 s53, s53, 8")
    e("s_mul_i32 s54, s53, 7")
    e("s_sub_u32 s54, s52, s54")
    e("s_lshr_b32 s55, s51, 1")
    e("s_lshl_b32 s%d, s55, 2" % sMB)
    e("s_add_u32 s%d, s%d, s53" % (sMB, sMB))
    e("s_and_b32 s56, s51, 1")
    e("s_mul_i32 s%d, s56, 7" % sFB)
    e("s_add_u32 s%d, s%d, s54" % (sFB, sFB))
    e("s_lshl_b32 s56, s53, 1")
    e("s_add_u32 s56, s56, s54")
    e("s_add_u32 s56, s56, s55")
    e("s_mul_i32 s57, s56, 37")
    e("s_lshr_b32 s57, s57, 8")
    e("s_mul_i32 s57, s57, 7")
    e("s_sub_u32 s3, s56, s57")
    r8, p7, rh, t0, t1 = T, T + 1, T + 2, T + 3, T + 4
    e("v_lshrrev_b32 v%d, 3, v0" % r8)
    e("v_and_b32 v%d, 7, v0" % p7)
    e("v_lshrrev_b32 v%d, 1, v%d" % (rh, r8))
    e("v_xor_b32 v%d, v%d, v%d" % (t0, p7, rh))
    e("v_lshlrev_b32 v%d, 4, v%d" % (t0, t0))
    e("v_mul_u32_u24 v%d, 896, v%d" % (t1, r8))
    e("v_add_u32 v%d, v%d, v%d" % (vX(0), t1, t0))
    e("v_xor_b32 v%d, 64, v%d" % (t0, t0))
    e("s_movk_i32 s57, %d" % (7168 - 1024))
    e("v_add3_u32 v%d, v%d, v%d, s57" % (vX(1), t1, t0))
    e("v_add_u32 v%d, %d, v%d" % (vX(2), 2 * (7168 - 1024), vX(0)))
    e("v_add_u32 v%d, %d, v%d" % (vX(3), 2 * (7168 - 1024), vX(1)))
    e("s_lshr_b32 s55, s%d, 1" % sWV)
    e("s_lshl_b32 s57, s55, 6")
    e("v_and_b32 v%d, 1, v%d" % (rh, rh))
    e("v_lshlrev_b32 v%d, 5, v%d" % (t0, rh))
    e("v_or_b32 v%d, s57, v%d" % (t0, t0))
    e("v_lshlrev_b32 v%d, 4, v%d" % (p7, p7))
    e("v_xor_b32 v%d, v%d, v%d" % (t0, t0, p7))
    e("v_mul_u32_u24 v%d, 3584, v%d" % (vW(0), r8))
    e("v_add_u32 v%d, v%d, v%d" % (vW(0), vW(0), t0))
    for j in range(1, 4): e("v_add_u32 v%d, %d, v%d" % (vW(j), j * (28672 - 1024), vW(0)))
    e("s_mul_i32 s18, s%d, %d" % (sMB, 128 * 896))
    e("s_mul_i32 s57, s%d, %d" % (sWV, 32 * 896))
    e("s_add_u32 s18, s18, s57")
    e("s_and_b32 s57, s%d, 1" % sWV)
    e("s_mul_i32 s19, s57, %d" % (32 * 3584))
    e("s_lshl_b32 s58, s%d, 8" % sFB)
    e("s_add_u32 s19, s19, s58")
    e("s_lshl_b32 %s, s%d, 12" % (sLB, sWV))
    def table(i):
        e("s_lshl_b32 s57, s3, 7")
        e("s_add_u32 %s, s57, s18" % sCx(i))
        e("s_mul_i32 s57, s3, %d" % (64 * 3584))
        e("s_add_u32 %s, s57, s19" % sCw(i))
        e("s_add_u32 s3, s3, 1")
        e("s_cmp_eq_u32 s3, 7")
        e("s_cselect_b32 s3, 0, s3")
    table(0); table(1)
    e("s_mov_b32 s%d, %d" % (sX + 2, 2048 * 896))
    e("s_mov_b32 s%d, 0x20000" % (sX + 3))
    e("s_mov_b32 s%d, %d" % (sW + 2, 448 * 3584))
    e("s_mov_b32 s%d, 0x20000" % (sW + 3))
    e("s_waitcnt lgkmcnt(0)")
    e("s_mov_b32 s%d, s4" % sX)
    e("s_and_b32 s%d, s5, 0xffff" % (sX + 1))
    e("s_cmp_eq_u32 s55, 0")
    e("s_cselect_b32 s%d, s6, s8" % sW)
    e("s_cselect_b32 s%d, s7, s9" % (sW + 1))
    e("s_and_b32 s%d, s%d, 0xffff" % (sW + 1, sW + 1))
    g.cur[sHs] = 0

    allp = [(i, jj) for i in range(35) for jj in range(4)]
    st = {"np": 0, "allow": NS}
    def one():
        i, jj = allp[st["np"]]; st["np"] += 1
        assert i < st["allow"]
        off = " offset:%d" % (jj * 1024) if jj else ""
        n = 1
        if jj == 0:
            e("s_add_u32 m0, %s, 0x%x" % (sLB, slot(i))); n += 2
            if i == 14:
                for j in range(4): e("v_add_u32 v%d, 128, v%d" % (vW(j), vW(j)))
            elif i >= 21:
                c, ph = (i - 21) % 7, (i - 21) // 7
                e("s_add_u32 %s, %s, 0x%x" % (sDo, sDb, (256 * c + 64 * ph) * 896))
            else: e("s_nop 0")
        if i < 14 and i % 2 == 0:
            g.vmop("buffer_load_dwordx4 v%d, %s, %s offen%s lds" % (vX(jj), srd(sX), sCx(i // 2), off), ("it", i))
        elif i < 21:
            g.vmop("buffer_load_dwordx4 v%d, %s, %s offen%s lds" % (vW(jj), srd(sW), sCw(i // 2 if i < 14 else i - 14), off), ("it", i))
        else:
            g.vmop("buffer_load_dwordx4 v%d, %s, %s offen%s lds" % (vD(jj), srd(sWD), sDo, off), ("it", i))
        return n
    def can(): return st["np"] < len(allp) and allp[st["np"]][0] < st["allow"]
    def issue(n=1):
        k = 0
        for _ in range(n):
            if can(): k += one()
        return k
    def through(item):
        while st["np"] < len(allp) and allp[st["np"]][0] <= item: one()
    def mk_srd(d, b, n):
        e("s_mov_b32 s%d, s%d" % (d, b))
        e("s_and_b32 s%d, s%d, 0xffff" % (d + 1, b + 1))
        e("s_mov_b32 s%d, %d" % (d + 2, n))
        e("s_mov_b32 s%d, 0x20000" % (d + 3))
    def bases(vf, n):
        for j in range(n):
            e("v_add_u32 v%d, 0x10000, v%d" % (vf(j, 1), vf(j, 0)))
            e("v_add_u32 v%d, 0x20000, v%d" % (vf(j, 2), vf(j, 0)))

    SW, PW = 0, 1
    e("s_mul_i32 s59, s%d, %d" % (sMB, 14 * FS))
    e("s_lshl_b32 s61, s%d, 2" % sFB)
    e("s_add_u32 s59, s59, s61")
    e("s_add_u32 s59, s59, 0x%x" % FLAGOFF)
    e("v_lshl_add_u32 v%d, v0, 7, s59" % vFlag)
    e("v_mov_b32 v%d, 0" % vPol)
    def zero_flags():
        e("s_cmp_lg_u32 s%d, %d" % (sWV, SW))
        e("s_cbranch_scc1 L_noarm0")
        e("s_mov_b64 exec, 0x3fff")
        e("global_store_dword v%d, v%d, s[16:17] sc1" % (vFlag, vPol))
        e("global_store_dword v%d, v%d, s[16:17] offset:64 sc1" % (vFlag, vPol))
        e("s_mov_b64 exec, -1")
        g.label("L_noarm0")
        g.zf = len(g.vm)
    ZS = O("zs", 8)
    if ZS < 0: zero_flags()
    issue(O("pro", 10))
    for i in range(2, 7): table(i)
    e("s_lshl_b32 s%d, s51, 2" % sTB)
    e("s_add_u32 s%d, s%d, s53" % (sTB, sTB))
    e("s_mov_b32 s%d, s54" % sCB)
    mk_srd(sWD, 10, 1792 * 896); mk_srd(sH, 16, 2048 * 1792 * 2); mk_srd(sO, 12, 2048 * 896)
    e("s_mov_b32 s4, 0xbfb8aa3b"); e("s_mov_b32 s5, 0xbfb8aa3b"); e("s_mov_b32 s6, 1.0"); e("s_mov_b32 s7, 1.0")
    e("s_mul_i32 %s, s%d, %d" % (sDb, sWV, 16 * 896))
    e("s_lshl_b32 s57, s%d, 7" % sCB)
    e("s_add_u32 %s, %s, s57" % (sDb, sDb))
    e("v_lshlrev_b32 v%d, 6, v%d" % (t0, rh))
    e("v_xor_b32 v%d, v%d, v%d" % (t0, t0, p7))
    e("v_add_u32 v%d, v%d, v%d" % (vD(0), t1, t0))
    e("v_add_u32 v%d, %d, v%d" % (vD(1), 7168 - 1024, vD(0)))
    e("v_add_u32 v%d, %d, v%d" % (vD(2), 128 * 896 - 2048, vD(0)))
    e("v_add_u32 v%d, %d, v%d" % (vD(3), 128 * 896 - 2048, vD(1)))
    e("v_lshlrev_b32 v%d, 4, v0" % vL16)
    e("s_and_b32 s57, s%d, 1" % sWV)
    e("s_lshr_b32 s58, s%d, 1" % sWV)
    e("s_lshl_b32 s59, s%d, 2" % sMB)
    e("s_lshl_b32 s60, s57, 1")
    e("s_add_u32 s59, s59, s60")
    e("s_mul_i32 s59, s59, 112")
    e("s_lshl_b32 s60, s%d, 3" % sFB)
    e("s_add_u32 s59, s59, s60")
    e("s_lshl_b32 s60, s58, 1")
    e("s_add_u32 s59, s59, s60")
    e("s_lshl_b32 %s, s59, 10" % sHs)
    e("s_mul_i32 s59, s%d, 224" % sTB)
    e("s_add_u32 s59, s59, s%d" % sWV)
    e("s_lshl_b32 s59, s59, 10")
    e("s_mul_i32 s60, s57, %d" % (112 * 1024))
    e("s_xor_b32 s61, s60, %d" % (112 * 1024))
    e("s_add_u32 s60, s60, s59")
    e("s_add_u32 s61, s61, s59")
    e("v_add_u32 v%d, s60, v%d" % (vH(0, 0), vL16))
    e("v_add_u32 v%d, s61, v%d" % (vH(0, 1), vL16))
    e("v_add_u32 v%d, 4096, v%d" % (vH(1, 0), vH(0, 0)))
    e("v_add_u32 v%d, 4096, v%d" % (vH(1, 1), vH(0, 1)))
    e("s_mul_i32 s59, s51, 28")
    e("s_add_u32 s59, s59, s52")
    e("s_mul_i32 s59, s59, %d" % FS)
    e("s_add_u32 s59, s59, 0x%x" % FLAGOFF)
    e("v_min_u32 v%d, 13, v0" % vFlag2)
    e("v_lshl_add_u32 v%d, v%d, 2, s59" % (vFlag2, vFlag2))
    e("s_lshr_b32 s59, s%d, 1" % sTB)
    e("s_cmp_eq_u32 s%d, %d" % (sWV, SW))
    e("s_cselect_b32 s59, s%d, s59" % sMB)
    e("s_lshl_b32 s59, s59, 4")
    e("v_mov_b32 v%d, s59" % vArmA)
    tk, hi, sw, mt, rr, cc, a0 = T + 5, T + 6, T + 7, T + 8, T + 9, T + 10, T + 11
    e("v_and_b32 v%d, 31, v0" % tk)
    e("v_lshrrev_b32 v%d, 5, v0" % hi)
    e("v_bfe_u32 v%d, v0, 1, 3" % sw)
    e("v_xor_b32 v%d, v%d, v%d" % (sw, sw, hi))
    e("v_lshlrev_b32 v%d, 4, v%d" % (sw, sw))
    e("v_lshl_add_u32 v%d, v%d, 7, v%d" % (sw, tk, sw))
    e("s_lshl_b32 s59, s57, 13")
    e("v_add_u32 v%d, s59, v%d" % (sw, sw))
    for ks in range(4): e("v_xor_b32 v%d, %d, v%d" % (vXB(ks, 0), ks * 32, sw))
    bases(vXB, 4)
    e("v_bfe_u32 v%d, v0, 4, 1" % mt)
    e("v_bfe_u32 v%d, v0, 2, 2" % rr)
    e("v_and_b32 v%d, 3, v0" % cc)
    e("v_lshlrev_b32 v%d, 3, v%d" % (cc, cc))
    e("v_lshl_add_u32 v%d, v%d, 3, v%d" % (a0, hi, rr))
    e("v_lshl_add_u32 v%d, v%d, 7, v%d" % (a0, a0, cc))
    e("v_lshl_add_u32 v%d, v%d, 13, v%d" % (a0, mt, a0))
    e("v_lshrrev_b32 v%d, 1, v%d" % (t0, rr))
    e("v_lshl_or_b32 v%d, v%d, 1, v%d" % (t1, mt, t0))
    e("s_lshl_b32 s59, s58, 1")
    e("v_xor_b32 v%d, s59, v%d" % (t1, t1))
    e("v_lshl_add_u32 v%d, v%d, 5, v%d" % (vWA(0, 0), t1, a0))
    e("v_xor_b32 v%d, 32, v%d" % (vWA(1, 0), vWA(0, 0)))
    bases(vWA, 2)
    e("v_lshl_add_u32 v%d, v%d, 2, v%d" % (a0, hi, rr))
    e("v_lshl_add_u32 v%d, v%d, 7, v%d" % (a0, a0, cc))
    e("v_lshl_add_u32 v%d, v%d, 5, v%d" % (a0, mt, a0))
    e("v_lshl_add_u32 v%d, v%d, 6, v%d" % (a0, t0, a0))
    e("v_add_u32 v%d, %s, v%d" % (vDA(0, 0), sLB, a0))
    e("s_lshl_b32 s59, s58, 6")
    e("v_xor_b32 v%d, s59, v%d" % (vDA(0, 0), vDA(0, 0)))
    e("v_xor_b32 v%d, 64, v%d" % (vDA(1, 0), vDA(0, 0)))
    bases(vDA, 2)
    e("v_mul_u32_u24 v%d, 896, v%d" % (vOut, tk))
    e("v_lshl_add_u32 v%d, v%d, 4, v%d" % (vOut, hi, vOut))
    e("s_lshl_b32 s60, s%d, 1" % sTB)
    e("s_add_u32 s60, s60, s57")
    e("s_mul_i32 s60, s60, %d" % (32 * 896))
    e("s_add_u32 s60, s60, s59")
    e("s_lshl_b32 s59, s%d, 7" % sCB)
    e("s_add_u32 %s, s60, s59" % sOut)
    e("v_add_u32 v%d, %s, v%d" % (T + 12, sLB, vL16))
    for mm in (1, 2, 3): e("v_xor_b32 v%d, %d, v%d" % (T + 12 + mm, mm * 4096, T + 12))

    def lds_ref(vf, byte): return "v%d offset:%d" % (vf(byte >> 16), byte & 0xffff)
    def s1_reads(s):
        n, ks = s // 4, s % 4
        ph = 0 if n < 7 else 1
        wb = slot(2 * n + 1 if ph == 0 else n + 7)
        out = [lambda jf=jf, j2=j2: g.lgop("ds_read_b64_tr_b16 %s, %s" % (rng("v", vAbuf(s % 3, jf) + 2 * j2, 2), lds_ref(lambda b: vWA(jf, b), wb + ks * 2048 + j2 * 512)), ("rd", s))
               for jf in range(2) for j2 in range(2)]
        if ph == 0:
            for t in range(2):
                out.insert(2 + 3 * t, lambda t=t: g.lgop("ds_read_b128 %s, %s" % (rng("a", (s * 2 + t) * 4, 4), lds_ref(lambda b: vXB(ks, b), slot(2 * n) + t * 4096)), ("rd", s)))
        return out
    def epilogue_ops(ph, pk):
        ops = []
        for tile in range(4):
            jf, t = tile >> 1, tile & 1
            D = ACC[ph] + tile * 16
            def V(s, c=4): ops.append((c, lambda s=s: e(s)))
            if pk:
                for i in range(0, 8, 2): V("v_pk_mul_f32 %s, %s, s[4:5]" % (rng("v", D + i, 2), rng("v", D + i, 2)))
                for i in range(8): V("v_exp_f32 v%d, v%d" % (D + i, D + i), 8)
                for i in range(0, 8, 2): V("v_pk_add_f32 %s, %s, s[6:7]" % (rng("v", D + i, 2), rng("v", D + i, 2)))
                for i in range(8): V("v_rcp_f32 v%d, v%d" % (D + i, D + i), 8)
                for i in range(0, 8, 2): V("v_pk_mul_f32 %s, %s, %s" % (rng("v", D + i, 2), rng("v", D + i, 2), rng("v", D + 8 + i, 2)))
            else:
                for i in range(8): V("v_mul_f32 v%d, s4, v%d" % (D + i, D + i))
                for i in range(8):
                    V("v_exp_f32 v%d, v%d" % (D + i, D + i), 8)
                    if i >= 2: V("v_add_f32 v%d, 1.0, v%d" % (D + i - 2, D + i - 2))
                V("v_rcp_f32 v%d, v%d" % (D, D), 8)
                for i in (6, 7): V("v_add_f32 v%d, 1.0, v%d" % (D + i, D + i))
                for i in range(1, 8):
                    V("v_rcp_f32 v%d, v%d" % (D + i, D + i), 8)
                    V("v_mul_f32 v%d, v%d, v%d" % (D + i - 1, D + i - 1, D + 7 + i))
                V("v_cvt_pk_bf16_f32 v%d, v%d, v%d" % (D + 8, D, D + 1))
                V("v_mul_f32 v%d, v%d, v%d" % (D + 7, D + 7, D + 15))
            for i in range(0 if pk else 1, 4): V("v_cvt_pk_bf16_f32 v%d, v%d, v%d" % (D + 8 + i, D + 2 * i, D + 2 * i + 1))
            def stf(jf=jf, t=t, D=D):
                e(g.setoff(sHs, (t * 112 + 4 * ph + jf) * 1024))
                g.vmop("buffer_store_dwordx4 %s, v%d, %s, %s offen sc1" % (rng("v", D + 8, 4), vL16, srd(sH), sHs), ("hst", ph))
            ops.append((8, stf))
        return ops
    def only(w, nm):
        e("s_cmp_lg_u32 s%d, %d" % (sWV, w)); e("s_cbranch_scc1 %s" % nm)
    def signal(ph):
        only(SW, "L_nosig%d" % ph)
        e("v_mov_b32 v%d, 1" % vPol)
        e("s_mov_b64 exec, 0x3fff")
        e("global_store_dword v%d, v%d, s[16:17] offset:%d sc1" % (vFlag, vPol, 64 * ph))
        e("s_mov_b64 exec, -1")
        g.label("L_nosig%d" % ph)
    def poll_issue(ph):
        only(PW, "L_npi%d" % ph)
        if ph == 0:
            e("s_mov_b32 s61, 0")
            g.label("L_arm")
            e("v_readfirstlane_b32 s57, v%d" % vArm)
            e("s_addk_i32 s61, 1")
            e("s_cmp_ge_u32 s61, 0x40000")
            e("s_cbranch_scc1 L_armd")
            e("s_cmp_ge_u32 s57, 14")
            e("s_cbranch_scc1 L_armd")
            e("s_sleep 8")
            e("global_load_dword v%d, v%d, s[14:15] sc1" % (vArm, vArmA))
            e("s_waitcnt vmcnt(0)")
            e("s_branch L_arm")
            g.label("L_armd")
        e("global_load_dword v%d, v%d, s[16:17] offset:%d sc1" % (vPol, vFlag2, 64 * ph))
        g.label("L_npi%d" % ph)
        g.pi = len(g.vm)
    def gate(ph):
        only(PW, "L_pok%d" % ph)
        e("s_waitcnt vmcnt(%d)" % min(63, len(g.vm) - g.pi))
        e("s_mov_b32 s61, 0")
        g.label("L_poll%d" % ph)
        e("v_cmp_ne_u32 vcc, 1, v%d" % vPol)
        e("s_addk_i32 s61, 1")
        e("s_cmp_ge_u32 s61, 0x40000")
        e("s_cbranch_scc1 L_pok%d" % ph)
        e("s_cmp_eq_u64 vcc, 0")
        e("s_cbranch_scc1 L_pok%d" % ph)
        e("s_sleep %d" % O("slp", 2))
        e("global_load_dword v%d, v%d, s[16:17] offset:%d sc1" % (vPol, vFlag2, 64 * ph))
        e("s_waitcnt vmcnt(0)")
        e("s_branch L_poll%d" % ph)
        g.label("L_pok%d" % ph)
        e("s_barrier")

    issue(O("pro2", 8))
    g.wait(vm=("it", 1))
    e("s_barrier")
    stA(); stF(1)
    for s in (0, 1):
        for r in s1_reads(s): r()
    issue(O("pro3", 2))
    epq = []
    SIGB = O("sigb", 13); BUD = O("bud", 24); RB = O("rb", 1); ARMS = O("arms", 30)
    for s in range(56):
        n, ks = s // 4, s % 4
        ph = 0 if n < 7 else 1
        if s == 28: stA()
        if ks == 2 and n + 1 <= 13:
            nb = n + 1
            last = 2 * nb + 1 if nb < 7 else nb + 7
            through(last)
            need = [("it", last)]
            if nb == SIGB:
                while epq: epq.pop(0)[1]()
                need.append(("hst", 0))
            g.wait(vm=need, lg=("rd", s))
            e("s_barrier")
            if nb <= 10: stF(1)
            if nb >= 7: stF(2)
            if nb == SIGB: signal(0)
            if nb >= 2: st["allow"] += 2 if nb - 2 <= 6 else 1
        elif s == 55:
            g.wait(lg=0)
            e("s_barrier")
            st["allow"] += 2
        else:
            g.wait(lg=("rd", s))
        if s == ZS: zero_flags()
        if s == ARMS:
            only(SW, "L_noarm1")
            e("s_waitcnt vmcnt(%d)" % min(63, len(g.vm) - g.zf))
            e("v_mov_b32 v%d, 1" % vPol)
            e("s_mov_b64 exec, 1")
            e("global_atomic_add v%d, v%d, s[14:15] sc1" % (vArmA, vPol))
            e("s_mov_b64 exec, -1")
            g.label("L_noarm1")
        if s == O("arml", 44):
            only(PW, "L_nal")
            e("global_load_dword v%d, v%d, s[14:15] sc1" % (vArm, vArmA))
            g.label("L_nal")
            g.al = len(g.vm)
        if s == O("pis", 55):
            only(PW, "L_naw")
            e("s_waitcnt vmcnt(%d)" % (len(g.vm) - g.al))
            g.label("L_naw")
            poll_issue(0)
        if s == 29 and not O("epa"): epq = epilogue_ops(0, 0)
        if s == 28 and O("epa"):
            e("s_nop 8")
            for k, (c, f) in enumerate(epilogue_ops(0, 1)):
                if O("epa") == 1 or f.__name__ == "stf": f()
                if k % O("rea", 12) == 11: issue(1)
            stA()
        rds = s1_reads(s + 2) if s + 2 < 56 else []
        xs = s % 28
        rate = 2 if st["np"] < 21 * 4 else RB
        for m in range(4):
            jf, t = m >> 1, m & 1
            D = ACC[ph] + m * 16
            e("v_mfma_f32_32x32x16_bf16 %s, %s, %s, %s" % (rng("v", D, 16), rng("v", vAbuf(s % 3, jf), 4), rng("a", (xs * 2 + t) * 4, 4), "0" if xs == 0 else rng("v", D, 16)))
            budget = BUD - (4 if m == 3 else 0)
            for _ in range((len(rds) + (3 - m)) // (4 - m)): rds.pop(0)(); budget -= 4
            if (rate == 2 and (m & 1) == 0) or (rate == 1 and m == 1): budget -= 4 * issue(1)
            while epq and budget >= epq[0][0]:
                c, f = epq.pop(0); f(); budget -= c
    stA(); stF(2)
    def h_load(u):
        ph, kk = u // 14, u % 14
        e("s_mov_b32 %s, 0x%x" % (sH2, kk * 8192))
        for t in range(2):
            g.vmop("buffer_load_dwordx4 %s, v%d, %s, %s offen sc1" % (rng("a", (u * 2 + t) * 4, 4), vH(ph, t), srd(sH), sH2), ("hl", u))
    s2_item = lambda u: 21 + u // 2
    def s2_reads(u):
        base = slot(s2_item(u)) + (u & 1) * 2048
        return [lambda c=c, j2=j2: g.lgop("ds_read_b64_tr_b16 %s, %s" % (rng("v", vAbuf(u % 3, c) + 2 * j2, 2), lds_ref(lambda b: vDA(c, b), base + j2 * 1024)), ("r2", u))
                for c in range(2) for j2 in range(2)]
    HD = O("hd", 6); SGU = O("sgu", -1); PI1 = O("pi1", 8); G1 = O("g1", 12)
    hn = 0; lim = 14
    GA = O("ga", 66)
    e("s_nop 8")
    ep = epilogue_ops(1, O("pkb", 1))
    for cnt, (c, f) in enumerate(ep + [(0, lambda: None)]):
        if cnt == min(GA, len(ep)):
            stA(); gate(0); stA()
            through(22)
            for _ in range(O("h0", 3)): h_load(hn); hn += 1
        f()
        if cnt % O("re", 16) == 5:
            if cnt > GA and hn < HD: h_load(hn); hn += 1
            else: issue(1)
    stA(); stF(2)
    while hn < HD: h_load(hn); hn += 1
    if SGU < 0:
        g.wait(vm=[("it", 21), ("hst", 1)])
        e("s_barrier")
        signal(1)
        stA()
    else: g.wait(vm=("it", 21))
    for u in (0, 1):
        for r in s2_reads(u): r()
    A2 = ACC[0]
    for u in range(28):
        if u == PI1: poll_issue(1)
        if u == G1:
            issue(100)
            stA(); stF(3)
            gate(1)
            stA(); stF(3)
            lim = 28
            while hn < u + HD: h_load(hn); hn += 1
        need = [("hl", u)]
        if u + 2 < 28:
            through(s2_item(u + 2))
            need.append(("it", s2_item(u + 2)))
        if u == SGU: need.append(("hst", 1))
        g.wait(vm=need, lg=("r2", u))
        if u % 3 == 0: stF(3)
        if u == SGU:
            e("s_barrier")
            signal(1)
            stA()
        if (u & 1) == 1: st["allow"] = max(st["allow"], s2_item(u) + NS + 1)
        rds = s2_reads(u + 2) if u + 2 < 28 else []
        for mi, m in enumerate((1, 2, 3, 0) if u == 27 else (0, 1, 2, 3)):
            c, t = m >> 1, m & 1
            D = A2 + m * 16
            e("v_mfma_f32_32x32x16_bf16 %s, %s, %s, %s" % (rng("v", D, 16), rng("v", vAbuf(u % 3, c), 4), rng("a", (u * 2 + t) * 4, 4), "0" if u == 0 else rng("v", D, 16)))
            if rds: rds.pop(0)()
            room = 2 * HD - g._n(g.vm, ("hl", u))
            if room >= 2 and hn < lim and (allp[min(st["np"], len(allp) - 1)][0] > s2_item(min(hn, 27)) or not can()): h_load(hn); hn += 1
            elif room >= 1: issue(1)
    assert st["np"] == len(allp) and hn == 28
    stA()
    e("s_nop 8")
    RW = T + 12
    for m in (1, 2, 3):
        for q in range(4):
            e("ds_write_b128 v%d, %s offset:%d" % (RW, rng("v", A2 + m * 16 + 4 * q, 4), m * 16384 + q * 1024))
    e("s_waitcnt lgkmcnt(0)")
    e("s_barrier")
    R = A2
    for m in (1, 2, 3):
        for q in range(4):
            e("ds_read_b128 %s, v%d offset:%d" % (rng("v", R + m * 16 + q * 4, 4), RW + m, m * 16384 + q * 1024))
    for m in (1, 2, 3):
        e("s_waitcnt lgkmcnt(%d)" % (12 - 4 * m))
        for i in range(0, 16, 2): e("v_pk_add_f32 %s, %s, %s" % (rng("v", R + i, 2), rng("v", R + i, 2), rng("v", R + 16 * m + i, 2)))
    for i in range(8): e("v_cvt_pk_bf16_f32 v%d, v%d, v%d" % (R + 16 + i, R + 2 * i, R + 2 * i + 1))
    e("s_nop 1")
    for pr in range(2):
        e("v_permlane32_swap_b32 v%d, v%d" % (R + 16 + 4 * pr, R + 18 + 4 * pr))
        e("v_permlane32_swap_b32 v%d, v%d" % (R + 17 + 4 * pr, R + 19 + 4 * pr))
    e("buffer_store_dwordx4 %s, v%d, %s, %s offen" % (rng("v", R + 16, 4), vOut, srd(sO), sOut))
    e("buffer_store_dwordx4 %s, v%d, %s, %s offen offset:32" % (rng("v", R + 20, 4), vOut, srd(sO), sOut))
    if stamps:
        e("s_waitcnt vmcnt(0)")
        stA()
        e("s_waitcnt lgkmcnt(0)")
        e("s_add_u32 s16, s16, 0x8000000")
        e("s_addc_u32 s17, s17, 0")
        e("s_lshl_b32 s57, s2, 2")
        e("s_add_u32 s57, s57, s%d" % sWV)
        e("s_lshl_b32 s57, s57, 7")
        e("v_mov_b32 v1, s57")
        e("s_mov_b64 exec, 1")
        for j in range(g.nst):
            e("v_mov_b32 v2, s%d" % (SB + 2 * j))
            e("v_mov_b32 v3, s%d" % (SB + 1 + 2 * j))
            e("global_store_dwordx2 v1, v[2:3], s[16:17] offset:%d" % (8 * j))
            e("s_nop 1")
    e("s_endpgm")
    HELP = O("help", 7)
    g.label("L_help2")
    e("s_sub_u32 s40, s2, 224")
    e("s_and_b32 s41, s40, 7")
    e("s_lshr_b32 s42, s40, 3")
    e("s_lshr_b32 s43, s41, 1")
    e("s_lshl_b32 s43, s43, 2")
    e("s_add_u32 s43, s43, s42")
    e("s_mul_i32 s44, s43, %d" % (28 * 3584))
    e("s_and_b32 s45, s41, 1")
    e("s_mul_i32 s45, s45, %d" % (7 * 256))
    e("s_add_u32 s44, s44, s45")
    e("s_addk_i32 s44, 128")
    e("v_mul_u32_u24 v1, 9363, v0")
    e("v_lshrrev_b32 v1, 16, v1")
    e("v_mul_u32_u24 v2, 7, v1")
    e("v_sub_u32 v2, v0, v2")
    e("v_mul_u32_u24 v1, 3584, v1")
    e("v_lshl_add_u32 v1, v2, 8, v1")
    e("v_mov_b32 v3, 0x7fffffff")
    e("v_cmp_gt_u32 vcc, 196, v0")
    e("v_lshlrev_b32 v4, 7, v0")
    e("s_lshl_b32 s46, s41, 2")
    e("v_cndmask_b32 v1, v3, v1, vcc")
    e("v_cndmask_b32 v5, v3, v4, vcc")
    e("v_cmp_gt_u32 vcc, 224, v0")
    e("s_add_u32 s46, s46, s42")
    e("s_mul_i32 s46, s46, %d" % (392 * 128))
    e("v_cndmask_b32 v6, v3, v4, vcc")
    e("s_waitcnt lgkmcnt(0)")
    mk_srd(20, 6, 448 * 3584); mk_srd(24, 8, 448 * 3584); mk_srd(28, 10, 1792 * 896)
    if O("hdel", 1): e("s_waitcnt vmcnt(0)"); e("s_barrier")
    if HELP & 1:
        e("buffer_load_dword v8, v1, s[20:23], s44 offen")
        e("buffer_load_dword v9, v1, s[24:27], s44 offen")
    if HELP & 2:
        e("buffer_load_dword v10, v5, s[28:31], s46 offen")
        e("s_add_u32 s46, s46, %d" % (196 * 128))
        e("buffer_load_dword v11, v5, s[28:31], s46 offen")
    if HELP & 4:
        e("s_mul_i32 s46, s42, %d" % (128 * 896))
        e("s_mov_b32 s48, s42")
        e("s_waitcnt vmcnt(0)"); e("s_barrier")
        g.label("L_hl")
        e("buffer_load_dword v12, v6, s[28:31], s46 offen")
        e("s_add_u32 s47, s46, %d" % (224 * 128))
        e("buffer_load_dword v13, v6, s[28:31], s47 offen")
        e("s_add_u32 s46, s46, %d" % (4 * 128 * 896))
        e("s_cmp_ge_u32 s46, %d" % (1792 * 896))
        e("s_cselect_b32 s47, %d, 0" % (1792 * 896 - 64 * 896))
        e("s_sub_u32 s46, s46, s47")
        e("s_addk_i32 s48, 4")
        e("s_cmp_lt_u32 s48, 28")
        e("s_cbranch_scc1 L_hl")
    e("s_waitcnt vmcnt(0)")
    g.label("L_end2")
    e("s_endpgm")
    check_hazards(g.L)
    return g.L

def emit(L, path):
    import subprocess, re
    body = "\n".join(l if l.endswith(":") else "    " + l for l in L) + "\n"
    src = HEADER + "; @launch grid=(256,1,1) block=(256,1,1) lds=163840\n"
    src += '.amdgcn_target "amdgcn-amd-amdhsa--gfx950"\n.text\n' + kernel_begin(KN) + body
    src += '.section .rodata,"a"\n.p2align 6\n' + kd(KN, 512, 102, 256)
    open("_sz.s", "w").write(src.replace("@NLINES@", "100"))
    subprocess.run(["clang", "-x", "assembler", "-target", "amdgcn-amd-amdhsa", "-mcpu=gfx950", "-c", "_sz.s", "-o", "_sz.o"], check=True)
    o = subprocess.run(["llvm-objdump", "-h", "_sz.o"], capture_output=True, text=True).stdout
    sz = int(re.search(r"\.text\s+([0-9a-f]+)", o).group(1), 16)
    print(path, "code bytes", sz)
    open(path, "w").write(src.replace("@NLINES@", str((sz - 128) // 128)))

if __name__ == "__main__":
    out = sys.argv[1]
    stamps = 1 if "--stamps" in sys.argv else (2 if "--cyc" in sys.argv else 0)
    opt = {}
    for a in sys.argv[2:]:
        if a.startswith("-o"):
            k, _, v = a[2:].partition("=")
            opt[k] = int(v) if v else 1
    emit(build(stamps, opt), out)
```

```python
import sys
from asmlib import *
from hazard import check_hazards
from gen import Gen, rng

NS = 10
FLAGOFF = 8 << 20
FS = 128
def slot(i): return (i % NS) * 16384

def build(stamps=False, opt=None):
    opt = opt or {}
    O = lambda k, d=0: opt.get(k, d)
    g = Gen(stamps); e = g.e
    SB = 78
    def stamp():
        if stamps:
            r = SB + 2 * g.nst
            assert r + 1 < 102
            e("%s s[%d:%d]" % ("s_memtime" if stamps == 2 else "s_memrealtime", r, r + 1)); g.nst += 1
    FINE = O("fine")
    stA = (lambda: None) if FINE else stamp
    stF = lambda k: stamp() if FINE == k else None
    srd = lambda b: rng("s", b, 4)
    sX, sW, sWD, sH, sO = 20, 24, 28, 32, 36
    sMB, sFB, sWV, sTB, sCB = 40, 41, 42, 43, 44
    sDo, sLB, sHs, sDb, sDb2, sH2, sOut = "s45", "s46", "s47", "s48", "s49", "s50", "s8"
    sCx = lambda i: "s%d" % (64 + i)
    sCw = lambda i: "s%d" % (71 + i)
    vX = lambda j: 2 + j
    vW = lambda j: 6 + j
    vXB = lambda ks, b: 10 + b * 4 + ks
    vWA = lambda jf, b: 22 + b * 2 + jf
    vDA = lambda c, b: 28 + b * 2 + c
    vL16, vFlag = 34, 35
    vAbuf = lambda buf, j: 36 + buf * 8 + j * 4
    vH = lambda ph, t: 60 + ph * 2 + t
    ACC = [64, 128]
    vD = lambda j: 192 + j
    vFlag2, vArmA, vArm, vOut, vPol = 196, 197, 198, 199, 200
    T = 204

    stamp()
    e("s_load_dwordx8 s[4:11], s[0:1], 0")
    e("s_load_dwordx4 s[12:15], s[0:1], 32")
    e("s_load_dwordx2 s[16:17], s[0:1], 48")
    e("s_cmp_ge_u32 s2, 224")
    e("s_cbranch_scc0 L_main")
    e("s_cmp_ge_u32 s2, 256")
    e("s_cbranch_scc1 L_end2")
    e("s_getpc_b64 s[30:31]")
    e("v_lshlrev_b32 v4, 7, v0")
    e("v_cmp_gt_u32 vcc, @NLINES@, v0")
    e("s_and_saveexec_b64 s[32:33], vcc")
    e("s_cbranch_execz L_ncp")
    e("global_load_dword v7, v4, s[30:31]")
    g.label("L_ncp")
    e("s_mov_b64 exec, -1")
    e("s_branch L_help2")
    g.label("L_main")
    e("v_lshrrev_b32 v%d, 6, v0" % T)
    e("v_and_b32 v0, 63, v0")
    e("v_readfirstlane_b32 s%d, v%d" % (sWV, T))
    e("s_and_b32 s51, s2, 7")
    e("s_lshr_b32 s52, s2, 3")
    e("s_mul_i32 s53, s52, 37")
    e("s_lshr_b32 s53, s53, 8")
    e("s_mul_i32 s54, s53, 7")
    e("s_sub_u32 s54, s52, s54")
    e("s_lshr_b32 s55, s51, 1")
    e("s_lshl_b32 s%d, s55, 2" % sMB)
    e("s_add_u32 s%d, s%d, s53" % (sMB, sMB))
    e("s_and_b32 s56, s51, 1")
    e("s_mul_i32 s%d, s56, 7" % sFB)
    e("s_add_u32 s%d, s%d, s54" % (sFB, sFB))
    e("s_lshl_b32 s56, s53, 1")
    e("s_add_u32 s56, s56, s54")
    e("s_add_u32 s56, s56, s55")
    e("s_mul_i32 s57, s56, 37")
    e("s_lshr_b32 s57, s57, 8")
    e("s_mul_i32 s57, s57, 7")
    e("s_sub_u32 s3, s56, s57")
    r8, p7, rh, t0, t1 = T, T + 1, T + 2, T + 3, T + 4
    e("v_lshrrev_b32 v%d, 3, v0" % r8)
    e("v_and_b32 v%d, 7, v0" % p7)
    e("v_lshrrev_b32 v%d, 1, v%d" % (rh, r8))
    e("v_xor_b32 v%d, v%d, v%d" % (t0, p7, rh))
    e("v_lshlrev_b32 v%d, 4, v%d" % (t0, t0))
    e("v_mul_u32_u24 v%d, 896, v%d" % (t1, r8))
    e("v_add_u32 v%d, v%d, v%d" % (vX(0), t1, t0))
    e("v_xor_b32 v%d, 64, v%d" % (t0, t0))
    e("s_movk_i32 s57, %d" % (7168 - 1024))
    e("v_add3_u32 v%d, v%d, v%d, s57" % (vX(1), t1, t0))
    e("v_add_u32 v%d, %d, v%d" % (vX(2), 2 * (7168 - 1024), vX(0)))
    e("v_add_u32 v%d, %d, v%d" % (vX(3), 2 * (7168 - 1024), vX(1)))
    e("s_lshr_b32 s55, s%d, 1" % sWV)
    e("s_lshl_b32 s57, s55, 6")
    e("v_and_b32 v%d, 1, v%d" % (rh, rh))
    e("v_lshlrev_b32 v%d, 5, v%d" % (t0, rh))
    e("v_or_b32 v%d, s57, v%d" % (t0, t0))
    e("v_lshlrev_b32 v%d, 4, v%d" % (p7, p7))
    e("v_xor_b32 v%d, v%d, v%d" % (t0, t0, p7))
    e("v_mul_u32_u24 v%d, 3584, v%d" % (vW(0), r8))
    e("v_add_u32 v%d, v%d, v%d" % (vW(0), vW(0), t0))
    for j in range(1, 4): e("v_add_u32 v%d, %d, v%d" % (vW(j), j * (28672 - 1024), vW(0)))
    e("s_mul_i32 s18, s%d, %d" % (sMB, 128 * 896))
    e("s_mul_i32 s57, s%d, %d" % (sWV, 32 * 896))
    e("s_add_u32 s18, s18, s57")
    e("s_and_b32 s57, s%d, 1" % sWV)
    e("s_mul_i32 s19, s57, %d" % (32 * 3584))
    e("s_lshl_b32 s58, s%d, 8" % sFB)
    e("s_add_u32 s19, s19, s58")
    e("s_lshl_b32 %s, s%d, 12" % (sLB, sWV))
    def table(i):
        e("s_lshl_b32 s57, s3, 7")
        e("s_add_u32 %s, s57, s18" % sCx(i))
        e("s_mul_i32 s57, s3, %d" % (64 * 3584))
        e("s_add_u32 %s, s57, s19" % sCw(i))
        e("s_add_u32 s3, s3, 1")
        e("s_cmp_eq_u32 s3, 7")
        e("s_cselect_b32 s3, 0, s3")
    table(0); table(1)
    e("s_mov_b32 s%d, %d" % (sX + 2, 2048 * 896))
    e("s_mov_b32 s%d, 0x20000" % (sX + 3))
    e("s_mov_b32 s%d, %d" % (sW + 2, 448 * 3584))
    e("s_mov_b32 s%d, 0x20000" % (sW + 3))
    e("s_waitcnt lgkmcnt(0)")
    e("s_mov_b32 s%d, s4" % sX)
    e("s_and_b32 s%d, s5, 0xffff" % (sX + 1))
    e("s_cmp_eq_u32 s55, 0")
    e("s_cselect_b32 s%d, s6, s8" % sW)
    e("s_cselect_b32 s%d, s7, s9" % (sW + 1))
    e("s_and_b32 s%d, s%d, 0xffff" % (sW + 1, sW + 1))
    g.cur[sHs] = 0

    allp = [(i, jj) for i in range(35) for jj in range(4)]
    st = {"np": 0, "allow": NS}
    def one():
        i, jj = allp[st["np"]]; st["np"] += 1
        assert i < st["allow"]
        off = " offset:%d" % (jj * 1024) if jj else ""
        n = 1
        if jj == 0:
            e("s_add_u32 m0, %s, 0x%x" % (sLB, slot(i))); n += 2
            if i == 14:
                for j in range(4): e("v_add_u32 v%d, 128, v%d" % (vW(j), vW(j)))
            elif i >= 21:
                c, ph = (i - 21) % 7, (i - 21) // 7
                e("s_add_u32 %s, %s, 0x%x" % (sDo, sDb, (256 * c + 64 * ph) * 896))
            else: e("s_nop 0")
        if i < 14 and i % 2 == 0:
            g.vmop("buffer_load_dwordx4 v%d, %s, %s offen%s lds" % (vX(jj), srd(sX), sCx(i // 2), off), ("it", i))
        elif i < 21:
            g.vmop("buffer_load_dwordx4 v%d, %s, %s offen%s lds" % (vW(jj), srd(sW), sCw(i // 2 if i < 14 else i - 14), off), ("it", i))
        else:
            g.vmop("buffer_load_dwordx4 v%d, %s, %s offen%s lds" % (vD(jj), srd(sWD), sDo, off), ("it", i))
        return n
    def can(): return st["np"] < len(allp) and allp[st["np"]][0] < st["allow"]
    def issue(n=1):
        k = 0
        for _ in range(n):
            if can(): k += one()
        return k
    def through(item):
        while st["np"] < len(allp) and allp[st["np"]][0] <= item: one()
    def mk_srd(d, b, n):
        e("s_mov_b32 s%d, s%d" % (d, b))
        e("s_and_b32 s%d, s%d, 0xffff" % (d + 1, b + 1))
        e("s_mov_b32 s%d, %d" % (d + 2, n))
        e("s_mov_b32 s%d, 0x20000" % (d + 3))
    def bases(vf, n):
        for j in range(n):
            e("v_add_u32 v%d, 0x10000, v%d" % (vf(j, 1), vf(j, 0)))
            e("v_add_u32 v%d, 0x20000, v%d" % (vf(j, 2), vf(j, 0)))

    SW, PW = 0, 1
    e("s_mul_i32 s59, s%d, %d" % (sMB, 14 * FS))
    e("s_lshl_b32 s61, s%d, 2" % sFB)
    e("s_add_u32 s59, s59, s61")
    e("s_add_u32 s59, s59, 0x%x" % FLAGOFF)
    e("v_lshl_add_u32 v%d, v0, 7, s59" % vFlag)
    e("v_mov_b32 v%d, 0" % vPol)
    def zero_flags():
        e("s_cmp_lg_u32 s%d, %d" % (sWV, SW))
        e("s_cbranch_scc1 L_noarm0")
        e("s_mov_b64 exec, 0x3fff")
        e("global_store_dword v%d, v%d, s[16:17] sc1" % (vFlag, vPol))
        e("global_store_dword v%d, v%d, s[16:17] offset:64 sc1" % (vFlag, vPol))
        e("s_mov_b64 exec, -1")
        g.label("L_noarm0")
        g.zf = len(g.vm)
    ZS = O("zs", 8)
    if ZS < 0: zero_flags()
    issue(O("pro", 10))
    for i in range(2, 7): table(i)
    e("s_lshl_b32 s%d, s51, 2" % sTB)
    e("s_add_u32 s%d, s%d, s53" % (sTB, sTB))
    e("s_mov_b32 s%d, s54" % sCB)
    mk_srd(sWD, 10, 1792 * 896); mk_srd(sH, 16, 2048 * 1792 * 2); mk_srd(sO, 12, 2048 * 896)
    e("s_mov_b32 s4, 0xbfb8aa3b"); e("s_mov_b32 s5, 0xbfb8aa3b"); e("s_mov_b32 s6, 1.0"); e("s_mov_b32 s7, 1.0")
    e("s_mul_i32 %s, s%d, %d" % (sDb, sWV, 16 * 896))
    e("s_lshl_b32 s57, s%d, 7" % sCB)
    e("s_add_u32 %s, %s, s57" % (sDb, sDb))
    e("v_lshlrev_b32 v%d, 6, v%d" % (t0, rh))
    e("v_xor_b32 v%d, v%d, v%d" % (t0, t0, p7))
    e("v_add_u32 v%d, v%d, v%d" % (vD(0), t1, t0))
    e("v_add_u32 v%d, %d, v%d" % (vD(1), 7168 - 1024, vD(0)))
    e("v_add_u32 v%d, %d, v%d" % (vD(2), 128 * 896 - 2048, vD(0)))
    e("v_add_u32 v%d, %d, v%d" % (vD(3), 128 * 896 - 2048, vD(1)))
    e("v_lshlrev_b32 v%d, 4, v0" % vL16)
    e("s_and_b32 s57, s%d, 1" % sWV)
    e("s_lshr_b32 s58, s%d, 1" % sWV)
    e("s_lshl_b32 s59, s%d, 2" % sMB)
    e("s_lshl_b32 s60, s57, 1")
    e("s_add_u32 s59, s59, s60")
    e("s_mul_i32 s59, s59, 112")
    e("s_lshl_b32 s60, s%d, 3" % sFB)
    e("s_add_u32 s59, s59, s60")
    e("s_lshl_b32 s60, s58, 1")
    e("s_add_u32 s59, s59, s60")
    e("s_lshl_b32 %s, s59, 10" % sHs)
    e("s_mul_i32 s59, s%d, 224" % sTB)
    e("s_add_u32 s59, s59, s%d" % sWV)
    e("s_lshl_b32 s59, s59, 10")
    e("s_mul_i32 s60, s57, %d" % (112 * 1024))
    e("s_xor_b32 s61, s60, %d" % (112 * 1024))
    e("s_add_u32 s60, s60, s59")
    e("s_add_u32 s61, s61, s59")
    e("v_add_u32 v%d, s60, v%d" % (vH(0, 0), vL16))
    e("v_add_u32 v%d, s61, v%d" % (vH(0, 1), vL16))
    e("v_add_u32 v%d, 4096, v%d" % (vH(1, 0), vH(0, 0)))
    e("v_add_u32 v%d, 4096, v%d" % (vH(1, 1), vH(0, 1)))
    e("s_mul_i32 s59, s51, 28")
    e("s_add_u32 s59, s59, s52")
    e("s_mul_i32 s59, s59, %d" % FS)
    e("s_add_u32 s59, s59, 0x%x" % FLAGOFF)
    e("v_min_u32 v%d, 13, v0" % vFlag2)
    e("v_lshl_add_u32 v%d, v%d, 2, s59" % (vFlag2, vFlag2))
    e("s_lshr_b32 s59, s%d, 1" % sTB)
    e("s_cmp_eq_u32 s%d, %d" % (sWV, SW))
    e("s_cselect_b32 s59, s%d, s59" % sMB)
    e("s_lshl_b32 s59, s59, 4")
    e("v_mov_b32 v%d, s59" % vArmA)
    tk, hi, sw, mt, rr, cc, a0 = T + 5, T + 6, T + 7, T + 8, T + 9, T + 10, T + 11
    e("v_and_b32 v%d, 31, v0" % tk)
    e("v_lshrrev_b32 v%d, 5, v0" % hi)
    e("v_bfe_u32 v%d, v0, 1, 3" % sw)
    e("v_xor_b32 v%d, v%d, v%d" % (sw, sw, hi))
    e("v_lshlrev_b32 v%d, 4, v%d" % (sw, sw))
    e("v_lshl_add_u32 v%d, v%d, 7, v%d" % (sw, tk, sw))
    e("s_lshl_b32 s59, s57, 13")
    e("v_add_u32 v%d, s59, v%d" % (sw, sw))
    for ks in range(4): e("v_xor_b32 v%d, %d, v%d" % (vXB(ks, 0), ks * 32, sw))
    bases(vXB, 4)
    e("v_bfe_u32 v%d, v0, 4, 1" % mt)
    e("v_bfe_u32 v%d, v0, 2, 2" % rr)
    e("v_and_b32 v%d, 3, v0" % cc)
    e("v_lshlrev_b32 v%d, 3, v%d" % (cc, cc))
    e("v_lshl_add_u32 v%d, v%d, 3, v%d" % (a0, hi, rr))
    e("v_lshl_add_u32 v%d, v%d, 7, v%d" % (a0, a0, cc))
    e("v_lshl_add_u32 v%d, v%d, 13, v%d" % (a0, mt, a0))
    e("v_lshrrev_b32 v%d, 1, v%d" % (t0, rr))
    e("v_lshl_or_b32 v%d, v%d, 1, v%d" % (t1, mt, t0))
    e("s_lshl_b32 s59, s58, 1")
    e("v_xor_b32 v%d, s59, v%d" % (t1, t1))
    e("v_lshl_add_u32 v%d, v%d, 5, v%d" % (vWA(0, 0), t1, a0))
    e("v_xor_b32 v%d, 32, v%d" % (vWA(1, 0), vWA(0, 0)))
    bases(vWA, 2)
    e("v_lshl_add_u32 v%d, v%d, 2, v%d" % (a0, hi, rr))
    e("v_lshl_add_u32 v%d, v%d, 7, v%d" % (a0, a0, cc))
    e("v_lshl_add_u32 v%d, v%d, 5, v%d" % (a0, mt, a0))
    e("v_lshl_add_u32 v%d, v%d, 6, v%d" % (a0, t0, a0))
    e("v_add_u32 v%d, %s, v%d" % (vDA(0, 0), sLB, a0))
    e("s_lshl_b32 s59, s58, 6")
    e("v_xor_b32 v%d, s59, v%d" % (vDA(0, 0), vDA(0, 0)))
    e("v_xor_b32 v%d, 64, v%d" % (vDA(1, 0), vDA(0, 0)))
    bases(vDA, 2)
    e("v_mul_u32_u24 v%d, 896, v%d" % (vOut, tk))
    e("v_lshl_add_u32 v%d, v%d, 4, v%d" % (vOut, hi, vOut))
    e("s_lshl_b32 s60, s%d, 1" % sTB)
    e("s_add_u32 s60, s60, s57")
    e("s_mul_i32 s60, s60, %d" % (32 * 896))
    e("s_add_u32 s60, s60, s59")
    e("s_lshl_b32 s59, s%d, 7" % sCB)
    e("s_add_u32 %s, s60, s59" % sOut)
    e("v_add_u32 v%d, %s, v%d" % (T + 12, sLB, vL16))
    for mm in (1, 2, 3): e("v_xor_b32 v%d, %d, v%d" % (T + 12 + mm, mm * 4096, T + 12))

    def lds_ref(vf, byte): return "v%d offset:%d" % (vf(byte >> 16), byte & 0xffff)
    def s1_reads(s):
        n, ks = s // 4, s % 4
        ph = 0 if n < 7 else 1
        wb = slot(2 * n + 1 if ph == 0 else n + 7)
        out = [lambda jf=jf, j2=j2: g.lgop("ds_read_b64_tr_b16 %s, %s" % (rng("v", vAbuf(s % 3, jf) + 2 * j2, 2), lds_ref(lambda b: vWA(jf, b), wb + ks * 2048 + j2 * 512)), ("rd", s))
               for jf in range(2) for j2 in range(2)]
        if ph == 0:
            for t in range(2):
                out.insert(2 + 3 * t, lambda t=t: g.lgop("ds_read_b128 %s, %s" % (rng("a", (s * 2 + t) * 4, 4), lds_ref(lambda b: vXB(ks, b), slot(2 * n) + t * 4096)), ("rd", s)))
        return out
    def epilogue_ops(ph, pk):
        ops = []
        for tile in range(4):
            jf, t = tile >> 1, tile & 1
            D = ACC[ph] + tile * 16
            def V(s, c=4): ops.append((c, lambda s=s: e(s)))
            if pk:
                for i in range(0, 8, 2): V("v_pk_mul_f32 %s, %s, s[4:5]" % (rng("v", D + i, 2), rng("v", D + i, 2)))
                for i in range(8): V("v_exp_f32 v%d, v%d" % (D + i, D + i), 8)
                for i in range(0, 8, 2): V("v_pk_add_f32 %s, %s, s[6:7]" % (rng("v", D + i, 2), rng("v", D + i, 2)))
                for i in range(8): V("v_rcp_f32 v%d, v%d" % (D + i, D + i), 8)
                for i in range(0, 8, 2): V("v_pk_mul_f32 %s, %s, %s" % (rng("v", D + i, 2), rng("v", D + i, 2), rng("v", D + 8 + i, 2)))
            else:
                for i in range(8): V("v_mul_f32 v%d, s4, v%d" % (D + i, D + i))
                for i in range(8):
                    V("v_exp_f32 v%d, v%d" % (D + i, D + i), 8)
                    if i >= 2: V("v_add_f32 v%d, 1.0, v%d" % (D + i - 2, D + i - 2))
                V("v_rcp_f32 v%d, v%d" % (D, D), 8)
                for i in (6, 7): V("v_add_f32 v%d, 1.0, v%d" % (D + i, D + i))
                for i in range(1, 8):
                    V("v_rcp_f32 v%d, v%d" % (D + i, D + i), 8)
                    V("v_mul_f32 v%d, v%d, v%d" % (D + i - 1, D + i - 1, D + 7 + i))
                V("v_cvt_pk_bf16_f32 v%d, v%d, v%d" % (D + 8, D, D + 1))
                V("v_mul_f32 v%d, v%d, v%d" % (D + 7, D + 7, D + 15))
            for i in range(0 if pk else 1, 4): V("v_cvt_pk_bf16_f32 v%d, v%d, v%d" % (D + 8 + i, D + 2 * i, D + 2 * i + 1))
            def stf(jf=jf, t=t, D=D):
                e(g.setoff(sHs, (t * 112 + 4 * ph + jf) * 1024))
                g.vmop("buffer_store_dwordx4 %s, v%d, %s, %s offen sc1" % (rng("v", D + 8, 4), vL16, srd(sH), sHs), ("hst", ph))
            ops.append((8, stf))
        return ops
    def only(w, nm):
        e("s_cmp_lg_u32 s%d, %d" % (sWV, w)); e("s_cbranch_scc1 %s" % nm)
    def signal(ph):
        only(SW, "L_nosig%d" % ph)
        e("v_mov_b32 v%d, 1" % vPol)
        e("s_mov_b64 exec, 0x3fff")
        e("global_store_dword v%d, v%d, s[16:17] offset:%d sc1" % (vFlag, vPol, 64 * ph))
        e("s_mov_b64 exec, -1")
        g.label("L_nosig%d" % ph)
    def poll_issue(ph):
        only(PW, "L_npi%d" % ph)
        if ph == 0:
            e("s_mov_b32 s61, 0")
            g.label("L_arm")
            e("v_readfirstlane_b32 s57, v%d" % vArm)
            e("s_addk_i32 s61, 1")
            e("s_cmp_ge_u32 s61, 0x40000")
            e("s_cbranch_scc1 L_armd")
            e("s_cmp_ge_u32 s57, 14")
            e("s_cbranch_scc1 L_armd")
            e("s_sleep 8")
            e("global_load_dword v%d, v%d, s[14:15] sc1" % (vArm, vArmA))
            e("s_waitcnt vmcnt(0)")
            e("s_branch L_arm")
            g.label("L_armd")
        e("global_load_dword v%d, v%d, s[16:17] offset:%d sc1" % (vPol, vFlag2, 64 * ph))
        g.label("L_npi%d" % ph)
        g.pi = len(g.vm)
    def gate(ph):
        only(PW, "L_pok%d" % ph)
        e("s_waitcnt vmcnt(%d)" % min(63, len(g.vm) - g.pi))
        e("s_mov_b32 s61, 0")
        g.label("L_poll%d" % ph)
        e("v_cmp_ne_u32 vcc, 1, v%d" % vPol)
        e("s_addk_i32 s61, 1")
        e("s_cmp_ge_u32 s61, 0x40000")
        e("s_cbranch_scc1 L_pok%d" % ph)
        e("s_cmp_eq_u64 vcc, 0")
        e("s_cbranch_scc1 L_pok%d" % ph)
        e("s_sleep %d" % O("slp", 2))
        e("global_load_dword v%d, v%d, s[16:17] offset:%d sc1" % (vPol, vFlag2, 64 * ph))
        e("s_waitcnt vmcnt(0)")
        e("s_branch L_poll%d" % ph)
        g.label("L_pok%d" % ph)
        e("s_barrier")

    issue(O("pro2", 8))
    g.wait(vm=("it", 1))
    e("s_barrier")
    stA(); stF(1)
    for s in (0, 1):
        for r in s1_reads(s): r()
    issue(O("pro3", 2))
    epq = []
    SIGB = O("sigb", 13); BUD = O("bud", 24); RB = O("rb", 1); ARMS = O("arms", 30)
    for s in range(56):
        n, ks = s // 4, s % 4
        ph = 0 if n < 7 else 1
        if s == 28: stA()
        if ks == 2 and n + 1 <= 13:
            nb = n + 1
            last = 2 * nb + 1 if nb < 7 else nb + 7
            through(last)
            need = [("it", last)]
            if nb == SIGB:
                while epq: epq.pop(0)[1]()
                need.append(("hst", 0))
            g.wait(vm=need, lg=("rd", s))
            e("s_barrier")
            if nb <= 10: stF(1)
            if nb >= 7: stF(2)
            if nb == SIGB: signal(0)
            if nb >= 2: st["allow"] += 2 if nb - 2 <= 6 else 1
        elif s == 55:
            g.wait(lg=0)
            e("s_barrier")
            st["allow"] += 2
        else:
            g.wait(lg=("rd", s))
        if s == ZS: zero_flags()
        if s == ARMS:
            only(SW, "L_noarm1")
            e("s_waitcnt vmcnt(%d)" % min(63, len(g.vm) - g.zf))
            e("v_mov_b32 v%d, 1" % vPol)
            e("s_mov_b64 exec, 1")
            e("global_atomic_add v%d, v%d, s[14:15] sc1" % (vArmA, vPol))
            e("s_mov_b64 exec, -1")
            g.label("L_noarm1")
        if s == O("arml", 44):
            only(PW, "L_nal")
            e("global_load_dword v%d, v%d, s[14:15] sc1" % (vArm, vArmA))
            g.label("L_nal")
            g.al = len(g.vm)
        if s == O("pis", 55):
            only(PW, "L_naw")
            e("s_waitcnt vmcnt(%d)" % (len(g.vm) - g.al))
            g.label("L_naw")
            poll_issue(0)
        if s == 29 and not O("epa"): epq = epilogue_ops(0, 0)
        if s == 28 and O("epa"):
            e("s_nop 8")
            for k, (c, f) in enumerate(epilogue_ops(0, 1)):
                if O("epa") == 1 or f.__name__ == "stf": f()
                if k % O("rea", 12) == 11: issue(1)
            stA()
        rds = s1_reads(s + 2) if s + 2 < 56 else []
        xs = s % 28
        rate = 2 if st["np"] < 21 * 4 else RB
        for m in range(4):
            jf, t = m >> 1, m & 1
            D = ACC[ph] + m * 16
            e("v_mfma_f32_32x32x16_bf16 %s, %s, %s, %s" % (rng("v", D, 16), rng("v", vAbuf(s % 3, jf), 4), rng("a", (xs * 2 + t) * 4, 4), "0" if xs == 0 else rng("v", D, 16)))
            budget = BUD - (4 if m == 3 else 0)
            for _ in range((len(rds) + (3 - m)) // (4 - m)): rds.pop(0)(); budget -= 4
            if (rate == 2 and (m & 1) == 0) or (rate == 1 and m == 1): budget -= 4 * issue(1)
            while epq and budget >= epq[0][0]:
                c, f = epq.pop(0); f(); budget -= c
    stA(); stF(2)
    def h_load(u):
        ph, kk = u // 14, u % 14
        e("s_mov_b32 %s, 0x%x" % (sH2, kk * 8192))
        for t in range(2):
            g.vmop("buffer_load_dwordx4 %s, v%d, %s, %s offen sc1" % (rng("a", (u * 2 + t) * 4, 4), vH(ph, t), srd(sH), sH2), ("hl", u))
    s2_item = lambda u: 21 + u // 2
    def s2_reads(u):
        base = slot(s2_item(u)) + (u & 1) * 2048
        return [lambda c=c, j2=j2: g.lgop("ds_read_b64_tr_b16 %s, %s" % (rng("v", vAbuf(u % 3, c) + 2 * j2, 2), lds_ref(lambda b: vDA(c, b), base + j2 * 1024)), ("r2", u))
                for c in range(2) for j2 in range(2)]
    HD = O("hd", 6); SGU = O("sgu", -1); PI1 = O("pi1", 8); G1 = O("g1", 12)
    hn = 0; lim = 14
    GA = O("ga", 66)
    e("s_nop 8")
    ep = epilogue_ops(1, O("pkb", 1))
    for cnt, (c, f) in enumerate(ep + [(0, lambda: None)]):
        if cnt == min(GA, len(ep)):
            stA(); gate(0); stA()
            through(22)
            for _ in range(O("h0", 3)): h_load(hn); hn += 1
        f()
        if cnt % O("re", 16) == 5:
            if cnt > GA and hn < HD: h_load(hn); hn += 1
            else: issue(1)
    stA(); stF(2)
    while hn < HD: h_load(hn); hn += 1
    if SGU < 0:
        g.wait(vm=[("it", 21), ("hst", 1)])
        e("s_barrier")
        signal(1)
        stA()
    else: g.wait(vm=("it", 21))
    for u in (0, 1):
        for r in s2_reads(u): r()
    A2 = ACC[0]
    for u in range(28):
        if u == PI1: poll_issue(1)
        if u == G1:
            issue(100)
            stA(); stF(3)
            gate(1)
            stA(); stF(3)
            lim = 28
            while hn < u + HD: h_load(hn); hn += 1
        need = [("hl", u)]
        if u + 2 < 28:
            through(s2_item(u + 2))
            need.append(("it", s2_item(u + 2)))
        if u == SGU: need.append(("hst", 1))
        g.wait(vm=need, lg=("r2", u))
        if u % 3 == 0: stF(3)
        if u == SGU:
            e("s_barrier")
            signal(1)
            stA()
        if (u & 1) == 1: st["allow"] = max(st["allow"], s2_item(u) + NS + 1)
        rds = s2_reads(u + 2) if u + 2 < 28 else []
        for mi, m in enumerate((1, 2, 3, 0) if u == 27 else (0, 1, 2, 3)):
            c, t = m >> 1, m & 1
            D = A2 + m * 16
            e("v_mfma_f32_32x32x16_bf16 %s, %s, %s, %s" % (rng("v", D, 16), rng("v", vAbuf(u % 3, c), 4), rng("a", (u * 2 + t) * 4, 4), "0" if u == 0 else rng("v", D, 16)))
            if rds: rds.pop(0)()
            room = 2 * HD - g._n(g.vm, ("hl", u))
            if room >= 2 and hn < lim and (allp[min(st["np"], len(allp) - 1)][0] > s2_item(min(hn, 27)) or not can()): h_load(hn); hn += 1
            elif room >= 1: issue(1)
    assert st["np"] == len(allp) and hn == 28
    stA()
    e("s_nop 8")
    RW = T + 12
    for m in (1, 2, 3):
        for q in range(4):
            e("ds_write_b128 v%d, %s offset:%d" % (RW, rng("v", A2 + m * 16 + 4 * q, 4), m * 16384 + q * 1024))
    e("s_waitcnt lgkmcnt(0)")
    e("s_barrier")
    R = A2
    for m in (1, 2, 3):
        for q in range(4):
            e("ds_read_b128 %s, v%d offset:%d" % (rng("v", R + m * 16 + q * 4, 4), RW + m, m * 16384 + q * 1024))
    for m in (1, 2, 3):
        e("s_waitcnt lgkmcnt(%d)" % (12 - 4 * m))
        for i in range(0, 16, 2): e("v_pk_add_f32 %s, %s, %s" % (rng("v", R + i, 2), rng("v", R + i, 2), rng("v", R + 16 * m + i, 2)))
    for i in range(8): e("v_cvt_pk_bf16_f32 v%d, v%d, v%d" % (R + 16 + i, R + 2 * i, R + 2 * i + 1))
    e("s_nop 1")
    for pr in range(2):
        e("v_permlane32_swap_b32 v%d, v%d" % (R + 16 + 4 * pr, R + 18 + 4 * pr))
        e("v_permlane32_swap_b32 v%d, v%d" % (R + 17 + 4 * pr, R + 19 + 4 * pr))
    e("buffer_store_dwordx4 %s, v%d, %s, %s offen" % (rng("v", R + 16, 4), vOut, srd(sO), sOut))
    e("buffer_store_dwordx4 %s, v%d, %s, %s offen offset:32" % (rng("v", R + 20, 4), vOut, srd(sO), sOut))
    if stamps:
        e("s_waitcnt vmcnt(0)")
        stA()
        e("s_waitcnt lgkmcnt(0)")
        if O("dbg"):
            e("s_mov_b64 exec, 1")
            e("v_mov_b32 v1, 0")
            words = [1, 2, 3, 5, 6, 7, 9, 10, 11, 13, 14, 15]
            for j in range(g.nst):
                if j == 0: e("v_not_b32 v2, s%d" % SB)
                else: e("v_mov_b32 v2, s%d" % (SB + 2 * j))
                e("global_atomic_umax v1, v2, s[14:15] offset:%d sc1" % (4 * words[j]))
                e("s_nop 1")
            e("s_endpgm")
        e("s_add_u32 s16, s16, 0x8000000")
        e("s_addc_u32 s17, s17, 0")
        e("s_lshl_b32 s57, s2, 2")
        e("s_add_u32 s57, s57, s%d" % sWV)
        e("s_lshl_b32 s57, s57, 7")
        e("v_mov_b32 v1, s57")
        e("s_mov_b64 exec, 1")
        for j in range(g.nst):
            e("v_mov_b32 v2, s%d" % (SB + 2 * j))
            e("v_mov_b32 v3, s%d" % (SB + 1 + 2 * j))
            e("global_store_dwordx2 v1, v[2:3], s[16:17] offset:%d" % (8 * j))
            e("s_nop 1")
    e("s_endpgm")
    HELP = O("help", 7)
    g.label("L_help2")
    e("s_sub_u32 s40, s2, 224")
    e("s_and_b32 s41, s40, 7")
    e("s_lshr_b32 s42, s40, 3")
    e("s_lshr_b32 s43, s41, 1")
    e("s_lshl_b32 s43, s43, 2")
    e("s_add_u32 s43, s43, s42")
    e("s_mul_i32 s44, s43, %d" % (28 * 3584))
    e("s_and_b32 s45, s41, 1")
    e("s_mul_i32 s45, s45, %d" % (7 * 256))
    e("s_add_u32 s44, s44, s45")
    e("s_addk_i32 s44, 128")
    e("v_mul_u32_u24 v1, 9363, v0")
    e("v_lshrrev_b32 v1, 16, v1")
    e("v_mul_u32_u24 v2, 7, v1")
    e("v_sub_u32 v2, v0, v2")
    e("v_mul_u32_u24 v1, 3584, v1")
    e("v_lshl_add_u32 v1, v2, 8, v1")
    e("v_mov_b32 v3, 0x7fffffff")
    e("v_cmp_gt_u32 vcc, 196, v0")
    e("v_lshlrev_b32 v4, 7, v0")
    e("s_lshl_b32 s46, s41, 2")
    e("v_cndmask_b32 v1, v3, v1, vcc")
    e("v_cndmask_b32 v5, v3, v4, vcc")
    e("v_cmp_gt_u32 vcc, 224, v0")
    e("s_add_u32 s46, s46, s42")
    e("s_mul_i32 s46, s46, %d" % (392 * 128))
    e("v_cndmask_b32 v6, v3, v4, vcc")
    e("s_waitcnt lgkmcnt(0)")
    mk_srd(20, 6, 448 * 3584); mk_srd(24, 8, 448 * 3584); mk_srd(28, 10, 1792 * 896)
    if O("hdel", 1): e("s_waitcnt vmcnt(0)"); e("s_barrier")
    if HELP & 1:
        e("buffer_load_dword v8, v1, s[20:23], s44 offen")
        e("buffer_load_dword v9, v1, s[24:27], s44 offen")
    if HELP & 2:
        e("buffer_load_dword v10, v5, s[28:31], s46 offen")
        e("s_add_u32 s46, s46, %d" % (196 * 128))
        e("buffer_load_dword v11, v5, s[28:31], s46 offen")
    if HELP & 4:
        e("s_mul_i32 s46, s42, %d" % (128 * 896))
        e("s_mov_b32 s48, s42")
        e("s_waitcnt vmcnt(0)"); e("s_barrier")
        g.label("L_hl")
        e("buffer_load_dword v12, v6, s[28:31], s46 offen")
        e("s_add_u32 s47, s46, %d" % (224 * 128))
        e("buffer_load_dword v13, v6, s[28:31], s47 offen")
        e("s_add_u32 s46, s46, %d" % (4 * 128 * 896))
        e("s_cmp_ge_u32 s46, %d" % (1792 * 896))
        e("s_cselect_b32 s47, %d, 0" % (1792 * 896 - 64 * 896))
        e("s_sub_u32 s46, s46, s47")
        e("s_addk_i32 s48, 4")
        e("s_cmp_lt_u32 s48, 28")
        e("s_cbranch_scc1 L_hl")
    e("s_waitcnt vmcnt(0)")
    g.label("L_end2")
    e("s_endpgm")
    check_hazards(g.L)
    return g.L

def emit(L, path):
    import subprocess, re
    body = "\n".join(l if l.endswith(":") else "    " + l for l in L) + "\n"
    src = HEADER + "; @launch grid=(256,1,1) block=(256,1,1) lds=163840\n"
    src += '.amdgcn_target "amdgcn-amd-amdhsa--gfx950"\n.text\n' + kernel_begin(KN) + body
    src += '.section .rodata,"a"\n.p2align 6\n' + kd(KN, 512, 102, 256)
    open("_sz.s", "w").write(src.replace("@NLINES@", "100"))
    subprocess.run(["clang", "-x", "assembler", "-target", "amdgcn-amd-amdhsa", "-mcpu=gfx950", "-c", "_sz.s", "-o", "_sz.o"], check=True)
    o = subprocess.run(["llvm-objdump", "-h", "_sz.o"], capture_output=True, text=True).stdout
    sz = int(re.search(r"\.text\s+([0-9a-f]+)", o).group(1), 16)
    print(path, "code bytes", sz)
    open(path, "w").write(src.replace("@NLINES@", str((sz - 128) // 128)))

if __name__ == "__main__":
    out = sys.argv[1]
    stamps = 1 if "--stamps" in sys.argv else (2 if "--cyc" in sys.argv else 0)
    opt = {}
    for a in sys.argv[2:]:
        if a.startswith("-o"):
            k, _, v = a[2:].partition("=")
            opt[k] = int(v) if v else 1
    emit(build(stamps, opt), out)
```

```python
import sys
from asmlib import *
from hazard import check_hazards
from gen import Gen, rng

NS = 10
FLAGOFF = 8 << 20
FS = 128
def slot(i): return (i % NS) * 16384

def build(stamps=False, opt=None):
    opt = opt or {}
    O = lambda k, d=0: opt.get(k, d)
    g = Gen(stamps); e = g.e
    SB = 78
    def stamp():
        if stamps:
            r = SB + 2 * g.nst
            assert r + 1 < 102
            e("%s s[%d:%d]" % ("s_memtime" if stamps == 2 else "s_memrealtime", r, r + 1)); g.nst += 1
    FINE = O("fine")
    stA = (lambda: None) if FINE else stamp
    stF = lambda k: stamp() if FINE == k else None
    srd = lambda b: rng("s", b, 4)
    sX, sW, sWD, sH, sO = 20, 24, 28, 32, 36
    sMB, sFB, sWV, sTB, sCB = 40, 41, 42, 43, 44
    sDo, sLB, sHs, sDb, sDb2, sH2, sOut = "s45", "s46", "s47", "s48", "s49", "s50", "s8"
    sCx = lambda i: "s%d" % (64 + i)
    sCw = lambda i: "s%d" % (71 + i)
    vX = lambda j: 2 + j
    vW = lambda j: 6 + j
    vXB = lambda ks, b: 10 + b * 4 + ks
    vWA = lambda jf, b: 22 + b * 2 + jf
    vDA = lambda c, b: 28 + b * 2 + c
    vL16, vFlag = 34, 35
    vAbuf = lambda buf, j: 36 + buf * 8 + j * 4
    vH = lambda ph, t: 60 + ph * 2 + t
    ACC = [64, 128]
    vD = lambda j: 192 + j
    vFlag2, vArmA, vArm, vOut, vPol = 196, 197, 198, 199, 200
    T = 204

    stamp()
    e("s_load_dwordx8 s[4:11], s[0:1], 0")
    e("s_load_dwordx4 s[12:15], s[0:1], 32")
    e("s_load_dwordx2 s[16:17], s[0:1], 48")
    e("s_cmp_ge_u32 s2, 224")
    e("s_cbranch_scc0 L_main")
    e("s_cmp_ge_u32 s2, 256")
    e("s_cbranch_scc1 L_end2")
    e("s_getpc_b64 s[30:31]")
    e("v_lshlrev_b32 v4, 7, v0")
    e("v_cmp_gt_u32 vcc, @NLINES@, v0")
    e("s_and_saveexec_b64 s[32:33], vcc")
    e("s_cbranch_execz L_ncp")
    e("global_load_dword v7, v4, s[30:31]")
    g.label("L_ncp")
    e("s_mov_b64 exec, -1")
    e("s_branch L_help2")
    g.label("L_main")
    e("v_lshrrev_b32 v%d, 6, v0" % T)
    e("v_and_b32 v0, 63, v0")
    e("v_readfirstlane_b32 s%d, v%d" % (sWV, T))
    e("s_and_b32 s51, s2, 7")
    e("s_lshr_b32 s52, s2, 3")
    e("s_mul_i32 s53, s52, 37")
    e("s_lshr_b32 s53, s53, 8")
    e("s_mul_i32 s54, s53, 7")
    e("s_sub_u32 s54, s52, s54")
    e("s_lshr_b32 s55, s51, 1")
    e("s_lshl_b32 s%d, s55, 2" % sMB)
    e("s_add_u32 s%d, s%d, s53" % (sMB, sMB))
    e("s_and_b32 s56, s51, 1")
    e("s_mul_i32 s%d, s56, 7" % sFB)
    e("s_add_u32 s%d, s%d, s54" % (sFB, sFB))
    RV = O("rv", 0)
    if RV == 0 or RV == 2 or RV == 3:
        e("s_lshl_b32 s56, s53, 1")
        e("s_add_u32 s56, s56, s54")
        if RV == 0: e("s_add_u32 s56, s56, s55")
        if RV == 3: e("s_add_u32 s56, s56, s51")
        e("s_mul_i32 s57, s56, 37")
        e("s_lshr_b32 s57, s57, 8")
        e("s_mul_i32 s57, s57, 7")
        e("s_sub_u32 s3, s56, s57")
    elif RV == 1:
        e("s_add_u32 s56, s53, s54")
        e("s_and_b32 s56, s56, 3")
        e("s_lshl_b32 s3, s56, 1")
    r8, p7, rh, t0, t1 = T, T + 1, T + 2, T + 3, T + 4
    e("v_lshrrev_b32 v%d, 3, v0" % r8)
    e("v_and_b32 v%d, 7, v0" % p7)
    e("v_lshrrev_b32 v%d, 1, v%d" % (rh, r8))
    e("v_xor_b32 v%d, v%d, v%d" % (t0, p7, rh))
    e("v_lshlrev_b32 v%d, 4, v%d" % (t0, t0))
    e("v_mul_u32_u24 v%d, 896, v%d" % (t1, r8))
    e("v_add_u32 v%d, v%d, v%d" % (vX(0), t1, t0))
    e("v_xor_b32 v%d, 64, v%d" % (t0, t0))
    e("s_movk_i32 s57, %d" % (7168 - 1024))
    e("v_add3_u32 v%d, v%d, v%d, s57" % (vX(1), t1, t0))
    e("v_add_u32 v%d, %d, v%d" % (vX(2), 2 * (7168 - 1024), vX(0)))
    e("v_add_u32 v%d, %d, v%d" % (vX(3), 2 * (7168 - 1024), vX(1)))
    e("s_lshr_b32 s55, s%d, 1" % sWV)
    e("s_lshl_b32 s57, s55, 6")
    e("v_and_b32 v%d, 1, v%d" % (rh, rh))
    e("v_lshlrev_b32 v%d, 5, v%d" % (t0, rh))
    e("v_or_b32 v%d, s57, v%d" % (t0, t0))
    e("v_lshlrev_b32 v%d, 4, v%d" % (p7, p7))
    e("v_xor_b32 v%d, v%d, v%d" % (t0, t0, p7))
    e("v_mul_u32_u24 v%d, 3584, v%d" % (vW(0), r8))
    e("v_add_u32 v%d, v%d, v%d" % (vW(0), vW(0), t0))
    for j in range(1, 4): e("v_add_u32 v%d, %d, v%d" % (vW(j), j * (28672 - 1024), vW(0)))
    e("s_mul_i32 s18, s%d, %d" % (sMB, 128 * 896))
    e("s_mul_i32 s57, s%d, %d" % (sWV, 32 * 896))
    e("s_add_u32 s18, s18, s57")
    e("s_and_b32 s57, s%d, 1" % sWV)
    e("s_mul_i32 s19, s57, %d" % (32 * 3584))
    e("s_lshl_b32 s58, s%d, 8" % sFB)
    e("s_add_u32 s19, s19, s58")
    e("s_lshl_b32 %s, s%d, 12" % (sLB, sWV))
    def table(i):
        e("s_lshl_b32 s57, s3, 7")
        e("s_add_u32 %s, s57, s18" % sCx(i))
        e("s_mul_i32 s57, s3, %d" % (64 * 3584))
        e("s_add_u32 %s, s57, s19" % sCw(i))
        e("s_add_u32 s3, s3, 1")
        e("s_cmp_eq_u32 s3, 7")
        e("s_cselect_b32 s3, 0, s3")
    table(0); table(1)
    e("s_mov_b32 s%d, %d" % (sX + 2, 2048 * 896))
    e("s_mov_b32 s%d, 0x20000" % (sX + 3))
    e("s_mov_b32 s%d, %d" % (sW + 2, 448 * 3584))
    e("s_mov_b32 s%d, 0x20000" % (sW + 3))
    e("s_waitcnt lgkmcnt(0)")
    e("s_mov_b32 s%d, s4" % sX)
    e("s_and_b32 s%d, s5, 0xffff" % (sX + 1))
    e("s_cmp_eq_u32 s55, 0")
    e("s_cselect_b32 s%d, s6, s8" % sW)
    e("s_cselect_b32 s%d, s7, s9" % (sW + 1))
    e("s_and_b32 s%d, s%d, 0xffff" % (sW + 1, sW + 1))
    g.cur[sHs] = 0

    allp = [(i, jj) for i in range(35) for jj in range(4)]
    st = {"np": 0, "allow": NS}
    def one():
        i, jj = allp[st["np"]]; st["np"] += 1
        assert i < st["allow"]
        off = " offset:%d" % (jj * 1024) if jj else ""
        n = 1
        if jj == 0:
            e("s_add_u32 m0, %s, 0x%x" % (sLB, slot(i))); n += 2
            if i == 14:
                for j in range(4): e("v_add_u32 v%d, 128, v%d" % (vW(j), vW(j)))
            elif i >= 21:
                c, ph = (i - 21) % 7, (i - 21) // 7
                e("s_add_u32 %s, %s, 0x%x" % (sDo, sDb, (256 * c + 64 * ph) * 896))
            else: e("s_nop 0")
        if i < 14 and i % 2 == 0:
            g.vmop("buffer_load_dwordx4 v%d, %s, %s offen%s%s lds" % (vX(jj), srd(sX), sCx(i // 2), off, " nt" if i < O("xnt", 0) else ""), ("it", i))
        elif i < 21:
            g.vmop("buffer_load_dwordx4 v%d, %s, %s offen%s%s lds" % (vW(jj), srd(sW), sCw(i // 2 if i < 14 else i - 14), off, " nt" if i < O("wnt", 0) else ""), ("it", i))
        else:
            if i >= O("xwd", 99): g.vmop("buffer_load_dword v%d, v%d, %s, 0 offen" % (T, vArmA, srd(sWD)), ("it", i))
            else: g.vmop("buffer_load_dwordx4 v%d, %s, %s offen%s lds" % (vD(jj), srd(sWD), sDo, off), ("it", i))
        return n
    def can(): return st["np"] < len(allp) and allp[st["np"]][0] < st["allow"]
    def issue(n=1):
        k = 0
        for _ in range(n):
            if can(): k += one()
        return k
    def through(item):
        while st["np"] < len(allp) and allp[st["np"]][0] <= item: one()
    def mk_srd(d, b, n):
        e("s_mov_b32 s%d, s%d" % (d, b))
        e("s_and_b32 s%d, s%d, 0xffff" % (d + 1, b + 1))
        e("s_mov_b32 s%d, %d" % (d + 2, n))
        e("s_mov_b32 s%d, 0x20000" % (d + 3))
    def bases(vf, n):
        for j in range(n):
            e("v_add_u32 v%d, 0x10000, v%d" % (vf(j, 1), vf(j, 0)))
            e("v_add_u32 v%d, 0x20000, v%d" % (vf(j, 2), vf(j, 0)))

    SW, PW = 0, 1
    e("s_mul_i32 s59, s%d, %d" % (sMB, 14 * FS))
    e("s_lshl_b32 s61, s%d, 2" % sFB)
    e("s_add_u32 s59, s59, s61")
    e("s_add_u32 s59, s59, 0x%x" % FLAGOFF)
    e("v_lshl_add_u32 v%d, v0, 7, s59" % vFlag)
    e("v_mov_b32 v%d, 0" % vPol)
    def zero_flags():
        e("s_cmp_lg_u32 s%d, %d" % (sWV, SW))
        e("s_cbranch_scc1 L_noarm0")
        e("s_mov_b64 exec, 0x3fff")
        e("global_store_dword v%d, v%d, s[16:17] sc1" % (vFlag, vPol))
        e("global_store_dword v%d, v%d, s[16:17] offset:64 sc1" % (vFlag, vPol))
        e("s_mov_b64 exec, -1")
        g.label("L_noarm0")
        g.zf = len(g.vm)
    ZS = O("zs", 8)
    if ZS < 0: zero_flags()
    issue(O("pro", 10))
    for i in range(2, 7): table(i)
    e("s_lshl_b32 s%d, s51, 2" % sTB)
    e("s_add_u32 s%d, s%d, s53" % (sTB, sTB))
    e("s_mov_b32 s%d, s54" % sCB)
    mk_srd(sWD, 10, 1792 * 896); mk_srd(sH, 16, 2048 * 1792 * 2); mk_srd(sO, 12, 2048 * 896)
    e("s_mov_b32 s4, 0xbfb8aa3b"); e("s_mov_b32 s5, 0xbfb8aa3b"); e("s_mov_b32 s6, 1.0"); e("s_mov_b32 s7, 1.0")
    e("s_mul_i32 %s, s%d, %d" % (sDb, sWV, 16 * 896))
    e("s_lshl_b32 s57, s%d, 7" % sCB)
    e("s_add_u32 %s, %s, s57" % (sDb, sDb))
    e("v_lshlrev_b32 v%d, 6, v%d" % (t0, rh))
    e("v_xor_b32 v%d, v%d, v%d" % (t0, t0, p7))
    e("v_add_u32 v%d, v%d, v%d" % (vD(0), t1, t0))
    e("v_add_u32 v%d, %d, v%d" % (vD(1), 7168 - 1024, vD(0)))
    e("v_add_u32 v%d, %d, v%d" % (vD(2), 128 * 896 - 2048, vD(0)))
    e("v_add_u32 v%d, %d, v%d" % (vD(3), 128 * 896 - 2048, vD(1)))
    e("v_lshlrev_b32 v%d, 4, v0" % vL16)
    e("s_and_b32 s57, s%d, 1" % sWV)
    e("s_lshr_b32 s58, s%d, 1" % sWV)
    e("s_lshl_b32 s59, s%d, 2" % sMB)
    e("s_lshl_b32 s60, s57, 1")
    e("s_add_u32 s59, s59, s60")
    e("s_mul_i32 s59, s59, 112")
    e("s_lshl_b32 s60, s%d, 3" % sFB)
    e("s_add_u32 s59, s59, s60")
    e("s_lshl_b32 s60, s58, 1")
    e("s_add_u32 s59, s59, s60")
    e("s_lshl_b32 %s, s59, 10" % sHs)
    e("s_mul_i32 s59, s%d, 224" % sTB)
    e("s_add_u32 s59, s59, s%d" % sWV)
    e("s_lshl_b32 s59, s59, 10")
    e("s_mul_i32 s60, s57, %d" % (112 * 1024))
    e("s_xor_b32 s61, s60, %d" % (112 * 1024))
    e("s_add_u32 s60, s60, s59")
    e("s_add_u32 s61, s61, s59")
    e("v_add_u32 v%d, s60, v%d" % (vH(0, 0), vL16))
    e("v_add_u32 v%d, s61, v%d" % (vH(0, 1), vL16))
    e("v_add_u32 v%d, 4096, v%d" % (vH(1, 0), vH(0, 0)))
    e("v_add_u32 v%d, 4096, v%d" % (vH(1, 1), vH(0, 1)))
    e("s_mul_i32 s59, s51, 28")
    e("s_add_u32 s59, s59, s52")
    e("s_mul_i32 s59, s59, %d" % FS)
    e("s_add_u32 s59, s59, 0x%x" % FLAGOFF)
    e("v_min_u32 v%d, 13, v0" % vFlag2)
    e("v_lshl_add_u32 v%d, v%d, 2, s59" % (vFlag2, vFlag2))
    e("s_lshr_b32 s59, s%d, 1" % sTB)
    e("s_cmp_eq_u32 s%d, %d" % (sWV, SW))
    e("s_cselect_b32 s59, s%d, s59" % sMB)
    e("s_lshl_b32 s59, s59, 4")
    e("v_mov_b32 v%d, s59" % vArmA)
    tk, hi, sw, mt, rr, cc, a0 = T + 5, T + 6, T + 7, T + 8, T + 9, T + 10, T + 11
    e("v_and_b32 v%d, 31, v0" % tk)
    e("v_lshrrev_b32 v%d, 5, v0" % hi)
    e("v_bfe_u32 v%d, v0, 1, 3" % sw)
    e("v_xor_b32 v%d, v%d, v%d" % (sw, sw, hi))
    e("v_lshlrev_b32 v%d, 4, v%d" % (sw, sw))
    e("v_lshl_add_u32 v%d, v%d, 7, v%d" % (sw, tk, sw))
    e("s_lshl_b32 s59, s57, 13")
    e("v_add_u32 v%d, s59, v%d" % (sw, sw))
    for ks in range(4): e("v_xor_b32 v%d, %d, v%d" % (vXB(ks, 0), ks * 32, sw))
    bases(vXB, 4)
    e("v_bfe_u32 v%d, v0, 4, 1" % mt)
    e("v_bfe_u32 v%d, v0, 2, 2" % rr)
    e("v_and_b32 v%d, 3, v0" % cc)
    e("v_lshlrev_b32 v%d, 3, v%d" % (cc, cc))
    e("v_lshl_add_u32 v%d, v%d, 3, v%d" % (a0, hi, rr))
    e("v_lshl_add_u32 v%d, v%d, 7, v%d" % (a0, a0, cc))
    e("v_lshl_add_u32 v%d, v%d, 13, v%d" % (a0, mt, a0))
    e("v_lshrrev_b32 v%d, 1, v%d" % (t0, rr))
    e("v_lshl_or_b32 v%d, v%d, 1, v%d" % (t1, mt, t0))
    e("s_lshl_b32 s59, s58, 1")
    e("v_xor_b32 v%d, s59, v%d" % (t1, t1))
    e("v_lshl_add_u32 v%d, v%d, 5, v%d" % (vWA(0, 0), t1, a0))
    e("v_xor_b32 v%d, 32, v%d" % (vWA(1, 0), vWA(0, 0)))
    bases(vWA, 2)
    e("v_lshl_add_u32 v%d, v%d, 2, v%d" % (a0, hi, rr))
    e("v_lshl_add_u32 v%d, v%d, 7, v%d" % (a0, a0, cc))
    e("v_lshl_add_u32 v%d, v%d, 5, v%d" % (a0, mt, a0))
    e("v_lshl_add_u32 v%d, v%d, 6, v%d" % (a0, t0, a0))
    e("v_add_u32 v%d, %s, v%d" % (vDA(0, 0), sLB, a0))
    e("s_lshl_b32 s59, s58, 6")
    e("v_xor_b32 v%d, s59, v%d" % (vDA(0, 0), vDA(0, 0)))
    e("v_xor_b32 v%d, 64, v%d" % (vDA(1, 0), vDA(0, 0)))
    bases(vDA, 2)
    e("v_mul_u32_u24 v%d, 896, v%d" % (vOut, tk))
    e("v_lshl_add_u32 v%d, v%d, 4, v%d" % (vOut, hi, vOut))
    e("s_lshl_b32 s60, s%d, 1" % sTB)
    e("s_add_u32 s60, s60, s57")
    e("s_mul_i32 s60, s60, %d" % (32 * 896))
    e("s_add_u32 s60, s60, s59")
    e("s_lshl_b32 s59, s%d, 7" % sCB)
    e("s_add_u32 %s, s60, s59" % sOut)
    e("v_add_u32 v%d, %s, v%d" % (T + 12, sLB, vL16))
    for mm in (1, 2, 3): e("v_xor_b32 v%d, %d, v%d" % (T + 12 + mm, mm * 4096, T + 12))

    def lds_ref(vf, byte): return "v%d offset:%d" % (vf(byte >> 16), byte & 0xffff)
    def s1_reads(s):
        n, ks = s // 4, s % 4
        ph = 0 if n < 7 else 1
        wb = slot(2 * n + 1 if ph == 0 else n + 7)
        out = [lambda jf=jf, j2=j2: g.lgop("ds_read_b64_tr_b16 %s, %s" % (rng("v", vAbuf(s % 3, jf) + 2 * j2, 2), lds_ref(lambda b: vWA(jf, b), wb + ks * 2048 + j2 * 512)), ("rd", s))
               for jf in range(2) for j2 in range(2)]
        if ph == 0:
            for t in range(2):
                out.insert(2 + 3 * t, lambda t=t: g.lgop("ds_read_b128 %s, %s" % (rng("a", (s * 2 + t) * 4, 4), lds_ref(lambda b: vXB(ks, b), slot(2 * n) + t * 4096)), ("rd", s)))
        return out
    def epilogue_ops(ph, pk):
        ops = []
        for tile in range(4):
            jf, t = tile >> 1, tile & 1
            D = ACC[ph] + tile * 16
            def V(s, c=4): ops.append((c, lambda s=s: e(s)))
            if pk:
                for i in range(0, 8, 2): V("v_pk_mul_f32 %s, %s, s[4:5]" % (rng("v", D + i, 2), rng("v", D + i, 2)))
                for i in range(8): V("v_exp_f32 v%d, v%d" % (D + i, D + i), 8)
                for i in range(0, 8, 2): V("v_pk_add_f32 %s, %s, s[6:7]" % (rng("v", D + i, 2), rng("v", D + i, 2)))
                for i in range(8): V("v_rcp_f32 v%d, v%d" % (D + i, D + i), 8)
                for i in range(0, 8, 2): V("v_pk_mul_f32 %s, %s, %s" % (rng("v", D + i, 2), rng("v", D + i, 2), rng("v", D + 8 + i, 2)))
            else:
                for i in range(8): V("v_mul_f32 v%d, s4, v%d" % (D + i, D + i))
                for i in range(8):
                    V("v_exp_f32 v%d, v%d" % (D + i, D + i), 8)
                    if i >= 2: V("v_add_f32 v%d, 1.0, v%d" % (D + i - 2, D + i - 2))
                V("v_rcp_f32 v%d, v%d" % (D, D), 8)
                for i in (6, 7): V("v_add_f32 v%d, 1.0, v%d" % (D + i, D + i))
                for i in range(1, 8):
                    V("v_rcp_f32 v%d, v%d" % (D + i, D + i), 8)
                    V("v_mul_f32 v%d, v%d, v%d" % (D + i - 1, D + i - 1, D + 7 + i))
                V("v_cvt_pk_bf16_f32 v%d, v%d, v%d" % (D + 8, D, D + 1))
                V("v_mul_f32 v%d, v%d, v%d" % (D + 7, D + 7, D + 15))
            for i in range(0 if pk else 1, 4): V("v_cvt_pk_bf16_f32 v%d, v%d, v%d" % (D + 8 + i, D + 2 * i, D + 2 * i + 1))
            def stf(jf=jf, t=t, D=D):
                e(g.setoff(sHs, (t * 112 + 4 * ph + jf) * 1024))
                g.vmop("buffer_store_dwordx4 %s, v%d, %s, %s offen sc1" % (rng("v", D + 8, 4), vL16, srd(sH), sHs), ("hst", ph))
            ops.append((8, stf))
        return ops
    def only(w, nm):
        e("s_cmp_lg_u32 s%d, %d" % (sWV, w)); e("s_cbranch_scc1 %s" % nm)
    def signal(ph):
        only(SW, "L_nosig%d" % ph)
        e("v_mov_b32 v%d, 1" % vPol)
        e("s_mov_b64 exec, 0x3fff")
        e("global_store_dword v%d, v%d, s[16:17] offset:%d sc1" % (vFlag, vPol, 64 * ph))
        e("s_mov_b64 exec, -1")
        g.label("L_nosig%d" % ph)
    def poll_issue(ph):
        only(PW, "L_npi%d" % ph)
        if ph == 0:
            e("s_mov_b32 s61, 0")
            g.label("L_arm")
            e("v_readfirstlane_b32 s57, v%d" % vArm)
            e("s_addk_i32 s61, 1")
            e("s_cmp_ge_u32 s61, 0x40000")
            e("s_cbranch_scc1 L_armd")
            e("s_cmp_ge_u32 s57, 14")
            e("s_cbranch_scc1 L_armd")
            e("s_sleep 8")
            e("global_load_dword v%d, v%d, s[14:15] sc1" % (vArm, vArmA))
            e("s_waitcnt vmcnt(0)")
            e("s_branch L_arm")
            g.label("L_armd")
        if O("nopoll"): e("v_mov_b32 v%d, 1" % vPol)
        else: e("global_load_dword v%d, v%d, s[16:17] offset:%d sc1" % (vPol, vFlag2, 64 * ph))
        g.label("L_npi%d" % ph)
        g.pi = len(g.vm)
    def gate(ph):
        only(PW, "L_pok%d" % ph)
        e("s_waitcnt vmcnt(%d)" % min(63, len(g.vm) - g.pi))
        e("s_mov_b32 s61, 0")
        g.label("L_poll%d" % ph)
        e("v_cmp_ne_u32 vcc, 1, v%d" % vPol)
        e("s_addk_i32 s61, 1")
        e("s_cmp_ge_u32 s61, 0x40000")
        e("s_cbranch_scc1 L_pok%d" % ph)
        e("s_cmp_eq_u64 vcc, 0")
        e("s_cbranch_scc1 L_pok%d" % ph)
        e("s_sleep %d" % O("slp", 2))
        e("global_load_dword v%d, v%d, s[16:17] offset:%d sc1" % (vPol, vFlag2, 64 * ph))
        e("s_waitcnt vmcnt(0)")
        e("s_branch L_poll%d" % ph)
        g.label("L_pok%d" % ph)
        e("s_barrier")

    def h_load(u):
        ph, kk = u // 14, u % 14
        e("s_mov_b32 %s, 0x%x" % (sH2, kk * 8192))
        for t in range(2):
            if O("xh") == 1: g.vmop("buffer_load_dwordx4 %s, v%d, %s, %s offen sc1" % (rng("a", (u * 2 + t) * 4, 4), vL16, srd(sWD), sH2), ("hl", u))
            elif O("xh") == 2: g.vmop("buffer_load_dword %s, v%d, %s, 0 offen" % ("a%d" % ((u * 2 + t) * 4), vArmA, srd(sWD)), ("hl", u))
            elif O("xh") == 3: g.vmop("buffer_load_dwordx4 %s, v%d, %s, %s offen" % (rng("a", (u * 2 + t) * 4, 4), vH(ph, t), srd(sH), sH2), ("hl", u))
            else: g.vmop("buffer_load_dwordx4 %s, v%d, %s, %s offen sc1" % (rng("a", (u * 2 + t) * 4, 4), vH(ph, t), srd(sH), sH2), ("hl", u))
    hs = {'n': 0}
    GS = O('gs', 99)
    issue(O("pro2", 8))
    g.wait(vm=("it", 1))
    e("s_barrier")
    stA(); stF(1)
    for s in (0, 1):
        for r in s1_reads(s): r()
    issue(O("pro3", 2))
    epq = []
    SIGB = O("sigb", 13); BUD = O("bud", 24); RB = O("rb", 1); ARMS = O("arms", 30)
    for s in range(56):
        n, ks = s // 4, s % 4
        ph = 0 if n < 7 else 1
        if s == 28: stA()
        if ks == 2 and n + 1 <= 13:
            nb = n + 1
            last = 2 * nb + 1 if nb < 7 else nb + 7
            through(last)
            need = [("it", last)]
            if nb == SIGB:
                while epq: epq.pop(0)[1]()
                need.append(("hst", 0))
            g.wait(vm=need, lg=("rd", s))
            if s == GS: stA(); gate(0); stA()
            else: e("s_barrier")
            if nb <= 10: stF(1)
            if nb >= 7: stF(2)
            if nb == SIGB: signal(0)
            if nb >= 2: st["allow"] += 2 if nb - 2 <= 6 else 1
        elif s == 55:
            g.wait(lg=0)
            e("s_barrier")
            st["allow"] += 2
        else:
            g.wait(lg=("rd", s))
            if s == GS: stA(); gate(0); stA()
        if s == ZS: zero_flags()
        if s == ARMS:
            only(SW, "L_noarm1")
            e("s_waitcnt vmcnt(%d)" % min(63, len(g.vm) - g.zf))
            e("v_mov_b32 v%d, 1" % vPol)
            e("s_mov_b64 exec, 1")
            e("global_atomic_add v%d, v%d, s[14:15] sc1" % (vArmA, vPol))
            e("s_mov_b64 exec, -1")
            g.label("L_noarm1")
        if s == O("arml", 44):
            only(PW, "L_nal")
            e("global_load_dword v%d, v%d, s[14:15] sc1" % (vArm, vArmA))
            g.label("L_nal")
            g.al = len(g.vm)
        if s == O("pis", 55):
            only(PW, "L_naw")
            e("s_waitcnt vmcnt(%d)" % (len(g.vm) - g.al))
            g.label("L_naw")
            poll_issue(0)
        if s == 29 and not O("epa"): epq = epilogue_ops(0, 0)
        if s == 28 and O("epa"):
            e("s_nop 8")
            for k, (c, f) in enumerate(epilogue_ops(0, 1)):
                if O("epa") == 1 or f.__name__ == "stf": f()
                if k % O("rea", 12) == 11: issue(1)
            stA()
        rds = s1_reads(s + 2) if s + 2 < 56 else []
        xs = s % 28
        rate = 2 if st["np"] < 21 * 4 else RB
        for m in range(4):
            jf, t = m >> 1, m & 1
            D = ACC[ph] + m * 16
            e("v_mfma_f32_32x32x16_bf16 %s, %s, %s, %s" % (rng("v", D, 16), rng("v", vAbuf(s % 3, jf), 4), rng("a", (xs * 2 + t) * 4, 4), "0" if xs == 0 else rng("v", D, 16)))
            budget = BUD - (4 if m == 3 else 0)
            for _ in range((len(rds) + (3 - m)) // (4 - m)): rds.pop(0)(); budget -= 4
            if s >= GS:
                if m == 1: h_load(hs['n']); hs['n'] += 1; budget -= 12
            elif (rate == 2 and (m & 1) == 0) or (rate == 1 and m == 1): budget -= 4 * issue(1)
            while epq and budget >= epq[0][0]:
                c, f = epq.pop(0); f(); budget -= c
    stA(); stF(2)
    s2_item = lambda u: 21 + u // 2
    def s2_reads(u):
        base = slot(s2_item(u)) + (u & 1) * 2048
        return [lambda c=c, j2=j2: g.lgop("ds_read_b64_tr_b16 %s, %s" % (rng("v", vAbuf(u % 3, c) + 2 * j2, 2), lds_ref(lambda b: vDA(c, b), base + j2 * 1024)), ("r2", u))
                for c in range(2) for j2 in range(2)]
    HD = O("hd", 6); SGU = O("sgu", -1); PI1 = O("pi1", 8); G1 = O("g1", 12)
    hn = hs['n']; lim = 14
    GA = O("ga", 66) if GS > 55 else -1
    e("s_nop 8")
    ep = epilogue_ops(1, O("pkb", 1))
    for cnt, (c, f) in enumerate(ep + [(0, lambda: None)]):
        if cnt == min(GA, len(ep)):
            stA(); gate(0); stA()
            through(22)
            for _ in range(O("h0", 3)): h_load(hn); hn += 1
        f()
        if cnt % O("re", 16) == 5:
            if cnt > GA and hn < O("he", HD): h_load(hn); hn += 1
            else: issue(1)
    stA(); stF(2)
    while hn < HD: h_load(hn); hn += 1
    if SGU < 0:
        g.wait(vm=[("it", 21), ("hst", 1)])
        e("s_barrier")
        signal(1)
        stA()
    else: g.wait(vm=("it", 21))
    for u in (0, 1):
        for r in s2_reads(u): r()
    A2 = ACC[0]
    for u in range(28):
        if u == PI1: poll_issue(1)
        if u == G1:
            issue(100)
            stA(); stF(3)
            gate(1)
            stA(); stF(3)
            lim = 28
            while hn < u + HD: h_load(hn); hn += 1
        need = [("hl", u)]
        if u + 2 < 28:
            through(s2_item(u + 2))
            need.append(("it", s2_item(u + 2)))
        if u == SGU: need.append(("hst", 1))
        g.wait(vm=need, lg=("r2", u))
        if u % 3 == 0: stF(3)
        if u == SGU:
            e("s_barrier")
            signal(1)
            stA()
        if (u & 1) == 1: st["allow"] = max(st["allow"], s2_item(u) + NS + 1)
        rds = s2_reads(u + 2) if u + 2 < 28 else []
        for mi, m in enumerate((1, 2, 3, 0) if u == 27 else (0, 1, 2, 3)):
            c, t = m >> 1, m & 1
            D = A2 + m * 16
            e("v_mfma_f32_32x32x16_bf16 %s, %s, %s, %s" % (rng("v", D, 16), rng("v", vAbuf(u % 3, c), 4), rng("a", (u * 2 + t) * 4, 4), "0" if u == 0 else rng("v", D, 16)))
            if rds: rds.pop(0)()
            room = 2 * HD - g._n(g.vm, ("hl", u))
            if room >= 2 and hn < lim and (allp[min(st["np"], len(allp) - 1)][0] > s2_item(min(hn, 27)) or not can()): h_load(hn); hn += 1
            elif room >= 1: issue(1)
    assert st["np"] == len(allp) and hn == 28
    stA()
    e("s_nop 8")
    RW = T + 12
    for m in (1, 2, 3):
        for q in range(4):
            e("ds_write_b128 v%d, %s offset:%d" % (RW, rng("v", A2 + m * 16 + 4 * q, 4), m * 16384 + q * 1024))
    e("s_waitcnt lgkmcnt(0)")
    e("s_barrier")
    R = A2
    for m in (1, 2, 3):
        for q in range(4):
            e("ds_read_b128 %s, v%d offset:%d" % (rng("v", R + m * 16 + q * 4, 4), RW + m, m * 16384 + q * 1024))
    for m in (1, 2, 3):
        e("s_waitcnt lgkmcnt(%d)" % (12 - 4 * m))
        for i in range(0, 16, 2): e("v_pk_add_f32 %s, %s, %s" % (rng("v", R + i, 2), rng("v", R + i, 2), rng("v", R + 16 * m + i, 2)))
    for i in range(8): e("v_cvt_pk_bf16_f32 v%d, v%d, v%d" % (R + 16 + i, R + 2 * i, R + 2 * i + 1))
    e("s_nop 1")
    for pr in range(2):
        e("v_permlane32_swap_b32 v%d, v%d" % (R + 16 + 4 * pr, R + 18 + 4 * pr))
        e("v_permlane32_swap_b32 v%d, v%d" % (R + 17 + 4 * pr, R + 19 + 4 * pr))
    ofl = {0: "", 1: " sc1", 2: " nt", 3: " sc0 sc1", 4: " sc1 nt"}[O("ost", 0)]
    e("buffer_store_dwordx4 %s, v%d, %s, %s offen%s" % (rng("v", R + 16, 4), vOut, srd(sO), sOut, ofl))
    e("buffer_store_dwordx4 %s, v%d, %s, %s offen offset:32%s" % (rng("v", R + 20, 4), vOut, srd(sO), sOut, ofl))
    if stamps:
        e("s_waitcnt vmcnt(0)")
        stA(); stF(9)
        e("s_waitcnt lgkmcnt(0)")
        if O("dbg"):
            e("s_mov_b64 exec, 1")
            e("v_mov_b32 v1, 0")
            words = [1, 2, 3, 5, 6, 7, 9, 10, 11, 13, 14, 15]
            for j in range(g.nst):
                if j == 0: e("v_not_b32 v2, s%d" % SB)
                else: e("v_mov_b32 v2, s%d" % (SB + 2 * j))
                e("global_atomic_umax v1, v2, s[14:15] offset:%d sc1" % (4 * words[j]))
                e("s_nop 1")
            e("s_endpgm")
        e("s_add_u32 s16, s16, 0x8000000")
        e("s_addc_u32 s17, s17, 0")
        e("s_lshl_b32 s57, s2, 2")
        e("s_add_u32 s57, s57, s%d" % sWV)
        e("s_lshl_b32 s57, s57, 7")
        e("v_mov_b32 v1, s57")
        e("s_mov_b64 exec, 1")
        for j in range(g.nst):
            e("v_mov_b32 v2, s%d" % (SB + 2 * j))
            e("v_mov_b32 v3, s%d" % (SB + 1 + 2 * j))
            e("global_store_dwordx2 v1, v[2:3], s[16:17] offset:%d" % (8 * j))
            e("s_nop 1")
    e("s_endpgm")
    HELP = O("help", 7)
    g.label("L_help2")
    e("s_sub_u32 s40, s2, 224")
    e("s_and_b32 s41, s40, 7")
    e("s_lshr_b32 s42, s40, 3")
    e("s_lshr_b32 s43, s41, 1")
    e("s_lshl_b32 s43, s43, 2")
    e("s_add_u32 s43, s43, s42")
    e("s_mul_i32 s44, s43, %d" % (28 * 3584))
    e("s_and_b32 s45, s41, 1")
    e("s_mul_i32 s45, s45, %d" % (7 * 256))
    e("s_add_u32 s44, s44, s45")
    e("s_addk_i32 s44, 128")
    e("v_mul_u32_u24 v1, 9363, v0")
    e("v_lshrrev_b32 v1, 16, v1")
    e("v_mul_u32_u24 v2, 7, v1")
    e("v_sub_u32 v2, v0, v2")
    e("v_mul_u32_u24 v1, 3584, v1")
    e("v_lshl_add_u32 v1, v2, 8, v1")
    e("v_mov_b32 v3, 0x7fffffff")
    e("v_cmp_gt_u32 vcc, 196, v0")
    e("v_lshlrev_b32 v4, 7, v0")
    e("s_lshl_b32 s46, s41, 2")
    e("v_cndmask_b32 v1, v3, v1, vcc")
    e("v_cndmask_b32 v5, v3, v4, vcc")
    e("v_cmp_gt_u32 vcc, 224, v0")
    e("s_add_u32 s46, s46, s42")
    e("s_mul_i32 s46, s46, %d" % (392 * 128))
    e("v_cndmask_b32 v6, v3, v4, vcc")
    e("s_waitcnt lgkmcnt(0)")
    mk_srd(20, 6, 448 * 3584); mk_srd(24, 8, 448 * 3584); mk_srd(28, 10, 1792 * 896)
    if O("hdel", 1): e("s_waitcnt vmcnt(0)"); e("s_barrier")
    if HELP & 1:
        e("buffer_load_dword v8, v1, s[20:23], s44 offen")
        e("buffer_load_dword v9, v1, s[24:27], s44 offen")
    if HELP & 2:
        e("buffer_load_dword v10, v5, s[28:31], s46 offen")
        e("s_add_u32 s46, s46, %d" % (196 * 128))
        e("buffer_load_dword v11, v5, s[28:31], s46 offen")
    if HELP & 4:
        e("s_mul_i32 s46, s42, %d" % (128 * 896))
        e("s_mov_b32 s48, s42")
        e("s_waitcnt vmcnt(0)"); e("s_barrier")
        g.label("L_hl")
        e("buffer_load_dword v12, v6, s[28:31], s46 offen")
        e("s_add_u32 s47, s46, %d" % (224 * 128))
        e("buffer_load_dword v13, v6, s[28:31], s47 offen")
        e("s_add_u32 s46, s46, %d" % (4 * 128 * 896))
        e("s_cmp_ge_u32 s46, %d" % (1792 * 896))
        e("s_cselect_b32 s47, %d, 0" % (1792 * 896 - 64 * 896))
        e("s_sub_u32 s46, s46, s47")
        e("s_addk_i32 s48, 4")
        e("s_cmp_lt_u32 s48, 28")
        e("s_cbranch_scc1 L_hl")
    e("s_waitcnt vmcnt(0)")
    g.label("L_end2")
    e("s_endpgm")
    check_hazards(g.L)
    return g.L

def emit(L, path):
    import subprocess, re
    body = "\n".join(l if l.endswith(":") else "    " + l for l in L) + "\n"
    src = HEADER + "; @launch grid=(256,1,1) block=(256,1,1) lds=163840\n"
    src += '.amdgcn_target "amdgcn-amd-amdhsa--gfx950"\n.text\n' + kernel_begin(KN) + body
    src += '.section .rodata,"a"\n.p2align 6\n' + kd(KN, 512, 102, 256)
    open("_sz.s", "w").write(src.replace("@NLINES@", "100"))
    subprocess.run(["clang", "-x", "assembler", "-target", "amdgcn-amd-amdhsa", "-mcpu=gfx950", "-c", "_sz.s", "-o", "_sz.o"], check=True)
    o = subprocess.run(["llvm-objdump", "-h", "_sz.o"], capture_output=True, text=True).stdout
    sz = int(re.search(r"\.text\s+([0-9a-f]+)", o).group(1), 16)
    print(path, "code bytes", sz)
    open(path, "w").write(src.replace("@NLINES@", str((sz - 128) // 128)))

if __name__ == "__main__":
    out = sys.argv[1]
    stamps = 1 if "--stamps" in sys.argv else (2 if "--cyc" in sys.argv else 0)
    opt = {}
    for a in sys.argv[2:]:
        if a.startswith("-o"):
            k, _, v = a[2:].partition("=")
            opt[k] = int(v) if v else 1
    emit(build(stamps, opt), out)
```

```python
import sys
from asmlib import *
from hazard import check_hazards
from gen import Gen, rng

NS = 10
FLAGOFF = 8 << 20
FS = 128
MF = "v_mfma_f32_16x16x32_bf16"

def build(stamps=False, opt=None):
    opt = opt or {}
    O = lambda k, d=0: opt.get(k, d)
    g = Gen(stamps); e = g.e
    SB = 78
    def stamp():
        if stamps:
            r = SB + 2 * g.nst
            assert r + 1 < 102
            e("%s s[%d:%d]" % ("s_memtime" if stamps == 2 else "s_memrealtime", r, r + 1)); g.nst += 1
    FINE = O("fine")
    if O("both"):
        cntr = {"k": 0}
        sel = {1: (2, 3, 6, 7, 10), 2: (1, 2, 3, 7, 10)}[O("both")]
        def stamp2():
            cntr["k"] += 1
            if cntr["k"] in sel:
                r = SB + 2 * g.nst
                e("s_memrealtime s[%d:%d]" % (r, r + 1)); e("s_memtime s[%d:%d]" % (r + 2, r + 3)); g.nst += 2
    stA = (lambda: None) if FINE else (stamp2 if O("both") else stamp)
    stF = lambda k: stamp() if FINE == k else None
    srd = lambda b: rng("s", b, 4)
    sX, sW, sWD, sH, sO = 20, 24, 28, 32, 36
    sMB, sFB, sWV, sTB, sCB = 40, 41, 42, 43, 44
    sDo, sLB, sHs, sDb, sH2, sOut = "s45", "s46", "s47", "s48", "s50", "s8"
    sCx = lambda i: "s%d" % (64 + i)
    sCw = lambda i: "s%d" % (71 + i)
    vX = lambda j: 2 + j
    vW = lambda j: 6 + j
    vXB = lambda kk, b: 10 + b * 2 + kk
    vWA = lambda jf, b: 16 + b * 2 + jf
    vL16, vFlag = 22, 23
    vH = lambda t: 24 + t
    vAbuf = lambda buf, j: 32 + buf * 16 + j * 4
    ACC = [64, 128]
    vD = lambda j: 192 + j
    vFlag2, vArmA, vArm, vOut, vPol, vOne = 196, 197, 198, 199, 200, 201
    T = 204
    vDA = lambda c, b: 220 + b * 4 + c

    stamp()
    e("s_load_dwordx8 s[4:11], s[0:1], 0")
    e("s_load_dwordx4 s[12:15], s[0:1], 32")
    e("s_load_dwordx2 s[16:17], s[0:1], 48")
    e("s_sub_u32 s2, s2, 32")
    e("s_cmp_lt_u32 s2, 224")
    e("s_cbranch_scc1 L_main")
    e("s_add_u32 s40, s2, 32")
    e("s_cmp_ge_u32 s40, 32")
    e("s_cbranch_scc1 L_end2")
    e("s_getpc_b64 s[30:31]")
    e("v_lshlrev_b32 v4, 7, v0")
    e("v_cmp_gt_u32 vcc, @NLINES@, v0")
    e("s_and_saveexec_b64 s[32:33], vcc")
    e("s_cbranch_execz L_ncp")
    e("global_load_dword v7, v4, s[30:31]")
    g.label("L_ncp")
    e("s_mov_b64 exec, -1")
    e("s_branch L_help2")
    g.label("L_main")
    e("v_lshrrev_b32 v%d, 6, v0" % T)
    e("v_and_b32 v0, 63, v0")
    e("v_readfirstlane_b32 s%d, v%d" % (sWV, T))
    e("s_and_b32 s51, s2, 7")
    e("s_lshr_b32 s52, s2, 3")
    e("s_mul_i32 s53, s52, 37")
    e("s_lshr_b32 s53, s53, 8")
    e("s_mul_i32 s54, s53, 7")
    e("s_sub_u32 s54, s52, s54")
    e("s_lshr_b32 s55, s51, 1")
    e("s_lshl_b32 s%d, s55, 2" % sMB)
    e("s_add_u32 s%d, s%d, s53" % (sMB, sMB))
    e("s_and_b32 s56, s51, 1")
    e("s_mul_i32 s%d, s56, 7" % sFB)
    e("s_add_u32 s%d, s%d, s54" % (sFB, sFB))
    e("s_lshl_b32 s56, s53, 1")
    e("s_add_u32 s56, s56, s54")
    e("s_add_u32 s56, s56, s55")
    e("s_mul_i32 s57, s56, 37")
    e("s_lshr_b32 s57, s57, 8")
    e("s_mul_i32 s57, s57, 7")
    e("s_sub_u32 s3, s56, s57")
    r8, p7, rh, t0, t1, rl = T, T + 1, T + 2, T + 3, T + 4, T + 5
    e("v_lshrrev_b32 v%d, 3, v0" % r8)
    e("v_and_b32 v%d, 7, v0" % p7)
    e("v_lshrrev_b32 v%d, 1, v%d" % (rh, r8))
    e("v_xor_b32 v%d, v%d, v%d" % (t0, p7, rh))
    e("v_lshlrev_b32 v%d, 4, v%d" % (t0, t0))
    e("v_mul_u32_u24 v%d, 896, v%d" % (t1, r8))
    e("v_add_u32 v%d, v%d, v%d" % (vX(0), t1, t0))
    e("v_xor_b32 v%d, 64, v%d" % (t0, t0))
    e("s_movk_i32 s57, %d" % (7168 - 1024))
    e("v_add3_u32 v%d, v%d, v%d, s57" % (vX(1), t1, t0))
    e("v_add_u32 v%d, %d, v%d" % (vX(2), 2 * (7168 - 1024), vX(0)))
    e("v_add_u32 v%d, %d, v%d" % (vX(3), 2 * (7168 - 1024), vX(1)))
    e("s_lshr_b32 s55, s%d, 1" % sWV)
    e("v_and_b32 v%d, 1, v%d" % (rl, rh))
    e("v_lshlrev_b32 v%d, 5, v%d" % (t0, rl))
    e("v_lshlrev_b32 v%d, 4, v%d" % (p7, p7))
    e("v_xor_b32 v%d, v%d, v%d" % (t0, t0, p7))
    e("v_mul_u32_u24 v%d, 3584, v%d" % (rl, r8))
    e("v_add_u32 v%d, v%d, v%d" % (vW(0), rl, t0))
    e("v_xor_b32 v%d, 64, v%d" % (t0, t0))
    e("s_movk_i32 s57, %d" % (28672 - 1024))
    e("v_add3_u32 v%d, v%d, v%d, s57" % (vW(1), rl, t0))
    e("v_add_u32 v%d, %d, v%d" % (vW(2), 2 * (28672 - 1024), vW(0)))
    e("v_add_u32 v%d, %d, v%d" % (vW(3), 2 * (28672 - 1024), vW(1)))
    e("s_mul_i32 s18, s%d, %d" % (sMB, 128 * 896))
    e("s_mul_i32 s57, s%d, %d" % (sWV, 32 * 896))
    e("s_add_u32 s18, s18, s57")
    e("s_and_b32 s57, s%d, 1" % sWV)
    e("s_mul_i32 s19, s57, %d" % (32 * 3584))
    e("s_lshl_b32 s58, s%d, 8" % sFB)
    e("s_add_u32 s19, s19, s58")
    e("s_lshl_b32 %s, s%d, 12" % (sLB, sWV))
    def table(i):
        e("s_lshl_b32 s57, s3, 7")
        e("s_add_u32 %s, s57, s18" % sCx(i))
        e("s_mul_i32 s57, s3, %d" % (64 * 3584))
        e("s_add_u32 %s, s57, s19" % sCw(i))
        e("s_add_u32 s3, s3, 1")
        e("s_cmp_eq_u32 s3, 7")
        e("s_cselect_b32 s3, 0, s3")
    table(0); table(1)
    e("s_mov_b32 s%d, %d" % (sX + 2, 2048 * 896))
    e("s_mov_b32 s%d, 0x20000" % (sX + 3))
    e("s_mov_b32 s%d, %d" % (sW + 2, 448 * 3584))
    e("s_mov_b32 s%d, 0x20000" % (sW + 3))
    e("s_waitcnt lgkmcnt(0)")
    e("s_mov_b32 s%d, s4" % sX)
    e("s_and_b32 s%d, s5, 0xffff" % (sX + 1))
    e("s_cmp_eq_u32 s55, 0")
    e("s_cselect_b32 s%d, s6, s8" % sW)
    e("s_cselect_b32 s%d, s7, s9" % (sW + 1))
    e("s_and_b32 s%d, s%d, 0xffff" % (sW + 1, sW + 1))
    g.cur[sHs] = 0

    allp = [(i, jj) for i in range(35) for jj in range(4)]
    st = {"np": 0}
    pool = list(range(NS)); smap = {}
    def slot(i): return smap[i] * 16384
    def release(i): pool.append(smap[i])
    def setup_needed(): return allp[st["np"]][1] == 0 and st.get("su") != st["np"]
    def setup(nop=False):
        i, jj = allp[st["np"]]
        smap[i] = pool.pop(0)
        st["su"] = st["np"]
        e("s_add_u32 m0, %s, 0x%x" % (sLB, slot(i)))
        if i == 14:
            for j in range(4): e("v_add_u32 v%d, 128, v%d" % (vW(j), vW(j)))
            return 5
        if i >= 21:
            c, ph = (i - 21) % 7, (i - 21) // 7
            e("s_add_u32 %s, %s, 0x%x" % (sDo, sDb, (256 * c + 64 * ph) * 896))
            return 2
        if nop: e("s_nop 0")
        return 1
    def one():
        n = 1
        if setup_needed(): n += setup(True)
        i, jj = allp[st["np"]]; st["np"] += 1
        off = " offset:%d" % (jj * 1024) if jj else ""
        if i < 14 and i % 2 == 0:
            g.vmop("buffer_load_dwordx4 v%d, %s, %s offen%s lds" % (vX(jj), srd(sX), sCx(i // 2), off), ("it", i))
        elif i < 21:
            g.vmop("buffer_load_dwordx4 v%d, %s, %s offen%s lds" % (vW(jj), srd(sW), sCw(i // 2 if i < 14 else i - 14), off), ("it", i))
        else:
            g.vmop("buffer_load_dwordx4 v%d, %s, %s offen%s lds" % (vD(jj), srd(sWD), sDo, off), ("it", i))
        return n
    def can(): return st["np"] < len(allp) and (not setup_needed() or len(pool) > 0)
    def issue(n=1):
        k = 0
        for _ in range(n):
            if can(): k += one()
        return k
    def through(item):
        while st["np"] < len(allp) and allp[st["np"]][0] <= item: one()
    def mk_srd(d, b, n):
        e("s_mov_b32 s%d, s%d" % (d, b))
        e("s_and_b32 s%d, s%d, 0xffff" % (d + 1, b + 1))
        e("s_mov_b32 s%d, %d" % (d + 2, n))
        e("s_mov_b32 s%d, 0x20000" % (d + 3))
    def bases(vf, n):
        for j in range(n):
            e("v_add_u32 v%d, 0x10000, v%d" % (vf(j, 1), vf(j, 0)))
            e("v_add_u32 v%d, 0x20000, v%d" % (vf(j, 2), vf(j, 0)))

    SW = PW = 1
    issue(O("pro", 10))
    for i in range(2, 7): table(i)
    e("s_mul_i32 s59, s%d, %d" % (sMB, 14 * FS))
    e("s_lshl_b32 s61, s%d, 2" % sFB)
    e("s_add_u32 s59, s59, s61")
    e("s_add_u32 s59, s59, 0x%x" % FLAGOFF)
    e("v_lshl_add_u32 v%d, v0, 7, s59" % vFlag)
    e("s_lshl_b32 s%d, s51, 2" % sTB)
    e("s_add_u32 s%d, s%d, s53" % (sTB, sTB))
    e("s_mov_b32 s%d, s54" % sCB)
    mk_srd(sWD, 10, 1792 * 896); mk_srd(sH, 16, 2048 * 1792 * 2); mk_srd(sO, 12, 2048 * 896)
    e("s_mov_b32 s4, 0xbfb8aa3b"); e("s_mov_b32 s5, 0xbfb8aa3b"); e("s_mov_b32 s6, 1.0"); e("s_mov_b32 s7, 1.0")
    e("s_and_b32 s57, s%d, 1" % sWV)
    e("s_lshr_b32 s58, s%d, 1" % sWV)
    e("s_lshl_b32 s62, s58, 2")
    e("s_add_u32 s62, s62, s57")
    e("s_mul_i32 %s, s62, %d" % (sDb, 32 * 896))
    e("s_lshl_b32 s59, s%d, 7" % sCB)
    e("s_add_u32 %s, %s, s59" % (sDb, sDb))
    e("v_lshlrev_b32 v%d, 5, v%d" % (t0, rh))
    e("v_xor_b32 v%d, v%d, v%d" % (t0, t0, p7))
    e("v_add_u32 v%d, v%d, v%d" % (vD(0), t1, t0))
    for j in range(1, 4): e("v_add_u32 v%d, %d, v%d" % (vD(j), j * (7168 - 1024), vD(0)))
    e("v_lshlrev_b32 v%d, 4, v0" % vL16)
    e("s_lshl_b32 s59, s%d, 3" % sMB)
    e("s_lshl_b32 s60, s57, 2")
    e("s_add_u32 s59, s59, s60")
    e("s_mul_i32 s59, s59, 56")
    e("s_lshl_b32 s60, s%d, 2" % sFB)
    e("s_add_u32 s59, s59, s60")
    e("s_add_u32 s59, s59, s58")
    e("s_lshl_b32 %s, s59, 10" % sHs)
    e("s_mul_i32 s59, s%d, 224" % sTB)
    e("s_add_u32 s59, s59, s62")
    for m in range(4):
        e("s_xor_b32 s60, s%d, %d" % (sWV, m))
        e("s_mul_i32 s60, s60, 56")
        e("s_add_u32 s60, s60, s59")
        e("s_lshl_b32 s60, s60, 10")
        e("v_add_u32 v%d, s60, v%d" % (vH(m), vL16))
    e("s_mul_i32 s59, s51, 28")
    e("s_add_u32 s59, s59, s52")
    e("s_mul_i32 s59, s59, %d" % FS)
    e("s_add_u32 s59, s59, 0x%x" % FLAGOFF)
    e("v_min_u32 v%d, 13, v0" % vFlag2)
    e("v_lshl_add_u32 v%d, v%d, 2, s59" % (vFlag2, vFlag2))
    e("s_and_b32 s59, s51, 1")
    e("s_lshl_b32 s59, s59, 7")
    e("v_mov_b32 v%d, s59" % vArmA)
    e("v_mov_b32 v%d, 1" % vOne)
    tk, q4, sw, rr, cc, a0, q1 = T + 6, T + 7, T + 8, T + 9, T + 10, T + 11, T + 5
    e("v_and_b32 v%d, 15, v0" % tk)
    e("v_lshrrev_b32 v%d, 4, v0" % q4)
    e("v_bfe_u32 v%d, v0, 1, 3" % sw)
    e("v_xor_b32 v%d, v%d, v%d" % (sw, sw, q4))
    e("v_lshlrev_b32 v%d, 4, v%d" % (sw, sw))
    e("v_lshl_add_u32 v%d, v%d, 7, v%d" % (sw, tk, sw))
    e("s_lshl_b32 s59, s57, 13")
    e("v_add_u32 v%d, s59, v%d" % (vXB(0, 0), sw))
    e("v_xor_b32 v%d, 64, v%d" % (vXB(1, 0), vXB(0, 0)))
    bases(vXB, 2)
    e("v_bfe_u32 v%d, v0, 2, 2" % rr)
    e("v_and_b32 v%d, 3, v0" % cc)
    e("v_lshlrev_b32 v%d, 3, v%d" % (cc, cc))
    e("v_and_b32 v%d, 1, v%d" % (q1, q4))
    e("v_lshrrev_b32 v%d, 1, v%d" % (t0, rr))
    e("v_lshl_or_b32 v%d, v%d, 1, v%d" % (t0, q1, t0))
    e("v_lshl_add_u32 v%d, v%d, 3, v%d" % (a0, q4, rr))
    e("v_lshl_add_u32 v%d, v%d, 7, v%d" % (a0, a0, cc))
    e("s_lshl_b32 s59, s58, 1")
    e("v_xor_b32 v%d, s59, v%d" % (t1, t0))
    e("v_lshl_add_u32 v%d, v%d, 5, v%d" % (vWA(0, 0), t1, a0))
    e("v_xor_b32 v%d, 32, v%d" % (vWA(1, 0), vWA(0, 0)))
    bases(vWA, 2)
    e("v_lshl_add_u32 v%d, v%d, 2, v%d" % (a0, q4, rr))
    e("v_lshl_add_u32 v%d, v%d, 7, v%d" % (a0, a0, cc))
    e("v_lshl_add_u32 v%d, v%d, 5, v%d" % (a0, t0, a0))
    e("v_add_u32 v%d, %s, v%d" % (vDA(0, 0), sLB, a0))
    for c in range(1, 4): e("v_xor_b32 v%d, %d, v%d" % (vDA(c, 0), 32 * c, vDA(0, 0)))
    bases(vDA, 4)
    e("v_mul_u32_u24 v%d, 896, v%d" % (vOut, tk))
    if O("st2"):
        e("v_lshl_add_u32 v%d, v%d, 3, v%d" % (vOut, q4, vOut))
    else:
        e("v_lshl_add_u32 v%d, v%d, 5, v%d" % (vOut, q1, vOut))
        e("v_lshrrev_b32 v%d, 1, v%d" % (t1, q4))
        e("v_lshl_add_u32 v%d, v%d, 4, v%d" % (vOut, t1, vOut))
    e("s_lshl_b32 s60, s%d, 2" % sTB)
    e("s_add_u32 s60, s60, s%d" % sWV)
    e("s_mul_i32 s60, s60, %d" % (16 * 896))
    e("s_lshl_b32 s59, s%d, 7" % sCB)
    e("s_add_u32 %s, s60, s59" % sOut)
    e("v_add_u32 v%d, %s, v%d" % (T + 12, sLB, vL16))
    for mm in (1, 2, 3): e("v_xor_b32 v%d, %d, v%d" % (T + 12 + mm, mm * 4096, T + 12))

    def lds_ref(vf, byte): return "v%d offset:%d" % (vf(byte >> 16), byte & 0xffff)
    def s1_reads(s):
        n, kk = s // 2, s % 2
        ph = 0 if n < 7 else 1
        wb = slot(2 * n + 1 if ph == 0 else n + 7)
        def ard(a, j2):
            jf, mat = a >> 1, a & 1
            return lambda: g.lgop("ds_read_b64_tr_b16 %s, %s" % (rng("v", vAbuf(s & 1, a) + 2 * j2, 2), lds_ref(lambda b: vWA(jf, b), wb + mat * 8192 + kk * 4096 + j2 * 512)), ("rd", s, a & 2))
        out = [ard(0, 0), ard(0, 1)]
        if ph == 0:
            out += [lambda t=t: g.lgop("ds_read_b128 %s, %s" % (rng("a", (s * 4 + t) * 4, 4), lds_ref(lambda b: vXB(kk, b), slot(2 * n) + t * 2048)), ("rd", s, 0)) for t in range(4)]
        out += [ard(a, j2) for a in (1, 2, 3) for j2 in range(2)]
        return out
    D1 = lambda ph, a, t: ACC[ph] + (a * 4 + t) * 4
    def epilogue_ops(ph, pk):
        ops = []
        for t in range(4):
            G = [D1(ph, 0, t) + i for i in range(4)] + [D1(ph, 2, t) + i for i in range(4)]
            U = [D1(ph, 1, t) + i for i in range(4)] + [D1(ph, 3, t) + i for i in range(4)]
            def V(s, c=4): ops.append((c, lambda s=s: e(s)))
            if pk:
                for i in range(0, 8, 2): V("v_pk_mul_f32 %s, %s, s[4:5]" % (rng("v", G[i], 2), rng("v", G[i], 2)))
                for i in range(8): V("v_exp_f32 v%d, v%d" % (G[i], G[i]), 8)
                for i in range(0, 8, 2): V("v_pk_add_f32 %s, %s, s[6:7]" % (rng("v", G[i], 2), rng("v", G[i], 2)))
                for i in range(8): V("v_rcp_f32 v%d, v%d" % (G[i], G[i]), 8)
                for i in range(0, 8, 2): V("v_pk_mul_f32 %s, %s, %s" % (rng("v", G[i], 2), rng("v", G[i], 2), rng("v", U[i], 2)))
            else:
                for i in range(8): V("v_mul_f32 v%d, s4, v%d" % (G[i], G[i]))
                for i in range(8): V("v_exp_f32 v%d, v%d" % (G[i], G[i]), 8)
                for i in range(8): V("v_add_f32 v%d, 1.0, v%d" % (G[i], G[i]))
                for i in range(8): V("v_rcp_f32 v%d, v%d" % (G[i], G[i]), 8)
                for i in range(8): V("v_mul_f32 v%d, v%d, v%d" % (G[i], G[i], U[i]))
            for i in range(4): V("v_cvt_pk_bf16_f32 v%d, v%d, v%d" % (U[i], G[2 * i], G[2 * i + 1]))
            def stf(t=t, U=U):
                e(g.setoff(sHs, (t * 56 + 2 * ph) * 1024))
                g.vmop("buffer_store_dwordx4 %s, v%d, %s, %s offen sc1" % (rng("v", U[0], 4), vL16, srd(sH), sHs), ("hst", ph))
            ops.append((8, stf))
        return ops
    def only(w, nm):
        e("s_cmp_lg_u32 s%d, %d" % (sWV, w)); e("s_cbranch_scc1 %s" % nm)
    def signal(ph):
        only(SW, "L_nosig%d" % ph)
        if ph == 0:
            e("s_mov_b32 s61, 0")
            g.label("L_arm")
            e("v_readfirstlane_b32 s57, v%d" % vArm)
            e("s_addk_i32 s61, 1")
            e("s_cmp_ge_u32 s61, 0x40000")
            e("s_cbranch_scc1 L_armd")
            e("s_cmp_ge_u32 s57, 32")
            e("s_cbranch_scc1 L_armd")
            e("s_sleep 8")
            e("global_load_dword v%d, v%d, s[14:15] sc1" % (vArm, vArmA))
            e("s_waitcnt vmcnt(0)")
            e("s_branch L_arm")
            g.label("L_armd")
        e("s_mov_b64 exec, 0x3fff")
        e("global_store_dword v%d, v%d, s[16:17] offset:%d sc1" % (vFlag, vOne, 64 * ph))
        e("s_mov_b64 exec, -1")
        g.label("L_nosig%d" % ph)
    def poll_issue(ph):
        only(PW, "L_npi%d" % ph)
        e("global_load_dword v%d, v%d, s[16:17] offset:%d sc1" % (vPol, vFlag2, 64 * ph))
        g.label("L_npi%d" % ph)
        g.pi = len(g.vm)
    def gate(ph):
        only(PW, "L_pok%d" % ph)
        e("s_waitcnt vmcnt(%d)" % min(63, len(g.vm) - g.pi))
        e("s_mov_b32 s61, 0")
        g.label("L_poll%d" % ph)
        e("v_cmp_ne_u32 vcc, 1, v%d" % vPol)
        e("s_addk_i32 s61, 1")
        e("s_cmp_ge_u32 s61, 0x40000")
        e("s_cbranch_scc1 L_pok%d" % ph)
        e("s_cmp_eq_u64 vcc, 0")
        e("s_cbranch_scc1 L_pok%d" % ph)
        e("s_sleep %d" % O("slp", 2))
        e("global_load_dword v%d, v%d, s[16:17] offset:%d sc1" % (vPol, vFlag2, 64 * ph))
        e("s_waitcnt vmcnt(0)")
        e("s_branch L_poll%d" % ph)
        g.label("L_pok%d" % ph)
        e("s_barrier")

    def wd_reads(u):
        dst = lambda c: ("v", vAbuf(u & 1, c))
        return [lambda c=c, j2=j2: g.lgop("ds_read_b64_tr_b16 %s, %s" % (rng(dst(c)[0], dst(c)[1] + 2 * j2, 2), lds_ref(lambda b: vDA(c, b), slot(21 + u) + j2 * 2048)), ("r2", u))
                for c in range(4) for j2 in range(2)]
    sg = {"n": 0, "rel": 0}
    def stage_ready(minafter):
        u = sg["n"]
        return u < 7 and st["np"] >= 4 * (22 + u) + minafter
    def stage_release():
        while sg["rel"] < sg["done"]: release(21 + sg["rel"]); sg["rel"] += 1
    sg["done"] = 0
    hreg = lambda u, t: u * 16 + t * 4
    def h_load(u, t):
        ph, i = u // 7, u % 7
        if t == 0: e("s_mov_b32 %s, 0x%x" % (sH2, i * 8192))
        g.vmop("buffer_load_dwordx4 %s, v%d, %s, %s offen%s sc1" % (rng("a", hreg(u, t), 4), vH(t), srd(sH), sH2, " offset:2048" if ph else ""), ("hl", u, t))
    HD = O("hd", 12); PI1 = O("pi1", 2); G1 = O("g1", 4)
    hs = {"n": 0, "lim": 0}
    def hnext():
        h_load(hs["n"] // 4, hs["n"] % 4); hs["n"] += 1
    WF = O("wf", 28)
    def mem():
        if st["np"] < 4 * WF and can(): return issue(1)
        if hs["n"] < min(hs["lim"], 28):
            k = 2 if hs["n"] % 4 == 0 else 1
            hnext(); return k
        if can(): return issue(1)
        if hs["n"] < hs["lim"]:
            hnext(); return 1
        return 0
    issue(O("pro2", 8))
    g.wait(vm=("it", 1))
    e("s_barrier")
    stF(1)
    for r in s1_reads(0): r()
    issue(O("pro3", 2))
    epq = []
    GS = O("gs", 23)
    SIGS = O("sigs", 17)
    BUD = O("bud", 8); RB = O("rb", 2)
    carry = 0
    sgq = []; STG1 = 0; sgmark = []
    for s in range(28):
        n, kk = s // 2, s % 2
        ph = 0 if n < 7 else 1
        if s == 14:
            stA()
            e("s_nop 4")
            for k, (c, f) in enumerate(epilogue_ops(0, 1)):
                f()
                if k % O("rea", 10) == 0: issue(1)
            stA()
        if kk == 1:
            nb = n + 1
            need = []
            if nb <= 13:
                last = 2 * nb + 1 if nb < 7 else nb + 7
                through(last); need.append(("it", last))
            if s == SIGS:
                while epq: epq.pop(0)[1]()
                need.append(("hst", 0))
                assert g.al <= len(g.vm) - g._n(g.vm, ("hst", 0)) - 1
            if STG1 and stage_ready(O("sma", 6)) and s > 14 + sg["n"] and not sgq:
                need.append(("it", 21 + sg["n"])); sgq = [(4, r) for r in wd_reads(sg["n"])]; sg["n"] += 1
            g.wait(vm=need or None, lg=(0 if nb == 14 else ("rd", s, 0)))
            if s == GS: stA(); gate(0); stA()
            else: e("s_barrier")
            if nb <= 10: stF(1)
            if nb >= 7: stF(2)
            if s == SIGS: signal(0)
            for c in ([nb - 2] if nb < 14 else [12, 13]):
                if 0 <= c < 7: release(2 * c); release(2 * c + 1)
                elif c >= 7: release(c + 7)
        else:
            g.wait(lg=("rd", s, 0))
        for (s0, n0) in sgmark:
            if s >= s0 + 2 or s == 27: sg["done"] = max(sg["done"], n0)
        stage_release()
        if s == O("arml", 12):
            only(PW, "L_nal")
            e("global_load_dword v%d, v%d, s[14:15] sc1" % (vArm, vArmA))
            g.label("L_nal")
            g.al = len(g.vm)
        rds = s1_reads(s + 1) if s + 1 < 28 else []
        xs = s % 14
        rate = 4 if st["np"] < 21 * 4 else RB
        RG = [0, 1, 2, 3, 4, 5, 6, 8, 9, 10, 11, 12] if ph == 0 or s == 13 else [0, 1, 2, 3, 8, 9, 10, 11]
        if s == 13: RG = [0, 1, 2, 3, 8, 9, 10, 11]
        DG = {4: [2, 6, 10, 14], 3: [5, 9, 13], 2: [5, 13], 1: [13], 0: []}[rate] if not (ph == 0 and s != 13) else [3, 9, 13, 14]
        for m in range(16):
            a, t = m >> 2, m & 3
            if m == 8 and s < 27: g.wait(lg=("rd", s, 2))
            if s == O("ps", 21) and m == 8: poll_issue(0)
            D = D1(ph, a, t)
            e("%s %s, %s, %s, %s" % (MF, rng("v", D, 4), rng("v", vAbuf(s & 1, a), 4), rng("a", (xs * 4 + t) * 4, 4), "0" if xs == 0 else rng("v", D, 4)))
            budget = BUD + carry - (4 if m in (7, 15) else 0)
            if rds and m in RG: rds.pop(0)(); budget -= 4
            if s >= GS: hs["lim"] = min(28, 4 * (s - 14))
            if m in DG: budget -= 4 * mem()
            if (m + 1) in DG and m not in DG and can() and setup_needed(): budget -= 4 * setup()
            if sgq and m not in RG and m not in DG and m < 15:
                sgq.pop(0)[1](); budget -= 4
                if not sgq: sgmark.append((s, sg["n"]))
            while epq and budget >= epq[0][0]:
                c, f = epq.pop(0); f(); budget -= c
            carry = max(-8, min(budget, O("cmax", 4))) if epq else 0
        assert not rds
    stA(); stF(2)
    RE = O("re", 10)
    O2 = {1: (1,), 2: (1, 3)}[O("r2", 1)]
    hs["lim"] = 28
    e("s_nop 4")
    for cnt, (c, f) in enumerate(epilogue_ops(1, 1)):
        f()
        if cnt % RE == 0: mem()
        if cnt == 100:
            g.wait(vm=("it", 21))
            for r in wd_reads(0): r()
    stA(); stF(2); stF(3)
    SGQ = O("sgq", 6)
    A2 = ACC[0]
    D2 = lambda t, c: A2 + (t * 4 + c) * 4
    RW = T + 12
    def red_writes(m):
        return [lambda q=q: e("ds_write_b128 v%d, %s offset:%d" % (RW, rng("v", A2 + m * 16 + 4 * q, 4), m * 16384 + q * 1024)) for q in range(4)]
    GQ = O("gq", 22); PQ = O("pq", 18)
    for u in range(14):
        rds = []
        torder = (1, 2, 3, 0) if u == 13 else (0, 1, 2, 3)
        wq = []
        for ti, t in enumerate(torder):
            qi = 4 * u + ti
            if qi == PQ: poll_issue(1)
            if qi == GQ:
                for _ in range(O("gb", 4)): mem()
                stA(); gate(1); stA()
                hs["lim"] = 56
                for _ in range(O("ga2", 8)): mem()
            while hs["n"] <= 4 * u + 3: mem()
            need = [("hl", u, t)]
            if qi == SGQ: need.append(("hst", 1))
            if ti == 0:
                g.wait(vm=need, lg=("r2", u))
                release(21 + u)
                if u < 8: stF(3)
                if u >= 5: stF(4)
            elif ti == 1 and u + 1 < 14:
                through(22 + u); need.append(("it", 22 + u))
                g.wait(vm=need)
                rds = wd_reads(u + 1)
            else:
                g.wait(vm=need)
            if qi == SGQ:
                e("s_barrier"); signal(1); stA()
            if u == 13 and ti >= 2: wq += red_writes(torder[ti - 2]) if O("tw", 1) else []
            for c in range(4):
                D = D2(t, c)
                e("%s %s, %s, %s, %s" % (MF, rng("v", D, 4), rng("v", vAbuf(u & 1, c), 4), rng("a", hreg(u, t), 4), "0" if u == 0 else rng("v", D, 4)))
                if rds: rds.pop(0)()
                if wq and c >= 2: wq.pop(0)()
                if c in O2: mem()
    assert st["np"] == len(allp) and hs["n"] == 56
    stA(); stF(4)
    if O("tw", 1):
        for w in wq: w()
        e("s_nop 1")
        for w in red_writes(3): w()
    else:
        e("s_nop 4")
        for m in (1, 2, 3):
            for w in red_writes(m): w()
    e("s_waitcnt lgkmcnt(0)")
    e("s_barrier")
    R = A2
    for m in (1, 2, 3):
        for q in range(4):
            e("ds_read_b128 %s, v%d offset:%d" % (rng("v", R + m * 16 + q * 4, 4), RW + m, m * 16384 + q * 1024))
    for m in (1, 2, 3):
        e("s_waitcnt lgkmcnt(%d)" % (12 - 4 * m))
        for i in range(0, 16, 2): e("v_pk_add_f32 %s, %s, %s" % (rng("v", R + i, 2), rng("v", R + i, 2), rng("v", R + 16 * m + i, 2)))
    for i in range(8): e("v_cvt_pk_bf16_f32 v%d, v%d, v%d" % (R + 16 + i, R + 2 * i, R + 2 * i + 1))
    if O("st2"):
        for c in range(4):
            e("buffer_store_dwordx2 %s, v%d, %s, %s offen offset:%d" % (rng("v", R + 16 + 2 * c, 2), vOut, srd(sO), sOut, 32 * c))
    else:
        e("s_nop 1")
        for pr in range(2):
            e("v_permlane16_swap_b32 v%d, v%d" % (R + 16 + 4 * pr, R + 18 + 4 * pr))
            e("v_permlane16_swap_b32 v%d, v%d" % (R + 17 + 4 * pr, R + 19 + 4 * pr))
        e("buffer_store_dwordx4 %s, v%d, %s, %s offen" % (rng("v", R + 16, 4), vOut, srd(sO), sOut))
        e("buffer_store_dwordx4 %s, v%d, %s, %s offen offset:64" % (rng("v", R + 20, 4), vOut, srd(sO), sOut))
    if stamps:
        e("s_waitcnt vmcnt(0)")
        stA()
        e("s_waitcnt lgkmcnt(0)")
        e("s_add_u32 s16, s16, 0x8000000")
        e("s_addc_u32 s17, s17, 0")
        e("s_lshl_b32 s57, s2, 2")
        e("s_add_u32 s57, s57, s%d" % sWV)
        e("s_lshl_b32 s57, s57, 7")
        e("v_mov_b32 v1, s57")
        e("s_mov_b64 exec, 1")
        for j in range(g.nst):
            e("v_mov_b32 v2, s%d" % (SB + 2 * j))
            e("v_mov_b32 v3, s%d" % (SB + 1 + 2 * j))
            e("global_store_dwordx2 v1, v[2:3], s[16:17] offset:%d" % (8 * j))
            e("s_nop 1")
    e("s_endpgm")
    HELP = O("help", 7)
    g.label("L_help2")
    e("s_and_b32 s41, s40, 7")
    e("s_lshr_b32 s42, s40, 3")
    e("s_lshr_b32 s43, s41, 1")
    e("s_lshl_b32 s43, s43, 2")
    e("s_add_u32 s43, s43, s42")
    e("s_mul_i32 s44, s43, %d" % (28 * 3584))
    e("s_and_b32 s45, s41, 1")
    e("s_mul_i32 s45, s45, %d" % (7 * 256))
    e("s_add_u32 s44, s44, s45")
    e("s_addk_i32 s44, 128")
    e("v_mul_u32_u24 v1, 9363, v0")
    e("v_lshrrev_b32 v1, 16, v1")
    e("v_mul_u32_u24 v2, 7, v1")
    e("v_sub_u32 v2, v0, v2")
    e("v_mul_u32_u24 v1, 3584, v1")
    e("v_lshl_add_u32 v1, v2, 8, v1")
    e("v_mov_b32 v3, 0x7fffffff")
    e("v_cmp_gt_u32 vcc, 196, v0")
    e("v_lshlrev_b32 v4, 7, v0")
    e("s_lshl_b32 s46, s41, 2")
    e("v_cndmask_b32 v1, v3, v1, vcc")
    e("v_cndmask_b32 v5, v3, v4, vcc")
    e("v_cmp_gt_u32 vcc, 224, v0")
    e("s_add_u32 s46, s46, s42")
    e("s_mul_i32 s46, s46, %d" % (392 * 128))
    e("v_cndmask_b32 v6, v3, v4, vcc")
    e("s_waitcnt lgkmcnt(0)")
    mk_srd(20, 6, 448 * 3584); mk_srd(24, 8, 448 * 3584); mk_srd(28, 10, 1792 * 896)
    e("s_mul_i32 s49, s40, %d" % (7 * FS))
    e("s_add_u32 s49, s49, 0x%x" % FLAGOFF)
    e("v_lshl_add_u32 v14, v0, 2, s49")
    e("v_mov_b32 v15, 0")
    e("s_and_saveexec_b64 s[32:33], vcc")
    e("global_store_dword v14, v15, s[16:17] sc1")
    e("s_mov_b64 exec, -1")
    e("s_waitcnt vmcnt(0)")
    e("s_barrier")
    e("v_lshlrev_b32 v14, 7, v0")
    e("v_mov_b32 v15, 1")
    e("v_cmp_gt_u32 vcc, 2, v0")
    e("s_and_saveexec_b64 s[32:33], vcc")
    e("s_cbranch_execz L_nha")
    e("global_atomic_add v14, v15, s[14:15] sc1")
    g.label("L_nha")
    e("s_mov_b64 exec, -1")
    if HELP & 1:
        e("buffer_load_dword v8, v1, s[20:23], s44 offen")
        e("buffer_load_dword v9, v1, s[24:27], s44 offen")
    if HELP & 2:
        e("buffer_load_dword v10, v5, s[28:31], s46 offen")
        e("s_add_u32 s46, s46, %d" % (196 * 128))
        e("buffer_load_dword v11, v5, s[28:31], s46 offen")
    if HELP & 4:
        e("s_mul_i32 s46, s42, %d" % (128 * 896))
        e("s_mov_b32 s48, s42")
        e("s_waitcnt vmcnt(0)"); e("s_barrier")
        g.label("L_hl")
        e("buffer_load_dword v12, v6, s[28:31], s46 offen")
        e("s_add_u32 s47, s46, %d" % (224 * 128))
        e("buffer_load_dword v13, v6, s[28:31], s47 offen")
        e("s_add_u32 s46, s46, %d" % (4 * 128 * 896))
        e("s_cmp_ge_u32 s46, %d" % (1792 * 896))
        e("s_cselect_b32 s47, %d, 0" % (1792 * 896 - 64 * 896))
        e("s_sub_u32 s46, s46, s47")
        e("s_addk_i32 s48, 4")
        e("s_cmp_lt_u32 s48, 28")
        e("s_cbranch_scc1 L_hl")
    e("s_waitcnt vmcnt(0)")
    g.label("L_end2")
    e("s_endpgm")
    check_hazards(g.L)
    return g.L

from gen9 import emit
if __name__ == "__main__":
    out = sys.argv[1]
    stamps = 1 if "--stamps" in sys.argv else (2 if "--cyc" in sys.argv else 0)
    opt = {}
    for a in sys.argv[2:]:
        if a.startswith("-o"):
            k, _, v = a[2:].partition("=")
            opt[k] = int(v) if v else 1
    emit(build(stamps, opt), out)
```

```python
import sys
from asmlib import *
from hazard import check_hazards
from gen import Gen, rng

NS = 10
FLAGOFF = 8 << 20
FS = 128
MF = "v_mfma_f32_16x16x32_bf16"

def build(stamps=False, opt=None):
    opt = opt or {}
    O = lambda k, d=0: opt.get(k, d)
    g = Gen(stamps); e = g.e
    SB = 78
    def stamp():
        if stamps:
            r = SB + 2 * g.nst
            assert r + 1 < 102
            e("%s s[%d:%d]" % ("s_memtime" if stamps == 2 else "s_memrealtime", r, r + 1)); g.nst += 1
    FINE = O("fine")
    if O("both"):
        cntr = {"k": 0}
        sel = {1: (2, 3, 6, 7, 10), 2: (1, 2, 3, 7, 10), 3: (1, 2, 3, 4, 7)}[O("both")]
        def stamp2():
            cntr["k"] += 1
            if cntr["k"] in sel:
                r = SB + 2 * g.nst
                e("s_memrealtime s[%d:%d]" % (r, r + 1)); e("s_memtime s[%d:%d]" % (r + 2, r + 3)); g.nst += 2
    stA = (lambda: None) if FINE else (stamp2 if O("both") else stamp)
    stF = lambda k: stamp() if FINE == k else None
    srd = lambda b: rng("s", b, 4)
    sX, sW, sWD, sH, sO = 20, 24, 28, 32, 36
    sMB, sFB, sWV, sTB, sCB = 40, 41, 42, 43, 44
    sDo, sLB, sHs, sDb, sH2, sOut = "s45", "s46", "s47", "s48", "s50", "s8"
    sCx = lambda i: "s%d" % (64 + i)
    sCw = lambda i: "s%d" % (71 + i)
    vX = lambda j: 2 + j
    vW = lambda j: 6 + j
    vXB = lambda kk, b: 10 + b * 2 + kk
    vWA = lambda jf, b: 16 + b * 2 + jf
    vL16, vFlag = 22, 23
    vH = lambda t: 24 + t
    vAbuf = lambda buf, j: 32 + buf * 16 + j * 4
    ACC = [64, 128]
    vD = lambda j: 192 + j
    vFlag2, vArmA, vArm, vOut, vPol, vOne = 196, 197, 198, 199, 200, 201
    T = 204
    vDA = lambda c, b: 220 + b * 4 + c

    stamp()
    e("s_load_dwordx8 s[4:11], s[0:1], 0")
    e("s_load_dwordx4 s[12:15], s[0:1], 32")
    e("s_load_dwordx2 s[16:17], s[0:1], 48")
    e("s_sub_u32 s2, s2, 32")
    e("s_cmp_lt_u32 s2, 224")
    e("s_cbranch_scc1 L_main")
    e("s_add_u32 s40, s2, 32")
    e("s_cmp_ge_u32 s40, 32")
    e("s_cbranch_scc1 L_end2")
    e("s_getpc_b64 s[30:31]")
    e("v_lshlrev_b32 v4, 7, v0")
    e("v_cmp_gt_u32 vcc, @NLINES@, v0")
    e("s_and_saveexec_b64 s[32:33], vcc")
    e("s_cbranch_execz L_ncp")
    e("global_load_dword v7, v4, s[30:31]")
    g.label("L_ncp")
    e("s_mov_b64 exec, -1")
    e("s_branch L_help2")
    g.label("L_main")
    e("v_lshrrev_b32 v%d, 6, v0" % T)
    e("v_and_b32 v0, 63, v0")
    e("v_readfirstlane_b32 s%d, v%d" % (sWV, T))
    e("s_and_b32 s51, s2, 7")
    e("s_lshr_b32 s52, s2, 3")
    e("s_mul_i32 s53, s52, 37")
    e("s_lshr_b32 s53, s53, 8")
    e("s_mul_i32 s54, s53, 7")
    e("s_sub_u32 s54, s52, s54")
    e("s_lshr_b32 s55, s51, 1")
    e("s_lshl_b32 s%d, s55, 2" % sMB)
    e("s_add_u32 s%d, s%d, s53" % (sMB, sMB))
    e("s_and_b32 s56, s51, 1")
    e("s_mul_i32 s%d, s56, 7" % sFB)
    e("s_add_u32 s%d, s%d, s54" % (sFB, sFB))
    e("s_lshl_b32 s56, s53, 1")
    e("s_add_u32 s56, s56, s54")
    e("s_add_u32 s56, s56, s55")
    e("s_mul_i32 s57, s56, 37")
    e("s_lshr_b32 s57, s57, 8")
    e("s_mul_i32 s57, s57, 7")
    e("s_sub_u32 s3, s56, s57")
    r8, p7, rh, t0, t1, rl = T, T + 1, T + 2, T + 3, T + 4, T + 5
    e("v_lshrrev_b32 v%d, 3, v0" % r8)
    e("v_and_b32 v%d, 7, v0" % p7)
    e("v_lshrrev_b32 v%d, 1, v%d" % (rh, r8))
    e("v_xor_b32 v%d, v%d, v%d" % (t0, p7, rh))
    e("v_lshlrev_b32 v%d, 4, v%d" % (t0, t0))
    e("v_mul_u32_u24 v%d, 896, v%d" % (t1, r8))
    e("v_add_u32 v%d, v%d, v%d" % (vX(0), t1, t0))
    e("v_xor_b32 v%d, 64, v%d" % (t0, t0))
    e("s_movk_i32 s57, %d" % (7168 - 1024))
    e("v_add3_u32 v%d, v%d, v%d, s57" % (vX(1), t1, t0))
    e("v_add_u32 v%d, %d, v%d" % (vX(2), 2 * (7168 - 1024), vX(0)))
    e("v_add_u32 v%d, %d, v%d" % (vX(3), 2 * (7168 - 1024), vX(1)))
    e("s_lshr_b32 s55, s%d, 1" % sWV)
    e("v_and_b32 v%d, 1, v%d" % (rl, rh))
    e("v_lshlrev_b32 v%d, 5, v%d" % (t0, rl))
    e("v_lshlrev_b32 v%d, 4, v%d" % (p7, p7))
    e("v_xor_b32 v%d, v%d, v%d" % (t0, t0, p7))
    e("v_mul_u32_u24 v%d, 3584, v%d" % (rl, r8))
    e("v_add_u32 v%d, v%d, v%d" % (vW(0), rl, t0))
    e("v_xor_b32 v%d, 64, v%d" % (t0, t0))
    e("s_movk_i32 s57, %d" % (28672 - 1024))
    e("v_add3_u32 v%d, v%d, v%d, s57" % (vW(1), rl, t0))
    e("v_add_u32 v%d, %d, v%d" % (vW(2), 2 * (28672 - 1024), vW(0)))
    e("v_add_u32 v%d, %d, v%d" % (vW(3), 2 * (28672 - 1024), vW(1)))
    e("s_mul_i32 s18, s%d, %d" % (sMB, 128 * 896))
    e("s_mul_i32 s57, s%d, %d" % (sWV, 32 * 896))
    e("s_add_u32 s18, s18, s57")
    e("s_and_b32 s57, s%d, 1" % sWV)
    e("s_mul_i32 s19, s57, %d" % (32 * 3584))
    e("s_lshl_b32 s58, s%d, 8" % sFB)
    e("s_add_u32 s19, s19, s58")
    e("s_lshl_b32 %s, s%d, 12" % (sLB, sWV))
    def table(i):
        e("s_lshl_b32 s57, s3, 7")
        e("s_add_u32 %s, s57, s18" % sCx(i))
        e("s_mul_i32 s57, s3, %d" % (64 * 3584))
        e("s_add_u32 %s, s57, s19" % sCw(i))
        e("s_add_u32 s3, s3, 1")
        e("s_cmp_eq_u32 s3, 7")
        e("s_cselect_b32 s3, 0, s3")
    table(0); table(1)
    e("s_mov_b32 s%d, %d" % (sX + 2, 2048 * 896))
    e("s_mov_b32 s%d, 0x20000" % (sX + 3))
    e("s_mov_b32 s%d, %d" % (sW + 2, 448 * 3584))
    e("s_mov_b32 s%d, 0x20000" % (sW + 3))
    stF(5)
    e("s_waitcnt lgkmcnt(0)")
    stF(5)
    e("s_mov_b32 s%d, s4" % sX)
    e("s_and_b32 s%d, s5, 0xffff" % (sX + 1))
    e("s_cmp_eq_u32 s55, 0")
    e("s_cselect_b32 s%d, s6, s8" % sW)
    e("s_cselect_b32 s%d, s7, s9" % (sW + 1))
    e("s_and_b32 s%d, s%d, 0xffff" % (sW + 1, sW + 1))
    g.cur[sHs] = 0

    SCH = {0: "aaaaaaabbbbbbb", 1: "aabaabaaabbbbb", 2: "aaabaaaabbbbbb", 3: "aaabaabaabbbbb", 4: "aaaabaaabbbbbb", 5: "aababaababABBB".lower(), 6: "aabaabaabaBBBB".lower(), 7: "aabababababABB".lower(), 8: "abaabaababABBB".lower()}[O("sch", 0)]
    units = []; cnt_ = {"a": 0, "b": 0}
    for ch in SCH: units.append((0 if ch == "a" else 1, cnt_[ch])); cnt_[ch] += 1
    uitems = lambda n: [2 * units[n][1], 2 * units[n][1] + 1] if units[n][0] == 0 else [14 + units[n][1]]
    order = sum((uitems(n) for n in range(14)), []) + list(range(21, 35))
    pos = {it: k for k, it in enumerate(order)}
    LA = max(n for n in range(14) if units[n][0] == 0)
    vWb = lambda j: 232 + j
    allp = [(i, jj) for i in order for jj in range(4)]
    st = {"np": 0}
    pool = list(range(NS)); smap = {}
    def slot(i): return smap[i] * 16384
    def release(i): pool.append(smap[i])
    def setup_needed(): return allp[st["np"]][1] == 0 and st.get("su") != st["np"]
    def setup(nop=False):
        i, jj = allp[st["np"]]
        smap[i] = pool.pop(0)
        st["su"] = st["np"]
        e("s_add_u32 m0, %s, 0x%x" % (sLB, slot(i)))
        if i >= 21:
            c, ph = (i - 21) % 7, (i - 21) // 7
            e("s_add_u32 %s, %s, 0x%x" % (sDo, sDb, (256 * c + 64 * ph) * 896))
            return 2
        if nop: e("s_nop 0")
        return 1
    def one():
        n = 1
        if setup_needed(): n += setup(True)
        i, jj = allp[st["np"]]; st["np"] += 1
        off = " offset:%d" % (jj * 1024) if jj else ""
        if O("nodma") and st["np"] > 40 and st["np"] <= O("nodma"):
            g.vm.append(("it", i)); return n
        if i < 14 and i % 2 == 0:
            g.vmop("buffer_load_dwordx4 v%d, %s, %s offen%s lds" % (vX(jj), srd(sX), sCx(i // 2), off), ("it", i))
        elif i < 21:
            g.vmop("buffer_load_dwordx4 v%d, %s, %s offen%s lds" % (vW(jj) if i < 14 else vWb(jj), srd(sW), sCw(i // 2 if i < 14 else i - 14), off), ("it", i))
        else:
            g.vmop("buffer_load_dwordx4 v%d, %s, %s offen%s lds" % (vD(jj), srd(sWD), sDo, off), ("it", i))
        return n
    def can(): return st["np"] < len(allp) and (not setup_needed() or len(pool) > 0)
    def issue(n=1):
        k = 0
        for _ in range(n):
            if can(): k += one()
        return k
    def through(item):
        while st["np"] < len(allp) and st["np"] // 4 <= pos[item]: one()
    def mk_srd(d, b, n):
        e("s_mov_b32 s%d, s%d" % (d, b))
        e("s_and_b32 s%d, s%d, 0xffff" % (d + 1, b + 1))
        e("s_mov_b32 s%d, %d" % (d + 2, n))
        e("s_mov_b32 s%d, 0x20000" % (d + 3))
    def bases(vf, n):
        for j in range(n):
            e("v_add_u32 v%d, 0x10000, v%d" % (vf(j, 1), vf(j, 0)))
            e("v_add_u32 v%d, 0x20000, v%d" % (vf(j, 2), vf(j, 0)))

    SW = PW = 1
    issue(O("pro", 10))
    stF(5)
    for i in range(2, 7): table(i)
    for j in range(4): e("v_add_u32 v%d, 128, v%d" % (vWb(j), vW(j)))
    e("s_mul_i32 s59, s%d, %d" % (sMB, 14 * FS))
    e("s_lshl_b32 s61, s%d, 2" % sFB)
    e("s_add_u32 s59, s59, s61")
    e("s_add_u32 s59, s59, 0x%x" % FLAGOFF)
    e("v_lshl_add_u32 v%d, v0, 7, s59" % vFlag)
    e("s_lshl_b32 s%d, s51, 2" % sTB)
    e("s_add_u32 s%d, s%d, s53" % (sTB, sTB))
    e("s_mov_b32 s%d, s54" % sCB)
    mk_srd(sWD, 10, 1792 * 896); mk_srd(sH, 16, 2048 * 1792 * 2); mk_srd(sO, 12, 2048 * 896)
    e("s_mov_b32 s4, 0xbfb8aa3b"); e("s_mov_b32 s5, 0xbfb8aa3b"); e("s_mov_b32 s6, 1.0"); e("s_mov_b32 s7, 1.0")
    e("s_and_b32 s57, s%d, 1" % sWV)
    e("s_lshr_b32 s58, s%d, 1" % sWV)
    e("s_lshl_b32 s62, s58, 2")
    e("s_add_u32 s62, s62, s57")
    e("s_mul_i32 %s, s62, %d" % (sDb, 32 * 896))
    e("s_lshl_b32 s59, s%d, 7" % sCB)
    e("s_add_u32 %s, %s, s59" % (sDb, sDb))
    e("v_lshlrev_b32 v%d, 5, v%d" % (t0, rh))
    e("v_xor_b32 v%d, v%d, v%d" % (t0, t0, p7))
    e("v_add_u32 v%d, v%d, v%d" % (vD(0), t1, t0))
    for j in range(1, 4): e("v_add_u32 v%d, %d, v%d" % (vD(j), j * (7168 - 1024), vD(0)))
    e("v_lshlrev_b32 v%d, 4, v0" % vL16)
    e("s_lshl_b32 s59, s%d, 3" % sMB)
    e("s_lshl_b32 s60, s57, 2")
    e("s_add_u32 s59, s59, s60")
    e("s_mul_i32 s59, s59, 56")
    e("s_lshl_b32 s60, s%d, 2" % sFB)
    e("s_add_u32 s59, s59, s60")
    e("s_add_u32 s59, s59, s58")
    e("s_lshl_b32 %s, s59, 10" % sHs)
    e("s_mul_i32 s59, s%d, 224" % sTB)
    e("s_add_u32 s59, s59, s62")
    for m in range(4):
        e("s_xor_b32 s60, s%d, %d" % (sWV, m))
        e("s_mul_i32 s60, s60, 56")
        e("s_add_u32 s60, s60, s59")
        e("s_lshl_b32 s60, s60, 10")
        e("v_add_u32 v%d, s60, v%d" % (vH(m), vL16))
    e("s_mul_i32 s59, s51, 28")
    e("s_add_u32 s59, s59, s52")
    e("s_mul_i32 s59, s59, %d" % FS)
    e("s_add_u32 s59, s59, 0x%x" % FLAGOFF)
    e("v_min_u32 v%d, 13, v0" % vFlag2)
    e("v_lshl_add_u32 v%d, v%d, 2, s59" % (vFlag2, vFlag2))
    e("s_and_b32 s59, s51, 1")
    e("s_lshl_b32 s59, s59, 7")
    e("v_mov_b32 v%d, s59" % vArmA)
    e("v_mov_b32 v%d, 1" % vOne)
    tk, q4, sw, rr, cc, a0, q1 = T + 6, T + 7, T + 8, T + 9, T + 10, T + 11, T + 5
    e("v_and_b32 v%d, 15, v0" % tk)
    e("v_lshrrev_b32 v%d, 4, v0" % q4)
    e("v_bfe_u32 v%d, v0, 1, 3" % sw)
    e("v_xor_b32 v%d, v%d, v%d" % (sw, sw, q4))
    e("v_lshlrev_b32 v%d, 4, v%d" % (sw, sw))
    e("v_lshl_add_u32 v%d, v%d, 7, v%d" % (sw, tk, sw))
    e("s_lshl_b32 s59, s57, 13")
    e("v_add_u32 v%d, s59, v%d" % (vXB(0, 0), sw))
    e("v_xor_b32 v%d, 64, v%d" % (vXB(1, 0), vXB(0, 0)))
    bases(vXB, 2)
    e("v_bfe_u32 v%d, v0, 2, 2" % rr)
    e("v_and_b32 v%d, 3, v0" % cc)
    e("v_lshlrev_b32 v%d, 3, v%d" % (cc, cc))
    e("v_and_b32 v%d, 1, v%d" % (q1, q4))
    e("v_lshrrev_b32 v%d, 1, v%d" % (t0, rr))
    e("v_lshl_or_b32 v%d, v%d, 1, v%d" % (t0, q1, t0))
    e("v_lshl_add_u32 v%d, v%d, 3, v%d" % (a0, q4, rr))
    e("v_lshl_add_u32 v%d, v%d, 7, v%d" % (a0, a0, cc))
    e("s_lshl_b32 s59, s58, 1")
    e("v_xor_b32 v%d, s59, v%d" % (t1, t0))
    e("v_lshl_add_u32 v%d, v%d, 5, v%d" % (vWA(0, 0), t1, a0))
    e("v_xor_b32 v%d, 32, v%d" % (vWA(1, 0), vWA(0, 0)))
    bases(vWA, 2)
    e("v_lshl_add_u32 v%d, v%d, 2, v%d" % (a0, q4, rr))
    e("v_lshl_add_u32 v%d, v%d, 7, v%d" % (a0, a0, cc))
    e("v_lshl_add_u32 v%d, v%d, 5, v%d" % (a0, t0, a0))
    e("v_add_u32 v%d, %s, v%d" % (vDA(0, 0), sLB, a0))
    for c in range(1, 4): e("v_xor_b32 v%d, %d, v%d" % (vDA(c, 0), 32 * c, vDA(0, 0)))
    bases(vDA, 4)
    e("v_mul_u32_u24 v%d, 896, v%d" % (vOut, tk))
    if O("st2"):
        e("v_lshl_add_u32 v%d, v%d, 3, v%d" % (vOut, q4, vOut))
    else:
        e("v_lshl_add_u32 v%d, v%d, 5, v%d" % (vOut, q1, vOut))
        e("v_lshrrev_b32 v%d, 1, v%d" % (t1, q4))
        e("v_lshl_add_u32 v%d, v%d, 4, v%d" % (vOut, t1, vOut))
    e("s_lshl_b32 s60, s%d, 2" % sTB)
    e("s_add_u32 s60, s60, s%d" % sWV)
    e("s_mul_i32 s60, s60, %d" % (16 * 896))
    e("s_lshl_b32 s59, s%d, 7" % sCB)
    e("s_add_u32 %s, s60, s59" % sOut)
    e("v_add_u32 v%d, %s, v%d" % (T + 12, sLB, vL16))
    for mm in (1, 2, 3): e("v_xor_b32 v%d, %d, v%d" % (T + 12 + mm, mm * 4096, T + 12))

    def lds_ref(vf, byte): return "v%d offset:%d" % (vf(byte >> 16), byte & 0xffff)
    def s1_reads(s):
        n, kk = s // 2, s % 2
        ph, c = units[n]
        wb = slot(uitems(n)[-1])
        xs = 2 * c + kk
        def ard(a, j2):
            jf, mat = a >> 1, a & 1
            return lambda: g.lgop("ds_read_b64_tr_b16 %s, %s" % (rng("v", vAbuf(s & 1, a) + 2 * j2, 2), lds_ref(lambda b: vWA(jf, b), wb + mat * 8192 + kk * 4096 + j2 * 512)), ("rd", s, a & 2))
        out = [ard(0, 0), ard(0, 1)]
        if ph == 0:
            out += [lambda t=t: g.lgop("ds_read_b128 %s, %s" % (rng("a", (xs * 4 + t) * 4, 4), lds_ref(lambda b: vXB(kk, b), slot(2 * c) + t * 2048)), ("rd", s, 0)) for t in range(4)]
        out += [ard(a, j2) for a in (1, 2, 3) for j2 in range(2)]
        return out
    D1 = lambda ph, a, t: ACC[ph] + (a * 4 + t) * 4
    def epilogue_ops(ph, pk):
        ops = []
        for t in range(4):
            G = [D1(ph, 0, t) + i for i in range(4)] + [D1(ph, 2, t) + i for i in range(4)]
            U = [D1(ph, 1, t) + i for i in range(4)] + [D1(ph, 3, t) + i for i in range(4)]
            def V(s, c=4): ops.append((c, lambda s=s: e(s)))
            if pk:
                for i in range(0, 8, 2): V("v_pk_mul_f32 %s, %s, s[4:5]" % (rng("v", G[i], 2), rng("v", G[i], 2)))
                for i in range(8): V("v_exp_f32 v%d, v%d" % (G[i], G[i]), 8)
                for i in range(0, 8, 2): V("v_pk_add_f32 %s, %s, s[6:7]" % (rng("v", G[i], 2), rng("v", G[i], 2)))
                for i in range(8): V("v_rcp_f32 v%d, v%d" % (G[i], G[i]), 8)
                for i in range(0, 8, 2): V("v_pk_mul_f32 %s, %s, %s" % (rng("v", G[i], 2), rng("v", G[i], 2), rng("v", U[i], 2)))
            else:
                for i in range(8): V("v_mul_f32 v%d, s4, v%d" % (G[i], G[i]))
                for i in range(8): V("v_exp_f32 v%d, v%d" % (G[i], G[i]), 8)
                for i in range(8): V("v_add_f32 v%d, 1.0, v%d" % (G[i], G[i]))
                for i in range(8): V("v_rcp_f32 v%d, v%d" % (G[i], G[i]), 8)
                for i in range(8): V("v_mul_f32 v%d, v%d, v%d" % (G[i], G[i], U[i]))
            for i in range(4): V("v_cvt_pk_bf16_f32 v%d, v%d, v%d" % (U[i], G[2 * i], G[2 * i + 1]))
            def stf(t=t, U=U):
                e(g.setoff(sHs, (t * 56 + 2 * ph) * 1024))
                g.vmop("buffer_store_dwordx4 %s, v%d, %s, %s offen sc1" % (rng("v", U[0], 4), vL16, srd(sH), sHs), ("hst", ph))
            ops.append((8, stf))
        return ops
    def only(w, nm):
        e("s_cmp_lg_u32 s%d, %d" % (sWV, w)); e("s_cbranch_scc1 %s" % nm)
    def signal(ph):
        only(SW, "L_nosig%d" % ph)
        if ph == 0:
            e("s_mov_b32 s61, 0")
            g.label("L_arm")
            e("v_readfirstlane_b32 s57, v%d" % vArm)
            e("s_addk_i32 s61, 1")
            e("s_cmp_ge_u32 s61, 0x40000")
            e("s_cbranch_scc1 L_armd")
            e("s_cmp_ge_u32 s57, 32")
            e("s_cbranch_scc1 L_armd")
            e("s_sleep 8")
            e("global_load_dword v%d, v%d, s[14:15] sc1" % (vArm, vArmA))
            e("s_waitcnt vmcnt(0)")
            e("s_branch L_arm")
            g.label("L_armd")
        e("s_mov_b64 exec, 0x3fff")
        e("global_store_dword v%d, v%d, s[16:17] offset:%d sc1" % (vFlag, vOne, 64 * ph))
        e("s_mov_b64 exec, -1")
        g.label("L_nosig%d" % ph)
    def poll_issue(ph):
        only(PW, "L_npi%d" % ph)
        e("global_load_dword v%d, v%d, s[16:17] offset:%d sc1" % (vPol, vFlag2, 64 * ph))
        g.label("L_npi%d" % ph)
        g.pi = len(g.vm)
    def gate(ph):
        only(PW, "L_pok%d" % ph)
        e("s_waitcnt vmcnt(%d)" % min(63, len(g.vm) - g.pi))
        e("s_mov_b32 s61, 0")
        g.label("L_poll%d" % ph)
        e("v_cmp_ne_u32 vcc, 1, v%d" % vPol)
        e("s_addk_i32 s61, 1")
        e("s_cmp_ge_u32 s61, 0x40000")
        e("s_cbranch_scc1 L_pok%d" % ph)
        e("s_cmp_eq_u64 vcc, 0")
        e("s_cbranch_scc1 L_pok%d" % ph)
        e("s_sleep %d" % O("slp", 2))
        e("global_load_dword v%d, v%d, s[16:17] offset:%d sc1" % (vPol, vFlag2, 64 * ph))
        e("s_waitcnt vmcnt(0)")
        e("s_branch L_poll%d" % ph)
        g.label("L_pok%d" % ph)
        e("s_barrier")

    SREG = [("v", 64 + 4 * k) for k in range(16)] + [("a", 224 + 4 * k) for k in range(8)] + [("v", 240 + 4 * k) for k in range(4)]
    NSTG = O("nstg", 7)
    def areg(u, c):
        if u < NSTG: return SREG[u * 4 + c]
        if u > 14 - O("ml", 2): return ("v", 64 + (13 - u) * 16 + c * 4)
        return ("v", vAbuf(u & 1, c))
    def wd_reads(u):
        dst = lambda c: areg(u, c)
        return [lambda c=c, j2=j2: g.lgop("ds_read_b64_tr_b16 %s, %s" % (rng(dst(c)[0], dst(c)[1] + 2 * j2, 2), lds_ref(lambda b: vDA(c, b), slot(21 + u) + j2 * 2048)), ("r2", u))
                for c in range(4) for j2 in range(2)]
    sg = {"n": 0, "rel": 0}
    def stage_ready(minafter):
        u = sg["n"]
        return u < NSTG and st["np"] >= 4 * (22 + u) and g._n(g.vm, ("it", 21 + u)) >= minafter
    def stage_release():
        while sg["rel"] < sg["done"]: release(21 + sg["rel"]); sg["rel"] += 1
    sg["done"] = 0
    hreg = lambda u, t: u * 16 + t * 4
    def h_load(u, t):
        ph, i = u // 7, u % 7
        if g.cur.get("h2") != i: e("s_mov_b32 %s, 0x%x" % (sH2, i * 8192)); g.cur["h2"] = i
        g.vmop("buffer_load_dwordx4 %s, v%d, %s, %s offen%s sc1" % (rng("a", hreg(u, t), 4), vH(t), srd(sH), sH2, " offset:2048" if ph else ""), ("hl", u, t))
    HD = O("hd", 12); PI1 = O("pi1", 2); G1 = O("g1", 4)
    hs = {"n": 0, "lim": 0}
    ML = O("ml", 2)
    HORD = [(u, t) for u in range(14 - ML) for t in range(4)] + [(u, t) for t in (1, 2, 3, 0) for u in range(14 - ML, 14)]
    def hnext():
        h_load(*HORD[hs["n"]]); hs["n"] += 1
    WF = O("wf", 28)
    def mem():
        if st["np"] < 4 * WF and can(): return issue(1)
        if hs["n"] < min(hs["lim"], 28):
            k = 2 if hs["n"] % 4 == 0 else 1
            hnext(); return k
        if can(): return issue(1)
        if hs["n"] < hs["lim"]:
            hnext(); return 1
        return 0
    stF(5)
    issue(O("pro2", 8))
    stF(5)
    if FINE == 5: g.wait(vm=("it", 0)); stF(5)
    g.wait(vm=("it", 1))
    stF(5)
    e("s_barrier")
    if O("both") == 3: stA()
    stF(5)
    stF(1)
    for r in s1_reads(0): r()
    issue(O("pro3", 2))
    epq = []
    GS = O("gs", 23)
    SIGS = 2 * LA + 2 + O("sigd", 3)
    BUD = O("bud", 8); RB = O("rb", 2)
    carry = 0; racc = 0.0
    sgq = []; STG1 = 1; sgmark = []
    for s in range(28):
        n, kk = s // 2, s % 2
        ph, cu = units[n]
        if s == 2 * LA + 2:
            stA()
            e("s_nop 4")
            for k, (c, f) in enumerate(epilogue_ops(0, 1)):
                f()
                if k % O("rea", 10) == 0: issue(1)
            stA()
        if kk == 1:
            nb = n + 1
            need = []
            if nb <= 13:
                last = uitems(nb)[-1]
                through(last); need.append(("it", last))
            if s == SIGS:
                while epq: epq.pop(0)[1]()
                need.append(("hst", 0))
                assert g.al <= len(g.vm) - g._n(g.vm, ("hst", 0)) - 1
            if STG1 and stage_ready(O("sma", 8)) and s > 2 * LA + 2 and not sgq:
                need.append(("it", 21 + sg["n"])); sgq = [(4, r) for r in wd_reads(sg["n"])]; sg["n"] += 1
            g.wait(vm=need or None, lg=(0 if nb == 14 else ("rd", s, 0)))
            if s == GS: stA(); gate(0); stA()
            elif not O("nobar"): e("s_barrier")
            if nb <= 10: stF(1)
            if nb >= 7: stF(2)
            if s == SIGS: signal(0)
            for c in ([nb - 2] if nb < 14 else [12, 13]):
                if c >= 0:
                    for it in uitems(c): release(it)
        else:
            need = []
            if STG1 and stage_ready(O("sma", 8)) and s > 2 * LA + 2 and not sgq:
                need.append(("it", 21 + sg["n"])); sgq = [(4, r) for r in wd_reads(sg["n"])]; sg["n"] += 1
            g.wait(vm=need or None, lg=("rd", s, 0))
        for (s0, n0) in sgmark:
            if s >= s0 + 2 or s == 27: sg["done"] = max(sg["done"], n0)
        stage_release()
        if s == 2 * LA:
            only(PW, "L_nal")
            e("global_load_dword v%d, v%d, s[14:15] sc1" % (vArm, vArmA))
            g.label("L_nal")
            g.al = len(g.vm)
        rds = s1_reads(s + 1) if s + 1 < 28 else []
        xs = 2 * cu + kk
        nph = units[(s + 1) // 2][0] if s < 27 else 1
        racc += (O("ra10", 40) if st["np"] < 21 * 4 else O("rb10", 10 * RB)) / 10.0
        rate = min(4, int(racc)); racc -= rate
        RG = [0, 1, 2, 3, 4, 5, 6, 8, 9, 10, 11, 12] if nph == 0 else [0, 1, 2, 3, 8, 9, 10, 11]
        DG = {4: [2, 6, 10, 14], 3: [5, 9, 13], 2: [5, 13], 1: [13], 0: []}[rate] if nph == 1 else {4: [3, 9, 13, 14], 3: [3, 9, 14], 2: [5, 13], 1: [13], 0: []}[rate]
        for m in range(16):
            a, t = m >> 2, m & 3
            if m == 8 and s < 27: g.wait(lg=("rd", s, 2))
            if s == O("ps", 21) and m == 8 and GS <= 27: poll_issue(0)
            D = D1(ph, a, t)
            e("%s %s, %s, %s, %s" % (MF, rng("v", D, 4), rng("v", vAbuf(s & 1, a), 4), rng("a", (xs * 4 + t) * 4, 4), "0" if xs == 0 else rng("v", D, 4)))
            budget = BUD + carry - (4 if m in (7, 15) else 0)
            if rds and m in RG: rds.pop(0)(); budget -= 4
            if s >= GS: hs["lim"] = min(28, 4 * (s - 14))
            if m in DG: budget -= 4 * mem()
            if (m + 1) in DG and m not in DG and can() and setup_needed(): budget -= 4 * setup()
            for _ in range(0 if m in DG or m == 7 or m == 15 else (1 if m in RG else 2)):
                if sgq and m >= 4:
                    sgq.pop(0)[1]()
                    if not sgq: sgmark.append((s, sg["n"]))
            while epq and budget >= epq[0][0]:
                c, f = epq.pop(0); f(); budget -= c
            carry = max(-8, min(budget, O("cmax", 4))) if epq else 0
        assert not rds
    stA(); stF(2)
    print("issued by T:", st["np"], hs["n"], "staged", sg["n"])
    while sgq: sgq.pop(0)[1]()
    def stage_now():
        u = sg["n"]
        through(21 + u)
        g.wait(vm=("it", 21 + u), lg=0)
        sg["done"] = sg["n"]; stage_release()
        for r in wd_reads(u): r()
        sg["n"] += 1
    RE = O("re", 10)
    O2 = {1: (1,), 2: (1, 3)}[O("r2", 1)]
    if GS <= 27: hs["lim"] = 28
    e("s_nop 4")
    for cnt, (c, f) in enumerate(epilogue_ops(1, 1)):
        if GS > 27 and cnt == O("pie", 20): poll_issue(0)
        if GS > 27 and cnt == O("ga", 90): stA(); gate(0); stA(); hs["lim"] = 28
        f()
        if cnt % RE == 0 and cnt < O("rstop", 999): mem()
        if cnt % 16 == 3 and stage_ready(O("smb", 6)): stage_now()
    while sg["n"] < NSTG: stage_now()
    if NSTG == 0:
        g.wait(vm=("it", 21))
        for r in wd_reads(0): r()
    stA(); stF(2); stF(3)
    for _ in range(O("pre", 0)): mem()
    SGQ = O("sgq", 6)
    A2 = ACC[1]
    D2 = lambda t, c: A2 + (t * 4 + c) * 4
    RW = T + 12
    def red_writes(m):
        return [lambda q=q: e("ds_write_b128 v%d, %s offset:%d" % (RW, rng("v", A2 + m * 16 + 4 * q, 4), m * 16384 + q * 1024)) for q in range(4)]
    GQ = O("gq", 22); PQ = O("pq", 18)
    rds = []; wq = []
    for qi, (u, t) in enumerate(HORD):
        if qi == PQ: poll_issue(1)
        if qi == GQ:
            for _ in range(O("gb", 4)): mem()
            stA(); gate(1); stA()
            hs["lim"] = 56
            for _ in range(O("ga2", 8)): mem()
        while hs["n"] <= min(55, (qi | 3)): mem()
        need = [("hl", u, t)]
        if qi == SGQ: need.append(("hst", 1))
        merged = u >= 14 - ML
        if qi == 4 * (14 - ML):
            assert not rds
            g.wait(vm=need, lg=0)
        elif not merged and t == 0:
            assert not rds
            g.wait(vm=need, lg=(0 if u == 0 else ("r2", u) if u >= NSTG else None))
            if u == 0: sg["done"] = NSTG; stage_release()
            if u >= NSTG: release(21 + u)
            if u < 8: stF(3)
            if u >= 5: stF(4)
        elif not merged and t == 1 and NSTG <= u + 1:
            lastu = u + 1 if u + 1 < 14 - ML else 13
            through(21 + lastu); need.append(("it", 21 + lastu))
            g.wait(vm=need)
            rds = sum((wd_reads(k) for k in range(u + 1, lastu + 1)), [])
        else:
            g.wait(vm=need)
        if qi == SGQ:
            e("s_barrier"); signal(1); stA()
        for c in range(4):
            D = D2(t, c)
            A = areg(u, c)
            e("%s %s, %s, %s, %s" % (MF, rng("v", D, 4), rng(A[0], A[1], 4), rng("a", hreg(u, t), 4), "0" if u == 0 else rng("v", D, 4)))
            for _ in range(1 if len(rds) <= 8 - O("zz", 0) else ML):
                if rds: rds.pop(0)()
            wq = [(d - 1, w) for d, w in wq]
            if wq and wq[0][0] <= 0 and c % 2 == 1: wq.pop(0)[1]()
            if c in O2: mem()
        if u == 13 and t != 0: wq += [(5, w) for w in red_writes(t)]
    assert st["np"] == len(allp) and hs["n"] == 56
    stA(); stF(4)
    if ML == 1: e("s_nop 1")
    for d, w in wq: w()
    e("s_waitcnt lgkmcnt(0)")
    e("s_barrier")
    R = A2
    for m in (1, 2, 3):
        for q in range(4):
            e("ds_read_b128 %s, v%d offset:%d" % (rng("v", R + m * 16 + q * 4, 4), RW + m, m * 16384 + q * 1024))
    for m in (1, 2, 3):
        e("s_waitcnt lgkmcnt(%d)" % (12 - 4 * m))
        for i in range(0, 16, 2): e("v_pk_add_f32 %s, %s, %s" % (rng("v", R + i, 2), rng("v", R + i, 2), rng("v", R + 16 * m + i, 2)))
    for i in range(8): e("v_cvt_pk_bf16_f32 v%d, v%d, v%d" % (R + 16 + i, R + 2 * i, R + 2 * i + 1))
    if O("st2"):
        for c in range(4):
            e("buffer_store_dwordx2 %s, v%d, %s, %s offen offset:%d" % (rng("v", R + 16 + 2 * c, 2), vOut, srd(sO), sOut, 32 * c))
    else:
        e("s_nop 1")
        for pr in range(2):
            e("v_permlane16_swap_b32 v%d, v%d" % (R + 16 + 4 * pr, R + 18 + 4 * pr))
            e("v_permlane16_swap_b32 v%d, v%d" % (R + 17 + 4 * pr, R + 19 + 4 * pr))
        e("buffer_store_dwordx4 %s, v%d, %s, %s offen" % (rng("v", R + 16, 4), vOut, srd(sO), sOut))
        e("buffer_store_dwordx4 %s, v%d, %s, %s offen offset:64" % (rng("v", R + 20, 4), vOut, srd(sO), sOut))
    if stamps:
        e("s_waitcnt vmcnt(0)")
        stA()
        e("s_waitcnt lgkmcnt(0)")
        e("s_add_u32 s16, s16, 0x8000000")
        e("s_addc_u32 s17, s17, 0")
        e("s_lshl_b32 s57, s2, 2")
        e("s_add_u32 s57, s57, s%d" % sWV)
        e("s_lshl_b32 s57, s57, 7")
        e("v_mov_b32 v1, s57")
        e("s_mov_b64 exec, 1")
        for j in range(g.nst):
            e("v_mov_b32 v2, s%d" % (SB + 2 * j))
            e("v_mov_b32 v3, s%d" % (SB + 1 + 2 * j))
            e("global_store_dwordx2 v1, v[2:3], s[16:17] offset:%d" % (8 * j))
            e("s_nop 1")
    e("s_endpgm")
    HELP = O("help", 7)
    g.label("L_help2")
    e("s_and_b32 s41, s40, 7")
    e("s_lshr_b32 s42, s40, 3")
    e("s_lshr_b32 s43, s41, 1")
    e("s_lshl_b32 s43, s43, 2")
    e("s_add_u32 s43, s43, s42")
    e("s_mul_i32 s44, s43, %d" % (28 * 3584))
    e("s_and_b32 s45, s41, 1")
    e("s_mul_i32 s45, s45, %d" % (7 * 256))
    e("s_add_u32 s44, s44, s45")
    e("s_addk_i32 s44, 128")
    e("v_mul_u32_u24 v1, 9363, v0")
    e("v_lshrrev_b32 v1, 16, v1")
    e("v_mul_u32_u24 v2, 7, v1")
    e("v_sub_u32 v2, v0, v2")
    e("v_mul_u32_u24 v1, 3584, v1")
    e("v_lshl_add_u32 v1, v2, 8, v1")
    e("v_mov_b32 v3, 0x7fffffff")
    e("v_cmp_gt_u32 vcc, 196, v0")
    e("v_lshlrev_b32 v4, 7, v0")
    e("s_lshl_b32 s46, s41, 2")
    e("v_cndmask_b32 v1, v3, v1, vcc")
    e("v_cndmask_b32 v5, v3, v4, vcc")
    e("v_cmp_gt_u32 vcc, 224, v0")
    e("s_add_u32 s46, s46, s42")
    e("s_mul_i32 s46, s46, %d" % (392 * 128))
    e("v_cndmask_b32 v6, v3, v4, vcc")
    e("s_waitcnt lgkmcnt(0)")
    mk_srd(20, 6, 448 * 3584); mk_srd(24, 8, 448 * 3584); mk_srd(28, 10, 1792 * 896)
    e("s_mul_i32 s49, s40, %d" % (7 * FS))
    e("s_add_u32 s49, s49, 0x%x" % FLAGOFF)
    e("v_lshl_add_u32 v14, v0, 2, s49")
    e("v_mov_b32 v15, 0")
    e("s_and_saveexec_b64 s[32:33], vcc")
    e("global_store_dword v14, v15, s[16:17] sc1")
    e("s_mov_b64 exec, -1")
    e("s_waitcnt vmcnt(0)")
    e("s_barrier")
    e("v_lshlrev_b32 v14, 7, v0")
    e("v_mov_b32 v15, 1")
    e("v_cmp_gt_u32 vcc, 2, v0")
    e("s_and_saveexec_b64 s[32:33], vcc")
    e("s_cbranch_execz L_nha")
    e("global_atomic_add v14, v15, s[14:15] sc1")
    g.label("L_nha")
    e("s_mov_b64 exec, -1")
    if HELP & 1:
        e("buffer_load_dword v8, v1, s[20:23], s44 offen")
        e("buffer_load_dword v9, v1, s[24:27], s44 offen")
    if HELP & 2:
        e("buffer_load_dword v10, v5, s[28:31], s46 offen")
        e("s_add_u32 s46, s46, %d" % (196 * 128))
        e("buffer_load_dword v11, v5, s[28:31], s46 offen")
    if HELP & 4:
        e("s_mul_i32 s46, s42, %d" % (128 * 896))
        e("s_mov_b32 s48, s42")
        e("s_waitcnt vmcnt(0)"); e("s_barrier")
        g.label("L_hl")
        e("buffer_load_dword v12, v6, s[28:31], s46 offen")
        e("s_add_u32 s47, s46, %d" % (224 * 128))
        e("buffer_load_dword v13, v6, s[28:31], s47 offen")
        e("s_add_u32 s46, s46, %d" % (4 * 128 * 896))
        e("s_cmp_ge_u32 s46, %d" % (1792 * 896))
        e("s_cselect_b32 s47, %d, 0" % (1792 * 896 - 64 * 896))
        e("s_sub_u32 s46, s46, s47")
        e("s_addk_i32 s48, 4")
        e("s_cmp_lt_u32 s48, 28")
        e("s_cbranch_scc1 L_hl")
    e("s_waitcnt vmcnt(0)")
    g.label("L_end2")
    e("s_endpgm")
    check_hazards(g.L)
    return g.L

from gen9 import emit
if __name__ == "__main__":
    out = sys.argv[1]
    stamps = 1 if "--stamps" in sys.argv else (2 if "--cyc" in sys.argv else 0)
    opt = {}
    for a in sys.argv[2:]:
        if a.startswith("-o"):
            k, _, v = a[2:].partition("=")
            opt[k] = int(v) if v else 1
    emit(build(stamps, opt), out)
```

```python
import sys
from asmlib import *
from hazard import check_hazards
from gen import Gen, rng

NS = 10
FLAGOFF = 8 << 20
FS = 128
MF = "v_mfma_f32_16x16x32_bf16"

def build(stamps=False, opt=None):
    opt = opt or {}
    O = lambda k, d=0: opt.get(k, d)
    g = Gen(stamps); e = g.e
    SB = 78
    def stamp():
        if stamps:
            r = SB + 2 * g.nst
            assert r + 1 < 102
            e("%s s[%d:%d]" % ("s_memtime" if stamps == 2 else "s_memrealtime", r, r + 1)); g.nst += 1
    FINE = O("fine")
    if O("both"):
        cntr = {"k": 0}
        sel = {1: (2, 3, 6, 7, 10), 2: (1, 2, 3, 7, 10)}[O("both")]
        def stamp2():
            cntr["k"] += 1
            if cntr["k"] in sel:
                r = SB + 2 * g.nst
                e("s_memrealtime s[%d:%d]" % (r, r + 1)); e("s_memtime s[%d:%d]" % (r + 2, r + 3)); g.nst += 2
    stA = (lambda: None) if FINE else (stamp2 if O("both") else stamp)
    stF = lambda k: stamp() if FINE == k else None
    srd = lambda b: rng("s", b, 4)
    sX, sW, sWD, sH, sO = 20, 24, 28, 32, 36
    sMB, sFB, sWV, sTB, sCB = 40, 41, 42, 43, 44
    sDo, sLB, sHs, sDb, sH2, sOut = "s45", "s46", "s47", "s48", "s50", "s8"
    sCx = lambda i: "s%d" % (64 + i)
    sCw = lambda i: "s%d" % (71 + i)
    vX = lambda j: 2 + j
    vW = lambda j: 6 + j
    vXB = lambda kk, b: 10 + b * 2 + kk
    vWA = lambda jf, b: 16 + b * 2 + jf
    vL16, vFlag = 22, 23
    vH = lambda t: 24 + t
    vAbuf = lambda buf, j: 32 + buf * 16 + j * 4
    ACC = [64, 128]
    vD = lambda j: 192 + j
    vFlag2, vArmA, vArm, vOut, vPol, vOne = 196, 197, 198, 199, 200, 201
    T = 204
    vDA = lambda c, b: 220 + b * 4 + c

    stamp()
    e("s_load_dwordx8 s[4:11], s[0:1], 0")
    e("s_load_dwordx4 s[12:15], s[0:1], 32")
    e("s_load_dwordx2 s[16:17], s[0:1], 48")
    e("s_sub_u32 s2, s2, 32")
    e("s_cmp_lt_u32 s2, 224")
    e("s_cbranch_scc1 L_main")
    e("s_add_u32 s40, s2, 32")
    e("s_cmp_ge_u32 s40, 32")
    e("s_cbranch_scc1 L_end2")
    e("s_getpc_b64 s[30:31]")
    e("v_lshlrev_b32 v4, 7, v0")
    e("v_cmp_gt_u32 vcc, @NLINES@, v0")
    e("s_and_saveexec_b64 s[32:33], vcc")
    e("s_cbranch_execz L_ncp")
    e("global_load_dword v7, v4, s[30:31]")
    g.label("L_ncp")
    e("s_mov_b64 exec, -1")
    e("s_branch L_help2")
    g.label("L_main")
    e("v_lshrrev_b32 v%d, 6, v0" % T)
    e("v_and_b32 v0, 63, v0")
    e("v_readfirstlane_b32 s%d, v%d" % (sWV, T))
    e("s_and_b32 s51, s2, 7")
    e("s_lshr_b32 s52, s2, 3")
    e("s_mul_i32 s53, s52, 37")
    e("s_lshr_b32 s53, s53, 8")
    e("s_mul_i32 s54, s53, 7")
    e("s_sub_u32 s54, s52, s54")
    e("s_lshr_b32 s55, s51, 1")
    e("s_lshl_b32 s%d, s55, 2" % sMB)
    e("s_add_u32 s%d, s%d, s53" % (sMB, sMB))
    e("s_and_b32 s56, s51, 1")
    e("s_mul_i32 s%d, s56, 7" % sFB)
    e("s_add_u32 s%d, s%d, s54" % (sFB, sFB))
    e("s_lshl_b32 s56, s53, 1")
    e("s_add_u32 s56, s56, s54")
    e("s_add_u32 s56, s56, s55")
    e("s_mul_i32 s57, s56, 37")
    e("s_lshr_b32 s57, s57, 8")
    e("s_mul_i32 s57, s57, 7")
    e("s_sub_u32 s3, s56, s57")
    r8, p7, rh, t0, t1, rl = T, T + 1, T + 2, T + 3, T + 4, T + 5
    e("v_lshrrev_b32 v%d, 3, v0" % r8)
    e("v_and_b32 v%d, 7, v0" % p7)
    e("v_lshrrev_b32 v%d, 1, v%d" % (rh, r8))
    e("v_xor_b32 v%d, v%d, v%d" % (t0, p7, rh))
    e("v_lshlrev_b32 v%d, 4, v%d" % (t0, t0))
    e("v_mul_u32_u24 v%d, 896, v%d" % (t1, r8))
    e("v_add_u32 v%d, v%d, v%d" % (vX(0), t1, t0))
    e("v_xor_b32 v%d, 64, v%d" % (t0, t0))
    e("s_movk_i32 s57, %d" % (7168 - 1024))
    e("v_add3_u32 v%d, v%d, v%d, s57" % (vX(1), t1, t0))
    e("v_add_u32 v%d, %d, v%d" % (vX(2), 2 * (7168 - 1024), vX(0)))
    e("v_add_u32 v%d, %d, v%d" % (vX(3), 2 * (7168 - 1024), vX(1)))
    e("s_lshr_b32 s55, s%d, 1" % sWV)
    e("v_and_b32 v%d, 1, v%d" % (rl, rh))
    e("v_lshlrev_b32 v%d, 5, v%d" % (t0, rl))
    e("v_lshlrev_b32 v%d, 4, v%d" % (p7, p7))
    e("v_xor_b32 v%d, v%d, v%d" % (t0, t0, p7))
    e("v_mul_u32_u24 v%d, 3584, v%d" % (rl, r8))
    e("v_add_u32 v%d, v%d, v%d" % (vW(0), rl, t0))
    e("v_xor_b32 v%d, 64, v%d" % (t0, t0))
    e("s_movk_i32 s57, %d" % (28672 - 1024))
    e("v_add3_u32 v%d, v%d, v%d, s57" % (vW(1), rl, t0))
    e("v_add_u32 v%d, %d, v%d" % (vW(2), 2 * (28672 - 1024), vW(0)))
    e("v_add_u32 v%d, %d, v%d" % (vW(3), 2 * (28672 - 1024), vW(1)))
    e("s_mul_i32 s18, s%d, %d" % (sMB, 128 * 896))
    e("s_mul_i32 s57, s%d, %d" % (sWV, 32 * 896))
    e("s_add_u32 s18, s18, s57")
    e("s_and_b32 s57, s%d, 1" % sWV)
    e("s_mul_i32 s19, s57, %d" % (32 * 3584))
    e("s_lshl_b32 s58, s%d, 8" % sFB)
    e("s_add_u32 s19, s19, s58")
    e("s_lshl_b32 %s, s%d, 12" % (sLB, sWV))
    def table(i):
        e("s_lshl_b32 s57, s3, 7")
        e("s_add_u32 %s, s57, s18" % sCx(i))
        e("s_mul_i32 s57, s3, %d" % (64 * 3584))
        e("s_add_u32 %s, s57, s19" % sCw(i))
        e("s_add_u32 s3, s3, 1")
        e("s_cmp_eq_u32 s3, 7")
        e("s_cselect_b32 s3, 0, s3")
    table(0); table(1)
    e("s_mov_b32 s%d, %d" % (sX + 2, 2048 * 896))
    e("s_mov_b32 s%d, 0x20000" % (sX + 3))
    e("s_mov_b32 s%d, %d" % (sW + 2, 448 * 3584))
    e("s_mov_b32 s%d, 0x20000" % (sW + 3))
    stF(5)
    e("s_waitcnt lgkmcnt(0)")
    stF(5)
    e("s_mov_b32 s%d, s4" % sX)
    e("s_and_b32 s%d, s5, 0xffff" % (sX + 1))
    e("s_cmp_eq_u32 s55, 0")
    e("s_cselect_b32 s%d, s6, s8" % sW)
    e("s_cselect_b32 s%d, s7, s9" % (sW + 1))
    e("s_and_b32 s%d, s%d, 0xffff" % (sW + 1, sW + 1))
    g.cur[sHs] = 0

    SCH = {0: "aaaaaaabbbbbbb", 1: "aabaabaaabbbbb", 2: "aaabaaaabbbbbb", 3: "aaabaabaabbbbb", 4: "aaaabaaabbbbbb", 5: "aababaababABBB".lower(), 6: "aabaabaabaBBBB".lower(), 7: "aabababababABB".lower(), 8: "abaabaababABBB".lower()}[O("sch", 0)]
    units = []; cnt_ = {"a": 0, "b": 0}
    for ch in SCH: units.append((0 if ch == "a" else 1, cnt_[ch])); cnt_[ch] += 1
    uitems = lambda n: [2 * units[n][1], 2 * units[n][1] + 1] if units[n][0] == 0 else [14 + units[n][1]]
    order = sum((uitems(n) for n in range(14)), []) + list(range(21, 35))
    pos = {it: k for k, it in enumerate(order)}
    LA = max(n for n in range(14) if units[n][0] == 0)
    vWb = lambda j: 232 + j
    allp = [(i, jj) for i in order for jj in range(4)]
    st = {"np": 0}
    pool = list(range(NS)); smap = {}
    def slot(i): return smap[i] * 16384
    def release(i): pool.append(smap[i])
    def setup_needed(): return allp[st["np"]][1] == 0 and st.get("su") != st["np"]
    def setup(nop=False):
        i, jj = allp[st["np"]]
        smap[i] = pool.pop(0)
        st["su"] = st["np"]
        e("s_add_u32 m0, %s, 0x%x" % (sLB, slot(i)))
        if i >= 21:
            c, ph = (i - 21) % 7, (i - 21) // 7
            e("s_add_u32 %s, %s, 0x%x" % (sDo, sDb, (256 * c + 64 * ph) * 896))
            return 2
        if nop: e("s_nop 0")
        return 1
    def one():
        n = 1
        if setup_needed(): n += setup(True)
        i, jj = allp[st["np"]]; st["np"] += 1
        off = " offset:%d" % (jj * 1024) if jj else ""
        if i < 14 and i % 2 == 0:
            g.vmop("buffer_load_dwordx4 v%d, %s, %s offen%s lds" % (vX(jj), srd(sX), sCx(i // 2), off), ("it", i))
        elif i < 21:
            g.vmop("buffer_load_dwordx4 v%d, %s, %s offen%s lds" % (vW(jj) if i < 14 else vWb(jj), srd(sW), sCw(i // 2 if i < 14 else i - 14), off), ("it", i))
        else:
            g.vmop("buffer_load_dwordx4 v%d, %s, %s offen%s lds" % (vD(jj), srd(sWD), sDo, off), ("it", i))
        return n
    def can(): return st["np"] < len(allp) and (not setup_needed() or len(pool) > 0)
    def issue(n=1):
        k = 0
        for _ in range(n):
            if can(): k += one()
        return k
    def through(item):
        while st["np"] < len(allp) and st["np"] // 4 <= pos[item]: one()
    def mk_srd(d, b, n):
        e("s_mov_b32 s%d, s%d" % (d, b))
        e("s_and_b32 s%d, s%d, 0xffff" % (d + 1, b + 1))
        e("s_mov_b32 s%d, %d" % (d + 2, n))
        e("s_mov_b32 s%d, 0x20000" % (d + 3))
    def bases(vf, n):
        for j in range(n):
            e("v_add_u32 v%d, 0x10000, v%d" % (vf(j, 1), vf(j, 0)))
            e("v_add_u32 v%d, 0x20000, v%d" % (vf(j, 2), vf(j, 0)))

    SW = PW = 1
    issue(O("pro", 10))
    stF(5)
    for i in range(2, 7): table(i)
    for j in range(4): e("v_add_u32 v%d, 128, v%d" % (vWb(j), vW(j)))
    e("s_mul_i32 s59, s%d, %d" % (sMB, 14 * FS))
    e("s_lshl_b32 s61, s%d, 2" % sFB)
    e("s_add_u32 s59, s59, s61")
    e("s_add_u32 s59, s59, 0x%x" % FLAGOFF)
    e("v_lshl_add_u32 v%d, v0, 7, s59" % vFlag)
    e("s_lshl_b32 s%d, s51, 2" % sTB)
    e("s_add_u32 s%d, s%d, s53" % (sTB, sTB))
    e("s_mov_b32 s%d, s54" % sCB)
    mk_srd(sWD, 10, 1792 * 896); mk_srd(sH, 16, 2048 * 1792 * 2); mk_srd(sO, 12, 2048 * 896)
    e("s_mov_b32 s4, 0xbfb8aa3b"); e("s_mov_b32 s5, 0xbfb8aa3b"); e("s_mov_b32 s6, 1.0"); e("s_mov_b32 s7, 1.0")
    e("s_and_b32 s57, s%d, 1" % sWV)
    e("s_lshr_b32 s58, s%d, 1" % sWV)
    e("s_lshl_b32 s62, s58, 2")
    e("s_add_u32 s62, s62, s57")
    e("s_mul_i32 %s, s62, %d" % (sDb, 32 * 896))
    e("s_lshl_b32 s59, s%d, 7" % sCB)
    e("s_add_u32 %s, %s, s59" % (sDb, sDb))
    e("v_lshlrev_b32 v%d, 5, v%d" % (t0, rh))
    e("v_xor_b32 v%d, v%d, v%d" % (t0, t0, p7))
    e("v_add_u32 v%d, v%d, v%d" % (vD(0), t1, t0))
    for j in range(1, 4): e("v_add_u32 v%d, %d, v%d" % (vD(j), j * (7168 - 1024), vD(0)))
    e("v_lshlrev_b32 v%d, 4, v0" % vL16)
    e("s_lshl_b32 s59, s%d, 3" % sMB)
    e("s_lshl_b32 s60, s57, 2")
    e("s_add_u32 s59, s59, s60")
    e("s_mul_i32 s59, s59, 56")
    e("s_lshl_b32 s60, s%d, 2" % sFB)
    e("s_add_u32 s59, s59, s60")
    e("s_add_u32 s59, s59, s58")
    e("s_lshl_b32 %s, s59, 10" % sHs)
    e("s_mul_i32 s59, s%d, 224" % sTB)
    e("s_add_u32 s59, s59, s62")
    for m in range(4):
        e("s_xor_b32 s60, s%d, %d" % (sWV, m))
        e("s_mul_i32 s60, s60, 56")
        e("s_add_u32 s60, s60, s59")
        e("s_lshl_b32 s60, s60, 10")
        e("v_add_u32 v%d, s60, v%d" % (vH(m), vL16))
    e("s_mul_i32 s59, s51, 28")
    e("s_add_u32 s59, s59, s52")
    e("s_mul_i32 s59, s59, %d" % FS)
    e("s_add_u32 s59, s59, 0x%x" % FLAGOFF)
    e("v_min_u32 v%d, 13, v0" % vFlag2)
    e("v_lshl_add_u32 v%d, v%d, 2, s59" % (vFlag2, vFlag2))
    e("s_and_b32 s59, s51, 1")
    e("s_lshl_b32 s59, s59, 7")
    e("v_mov_b32 v%d, s59" % vArmA)
    e("v_mov_b32 v%d, 1" % vOne)
    tk, q4, sw, rr, cc, a0, q1 = T + 6, T + 7, T + 8, T + 9, T + 10, T + 11, T + 5
    e("v_and_b32 v%d, 15, v0" % tk)
    e("v_lshrrev_b32 v%d, 4, v0" % q4)
    e("v_bfe_u32 v%d, v0, 1, 3" % sw)
    e("v_xor_b32 v%d, v%d, v%d" % (sw, sw, q4))
    e("v_lshlrev_b32 v%d, 4, v%d" % (sw, sw))
    e("v_lshl_add_u32 v%d, v%d, 7, v%d" % (sw, tk, sw))
    e("s_lshl_b32 s59, s57, 13")
    e("v_add_u32 v%d, s59, v%d" % (vXB(0, 0), sw))
    e("v_xor_b32 v%d, 64, v%d" % (vXB(1, 0), vXB(0, 0)))
    bases(vXB, 2)
    e("v_bfe_u32 v%d, v0, 2, 2" % rr)
    e("v_and_b32 v%d, 3, v0" % cc)
    e("v_lshlrev_b32 v%d, 3, v%d" % (cc, cc))
    e("v_and_b32 v%d, 1, v%d" % (q1, q4))
    e("v_lshrrev_b32 v%d, 1, v%d" % (t0, rr))
    e("v_lshl_or_b32 v%d, v%d, 1, v%d" % (t0, q1, t0))
    e("v_lshl_add_u32 v%d, v%d, 3, v%d" % (a0, q4, rr))
    e("v_lshl_add_u32 v%d, v%d, 7, v%d" % (a0, a0, cc))
    e("s_lshl_b32 s59, s58, 1")
    e("v_xor_b32 v%d, s59, v%d" % (t1, t0))
    e("v_lshl_add_u32 v%d, v%d, 5, v%d" % (vWA(0, 0), t1, a0))
    e("v_xor_b32 v%d, 32, v%d" % (vWA(1, 0), vWA(0, 0)))
    bases(vWA, 2)
    e("v_lshl_add_u32 v%d, v%d, 2, v%d" % (a0, q4, rr))
    e("v_lshl_add_u32 v%d, v%d, 7, v%d" % (a0, a0, cc))
    e("v_lshl_add_u32 v%d, v%d, 5, v%d" % (a0, t0, a0))
    e("v_add_u32 v%d, %s, v%d" % (vDA(0, 0), sLB, a0))
    for c in range(1, 4): e("v_xor_b32 v%d, %d, v%d" % (vDA(c, 0), 32 * c, vDA(0, 0)))
    bases(vDA, 4)
    e("v_mul_u32_u24 v%d, 896, v%d" % (vOut, tk))
    if O("st2"):
        e("v_lshl_add_u32 v%d, v%d, 3, v%d" % (vOut, q4, vOut))
    else:
        e("v_lshl_add_u32 v%d, v%d, 5, v%d" % (vOut, q1, vOut))
        e("v_lshrrev_b32 v%d, 1, v%d" % (t1, q4))
        e("v_lshl_add_u32 v%d, v%d, 4, v%d" % (vOut, t1, vOut))
    e("s_lshl_b32 s60, s%d, 2" % sTB)
    e("s_add_u32 s60, s60, s%d" % sWV)
    e("s_mul_i32 s60, s60, %d" % (16 * 896))
    e("s_lshl_b32 s59, s%d, 7" % sCB)
    e("s_add_u32 %s, s60, s59" % sOut)
    e("v_add_u32 v%d, %s, v%d" % (T + 12, sLB, vL16))
    for mm in (1, 2, 3): e("v_xor_b32 v%d, %d, v%d" % (T + 12 + mm, mm * 4096, T + 12))

    def lds_ref(vf, byte): return "v%d offset:%d" % (vf(byte >> 16), byte & 0xffff)
    def s1_reads(s):
        n, kk = s // 2, s % 2
        ph, c = units[n]
        wb = slot(uitems(n)[-1])
        xs = 2 * c + kk
        def ard(a, j2):
            jf, mat = a >> 1, a & 1
            return lambda: g.lgop("ds_read_b64_tr_b16 %s, %s" % (rng("v", vAbuf(s & 1, a) + 2 * j2, 2), lds_ref(lambda b: vWA(jf, b), wb + mat * 8192 + kk * 4096 + j2 * 512)), ("rd", s, a & 2))
        out = [ard(0, 0), ard(0, 1)]
        if ph == 0:
            out += [lambda t=t: g.lgop("ds_read_b128 %s, %s" % (rng("a", (xs * 4 + t) * 4, 4), lds_ref(lambda b: vXB(kk, b), slot(2 * c) + t * 2048)), ("rd", s, 0)) for t in range(4)]
        out += [ard(a, j2) for a in (1, 2, 3) for j2 in range(2)]
        return out
    D1 = lambda ph, a, t: ACC[ph] + (a * 4 + t) * 4
    def epilogue_ops(ph, pk):
        ops = []
        for t in range(4):
            G = [D1(ph, 0, t) + i for i in range(4)] + [D1(ph, 2, t) + i for i in range(4)]
            U = [D1(ph, 1, t) + i for i in range(4)] + [D1(ph, 3, t) + i for i in range(4)]
            def V(s, c=4): ops.append((c, lambda s=s: e(s)))
            if pk:
                for i in range(0, 8, 2): V("v_pk_mul_f32 %s, %s, s[4:5]" % (rng("v", G[i], 2), rng("v", G[i], 2)))
                for i in range(8): V("v_exp_f32 v%d, v%d" % (G[i], G[i]), 8)
                for i in range(0, 8, 2): V("v_pk_add_f32 %s, %s, s[6:7]" % (rng("v", G[i], 2), rng("v", G[i], 2)))
                for i in range(8): V("v_rcp_f32 v%d, v%d" % (G[i], G[i]), 8)
                for i in range(0, 8, 2): V("v_pk_mul_f32 %s, %s, %s" % (rng("v", G[i], 2), rng("v", G[i], 2), rng("v", U[i], 2)))
            else:
                for i in range(8): V("v_mul_f32 v%d, s4, v%d" % (G[i], G[i]))
                for i in range(8): V("v_exp_f32 v%d, v%d" % (G[i], G[i]), 8)
                for i in range(8): V("v_add_f32 v%d, 1.0, v%d" % (G[i], G[i]))
                for i in range(8): V("v_rcp_f32 v%d, v%d" % (G[i], G[i]), 8)
                for i in range(8): V("v_mul_f32 v%d, v%d, v%d" % (G[i], G[i], U[i]))
            for i in range(4): V("v_cvt_pk_bf16_f32 v%d, v%d, v%d" % (U[i], G[2 * i], G[2 * i + 1]))
            def stf(t=t, U=U):
                e(g.setoff(sHs, (t * 56 + 2 * ph) * 1024))
                g.vmop("buffer_store_dwordx4 %s, v%d, %s, %s offen sc1" % (rng("v", U[0], 4), vL16, srd(sH), sHs), ("hst", ph))
            ops.append((8, stf))
        return ops
    def only(w, nm):
        e("s_cmp_lg_u32 s%d, %d" % (sWV, w)); e("s_cbranch_scc1 %s" % nm)
    def signal(ph):
        only(SW, "L_nosig%d" % ph)
        if ph == 0:
            e("s_mov_b32 s61, 0")
            g.label("L_arm")
            e("v_readfirstlane_b32 s57, v%d" % vArm)
            e("s_addk_i32 s61, 1")
            e("s_cmp_ge_u32 s61, 0x40000")
            e("s_cbranch_scc1 L_armd")
            e("s_cmp_ge_u32 s57, 32")
            e("s_cbranch_scc1 L_armd")
            e("s_sleep 8")
            e("global_load_dword v%d, v%d, s[14:15] sc1" % (vArm, vArmA))
            e("s_waitcnt vmcnt(0)")
            e("s_branch L_arm")
            g.label("L_armd")
        e("s_mov_b64 exec, 0x3fff")
        e("global_store_dword v%d, v%d, s[16:17] offset:%d sc1" % (vFlag, vOne, 64 * ph))
        e("s_mov_b64 exec, -1")
        g.label("L_nosig%d" % ph)
    def poll_issue(ph):
        only(PW, "L_npi%d" % ph)
        e("global_load_dword v%d, v%d, s[16:17] offset:%d sc1" % (vPol, vFlag2, 64 * ph))
        g.label("L_npi%d" % ph)
        g.pi = len(g.vm)
    def gate(ph):
        only(PW, "L_pok%d" % ph)
        e("s_waitcnt vmcnt(%d)" % min(63, len(g.vm) - g.pi))
        e("s_mov_b32 s61, 0")
        g.label("L_poll%d" % ph)
        e("v_cmp_ne_u32 vcc, 1, v%d" % vPol)
        e("s_addk_i32 s61, 1")
        e("s_cmp_ge_u32 s61, 0x40000")
        e("s_cbranch_scc1 L_pok%d" % ph)
        e("s_cmp_eq_u64 vcc, 0")
        e("s_cbranch_scc1 L_pok%d" % ph)
        e("s_sleep %d" % O("slp", 2))
        e("global_load_dword v%d, v%d, s[16:17] offset:%d sc1" % (vPol, vFlag2, 64 * ph))
        e("s_waitcnt vmcnt(0)")
        e("s_branch L_poll%d" % ph)
        g.label("L_pok%d" % ph)
        e("s_barrier")

    SREG = [("v", 64 + 4 * k) for k in range(16)] + [("a", 224 + 4 * k) for k in range(8)] + [("v", 240 + 4 * k) for k in range(4)]
    NSTG = O("nstg", 7)
    def areg(u, c):
        if u < NSTG: return SREG[u * 4 + c]
        if u > 14 - O("ml", 2): return ("v", 64 + (13 - u) * 16 + c * 4)
        return ("v", vAbuf(u & 1, c))
    def wd_reads(u):
        dst = lambda c: areg(u, c)
        return [lambda c=c, j2=j2: g.lgop("ds_read_b64_tr_b16 %s, %s" % (rng(dst(c)[0], dst(c)[1] + 2 * j2, 2), lds_ref(lambda b: vDA(c, b), slot(21 + u) + j2 * 2048)), ("r2", u))
                for c in range(4) for j2 in range(2)]
    sg = {"n": 0, "rel": 0}
    def stage_ready(minafter):
        u = sg["n"]
        return u < NSTG and st["np"] >= 4 * (22 + u) and g._n(g.vm, ("it", 21 + u)) >= minafter
    def stage_release():
        while sg["rel"] < sg["done"]: release(21 + sg["rel"]); sg["rel"] += 1
    sg["done"] = 0
    hreg = lambda u, t: u * 16 + t * 4
    def h_load(u, t):
        ph, i = u // 7, u % 7
        if g.cur.get("h2") != i: e("s_mov_b32 %s, 0x%x" % (sH2, i * 8192)); g.cur["h2"] = i
        g.vmop("buffer_load_dwordx4 %s, v%d, %s, %s offen%s sc1" % (rng("a", hreg(u, t), 4), vH(t), srd(sH), sH2, " offset:2048" if ph else ""), ("hl", u, t))
    HD = O("hd", 12); PI1 = O("pi1", 2); G1 = O("g1", 4)
    hs = {"n": 0, "lim": 0}
    ML = O("ml", 2)
    HORD = [(u, t) for u in range(14 - ML) for t in range(4)] + [(u, t) for t in (1, 2, 3, 0) for u in range(14 - ML, 14)]
    def hnext():
        h_load(*HORD[hs["n"]]); hs["n"] += 1
    WF = O("wf", 28)
    def mem():
        if st["np"] < 4 * WF and can(): return issue(1)
        if hs["n"] < min(hs["lim"], 28):
            k = 2 if hs["n"] % 4 == 0 else 1
            hnext(); return k
        if can(): return issue(1)
        if hs["n"] < hs["lim"]:
            hnext(); return 1
        return 0
    stF(5)
    issue(O("pro2", 8))
    stF(5)
    if FINE == 5: g.wait(vm=("it", 0)); stF(5)
    g.wait(vm=("it", 1))
    stF(5)
    e("s_barrier")
    stF(5)
    stF(1)
    for r in s1_reads(0): r()
    issue(O("pro3", 2))
    epq = []
    GS = O("gs", 23)
    SIGS = 2 * LA + 2 + O("sigd", 3)
    BUD = O("bud", 8); RB = O("rb", 2)
    carry = 0; racc = 0.0
    sgq = []; STG1 = 1; sgmark = []
    for s in range(28):
        n, kk = s // 2, s % 2
        ph, cu = units[n]
        if s == 2 * LA + 2:
            stA()
            e("s_nop 4")
            for k, (c, f) in enumerate(epilogue_ops(0, 1)):
                f()
                if k % O("rea", 10) == 0: issue(1)
            stA()
        if kk == 1:
            nb = n + 1
            need = []
            if nb <= 13:
                last = uitems(nb)[-1]
                through(last); need.append(("it", last))
            if s == SIGS:
                while epq: epq.pop(0)[1]()
                need.append(("hst", 0))
                assert g.al <= len(g.vm) - g._n(g.vm, ("hst", 0)) - 1
            if STG1 and stage_ready(O("sma", 8)) and s > 2 * LA + 2 and not sgq:
                need.append(("it", 21 + sg["n"])); sgq = [(4, r) for r in wd_reads(sg["n"])]; sg["n"] += 1
            g.wait(vm=need or None, lg=(0 if nb == 14 else ("rd", s, 0)))
            if s == GS: stA(); gate(0); stA()
            else: e("s_barrier")
            if nb <= 10: stF(1)
            if nb >= 7: stF(2)
            if s == SIGS: signal(0)
            for c in ([nb - 2] if nb < 14 else [12, 13]):
                if c >= 0:
                    for it in uitems(c): release(it)
        else:
            need = []
            if STG1 and stage_ready(O("sma", 8)) and s > 2 * LA + 2 and not sgq:
                need.append(("it", 21 + sg["n"])); sgq = [(4, r) for r in wd_reads(sg["n"])]; sg["n"] += 1
            g.wait(vm=need or None, lg=("rd", s, 0))
        for (s0, n0) in sgmark:
            if s >= s0 + 2 or s == 27: sg["done"] = max(sg["done"], n0)
        stage_release()
        if s == 2 * LA:
            only(PW, "L_nal")
            e("global_load_dword v%d, v%d, s[14:15] sc1" % (vArm, vArmA))
            g.label("L_nal")
            g.al = len(g.vm)
        rds = s1_reads(s + 1) if s + 1 < 28 else []
        xs = 2 * cu + kk
        nph = units[(s + 1) // 2][0] if s < 27 else 1
        racc += (O("ra10", 40) if st["np"] < 21 * 4 else O("rb10", 10 * RB)) / 10.0
        rate = min(4, int(racc)); racc -= rate
        RG = [0, 1, 2, 3, 4, 5, 6, 8, 9, 10, 11, 12] if nph == 0 else [0, 1, 2, 3, 8, 9, 10, 11]
        DG = {4: [2, 6, 10, 14], 3: [5, 9, 13], 2: [5, 13], 1: [13], 0: []}[rate] if nph == 1 else {4: [3, 9, 13, 14], 3: [3, 9, 14], 2: [5, 13], 1: [13], 0: []}[rate]
        for m in range(16):
            a, t = m >> 2, m & 3
            if m == 8 and s < 27: g.wait(lg=("rd", s, 2))
            if s == O("ps", 21) and m == 8 and GS <= 27: poll_issue(0)
            D = D1(ph, a, t)
            e("%s %s, %s, %s, %s" % (MF, rng("v", D, 4), rng("v", vAbuf(s & 1, a), 4), rng("a", (xs * 4 + t) * 4, 4), "0" if xs == 0 else rng("v", D, 4)))
            budget = BUD + carry - (4 if m in (7, 15) else 0)
            if rds and m in RG: rds.pop(0)(); budget -= 4
            if s >= GS: hs["lim"] = min(28, 4 * (s - 14))
            if m in DG: budget -= 4 * mem()
            if (m + 1) in DG and m not in DG and can() and setup_needed(): budget -= 4 * setup()
            for _ in range(0 if m in DG or m == 7 or m == 15 else (1 if m in RG else 2)):
                if sgq and m >= 4:
                    sgq.pop(0)[1]()
                    if not sgq: sgmark.append((s, sg["n"]))
            while epq and budget >= epq[0][0]:
                c, f = epq.pop(0); f(); budget -= c
            carry = max(-8, min(budget, O("cmax", 4))) if epq else 0
        assert not rds
    stA(); stF(2)
    print("issued by T:", st["np"], hs["n"], "staged", sg["n"])
    while sgq: sgq.pop(0)[1]()
    def stage_now():
        u = sg["n"]
        through(21 + u)
        g.wait(vm=("it", 21 + u), lg=0)
        sg["done"] = sg["n"]; stage_release()
        for r in wd_reads(u): r()
        sg["n"] += 1
    RE = O("re", 10)
    O2 = {1: (1,), 2: (1, 3)}[O("r2", 1)]
    if GS <= 27: hs["lim"] = 28
    e("s_nop 4")
    for cnt, (c, f) in enumerate(epilogue_ops(1, 1)):
        if GS > 27 and cnt == O("pie", 20): poll_issue(0)
        if GS > 27 and cnt == O("ga", 90): stA(); gate(0); stA(); hs["lim"] = 28
        f()
        if cnt % RE == 0 and cnt < O("rstop", 999): mem()
        if cnt % 16 == 3 and stage_ready(O("smb", 6)): stage_now()
    while sg["n"] < NSTG: stage_now()
    if NSTG == 0:
        g.wait(vm=("it", 21))
        for r in wd_reads(0): r()
    stA(); stF(2); stF(3)
    for _ in range(O("pre", 0)): mem()
    SGQ = O("sgq", 6)
    A2 = ACC[1]
    D2 = lambda t, c: A2 + (t * 4 + c) * 4
    RW = T + 12
    def red_writes(m):
        return [lambda q=q: e("ds_write_b128 v%d, %s offset:%d" % (RW, rng("v", A2 + m * 16 + 4 * q, 4), m * 16384 + q * 1024)) for q in range(4)]
    GQ = O("gq", 22); PQ = O("pq", 18)
    rds = []; wq = []
    for qi, (u, t) in enumerate(HORD):
        if qi == PQ: poll_issue(1)
        if qi == GQ:
            for _ in range(O("gb", 4)): mem()
            stA(); gate(1); stA()
            hs["lim"] = 56
            for _ in range(O("ga2", 8)): mem()
        while hs["n"] <= min(55, (qi | 3)): mem()
        need = [("hl", u, t)]
        if qi == SGQ: need.append(("hst", 1))
        merged = u >= 14 - ML
        if qi == 4 * (14 - ML):
            assert not rds
            g.wait(vm=need, lg=0)
        elif not merged and t == 0:
            assert not rds
            g.wait(vm=need, lg=(0 if u == 0 else ("r2", u) if u >= NSTG else None))
            if u == 0: sg["done"] = NSTG; stage_release()
            if u >= NSTG: release(21 + u)
            if u < 8: stF(3)
            if u >= 5: stF(4)
        elif not merged and t == 1 and NSTG <= u + 1:
            lastu = u + 1 if u + 1 < 14 - ML else 13
            through(21 + lastu); need.append(("it", 21 + lastu))
            g.wait(vm=need)
            rds = sum((wd_reads(k) for k in range(u + 1, lastu + 1)), [])
        else:
            g.wait(vm=need)
        if qi == SGQ:
            e("s_barrier"); signal(1); stA()
        for c in range(4):
            D = D2(t, c)
            A = areg(u, c)
            e("%s %s, %s, %s, %s" % (MF, rng("v", D, 4), rng(A[0], A[1], 4), rng("a", hreg(u, t), 4), "0" if u == 0 else rng("v", D, 4)))
            for _ in range(1 if len(rds) <= 8 - O("zz", 0) else ML):
                if rds: rds.pop(0)()
            wq = [(d - 1, w) for d, w in wq]
            if wq and wq[0][0] <= 0 and c % 2 == 1: wq.pop(0)[1]()
            if c in O2: mem()
        if u == 13 and t != 0: wq += [(5, w) for w in red_writes(t)]
    assert st["np"] == len(allp) and hs["n"] == 56
    stA(); stF(4)
    if ML == 1: e("s_nop 1")
    for d, w in wq: w()
    e("s_waitcnt lgkmcnt(0)")
    e("s_barrier")
    R = A2
    for m in (1, 2, 3):
        for q in range(4):
            e("ds_read_b128 %s, v%d offset:%d" % (rng("v", R + m * 16 + q * 4, 4), RW + m, m * 16384 + q * 1024))
    for m in (1, 2, 3):
        e("s_waitcnt lgkmcnt(%d)" % (12 - 4 * m))
        for i in range(0, 16, 2): e("v_pk_add_f32 %s, %s, %s" % (rng("v", R + i, 2), rng("v", R + i, 2), rng("v", R + 16 * m + i, 2)))
    for i in range(8): e("v_cvt_pk_bf16_f32 v%d, v%d, v%d" % (R + 16 + i, R + 2 * i, R + 2 * i + 1))
    if O("st2"):
        for c in range(4):
            e("buffer_store_dwordx2 %s, v%d, %s, %s offen offset:%d" % (rng("v", R + 16 + 2 * c, 2), vOut, srd(sO), sOut, 32 * c))
    else:
        e("s_nop 1")
        for pr in range(2):
            e("v_permlane16_swap_b32 v%d, v%d" % (R + 16 + 4 * pr, R + 18 + 4 * pr))
            e("v_permlane16_swap_b32 v%d, v%d" % (R + 17 + 4 * pr, R + 19 + 4 * pr))
        e("buffer_store_dwordx4 %s, v%d, %s, %s offen" % (rng("v", R + 16, 4), vOut, srd(sO), sOut))
        e("buffer_store_dwordx4 %s, v%d, %s, %s offen offset:64" % (rng("v", R + 20, 4), vOut, srd(sO), sOut))
    if stamps:
        e("s_waitcnt vmcnt(0)")
        stA()
        e("s_waitcnt lgkmcnt(0)")
        e("s_add_u32 s16, s16, 0x8000000")
        e("s_addc_u32 s17, s17, 0")
        e("s_lshl_b32 s57, s2, 2")
        e("s_add_u32 s57, s57, s%d" % sWV)
        e("s_lshl_b32 s57, s57, 7")
        e("v_mov_b32 v1, s57")
        e("s_mov_b64 exec, 1")
        for j in range(g.nst):
            e("v_mov_b32 v2, s%d" % (SB + 2 * j))
            e("v_mov_b32 v3, s%d" % (SB + 1 + 2 * j))
            e("global_store_dwordx2 v1, v[2:3], s[16:17] offset:%d" % (8 * j))
            e("s_nop 1")
    e("s_endpgm")
    HELP = O("help", 7)
    g.label("L_help2")
    e("s_and_b32 s41, s40, 7")
    e("s_lshr_b32 s42, s40, 3")
    e("s_lshr_b32 s43, s41, 1")
    e("s_lshl_b32 s43, s43, 2")
    e("s_add_u32 s43, s43, s42")
    e("s_mul_i32 s44, s43, %d" % (28 * 3584))
    e("s_and_b32 s45, s41, 1")
    e("s_mul_i32 s45, s45, %d" % (7 * 256))
    e("s_add_u32 s44, s44, s45")
    e("s_addk_i32 s44, 128")
    e("v_mul_u32_u24 v1, 9363, v0")
    e("v_lshrrev_b32 v1, 16, v1")
    e("v_mul_u32_u24 v2, 7, v1")
    e("v_sub_u32 v2, v0, v2")
    e("v_mul_u32_u24 v1, 3584, v1")
    e("v_lshl_add_u32 v1, v2, 8, v1")
    e("v_mov_b32 v3, 0x7fffffff")
    e("v_cmp_gt_u32 vcc, 196, v0")
    e("v_lshlrev_b32 v4, 7, v0")
    e("s_lshl_b32 s46, s41, 2")
    e("v_cndmask_b32 v1, v3, v1, vcc")
    e("v_cndmask_b32 v5, v3, v4, vcc")
    e("v_cmp_gt_u32 vcc, 224, v0")
    e("s_add_u32 s46, s46, s42")
    e("s_mul_i32 s46, s46, %d" % (392 * 128))
    e("v_cndmask_b32 v6, v3, v4, vcc")
    e("s_waitcnt lgkmcnt(0)")
    mk_srd(20, 6, 448 * 3584); mk_srd(24, 8, 448 * 3584); mk_srd(28, 10, 1792 * 896)
    e("s_mul_i32 s49, s40, %d" % (7 * FS))
    e("s_add_u32 s49, s49, 0x%x" % FLAGOFF)
    e("v_lshl_add_u32 v14, v0, 2, s49")
    e("v_mov_b32 v15, 0")
    e("s_and_saveexec_b64 s[32:33], vcc")
    e("global_store_dword v14, v15, s[16:17] sc1")
    e("s_mov_b64 exec, -1")
    e("s_waitcnt vmcnt(0)")
    e("s_barrier")
    e("v_lshlrev_b32 v14, 7, v0")
    e("v_mov_b32 v15, 1")
    e("v_cmp_gt_u32 vcc, 2, v0")
    e("s_and_saveexec_b64 s[32:33], vcc")
    e("s_cbranch_execz L_nha")
    e("global_atomic_add v14, v15, s[14:15] sc1")
    g.label("L_nha")
    e("s_mov_b64 exec, -1")
    if HELP & 1:
        e("buffer_load_dword v8, v1, s[20:23], s44 offen")
        e("buffer_load_dword v9, v1, s[24:27], s44 offen")
    if HELP & 2:
        e("buffer_load_dword v10, v5, s[28:31], s46 offen")
        e("s_add_u32 s46, s46, %d" % (196 * 128))
        e("buffer_load_dword v11, v5, s[28:31], s46 offen")
    if HELP & 4:
        e("s_mul_i32 s46, s42, %d" % (128 * 896))
        e("s_mov_b32 s48, s42")
        e("s_waitcnt vmcnt(0)"); e("s_barrier")
        g.label("L_hl")
        e("buffer_load_dword v12, v6, s[28:31], s46 offen")
        e("s_add_u32 s47, s46, %d" % (224 * 128))
        e("buffer_load_dword v13, v6, s[28:31], s47 offen")
        e("s_add_u32 s46, s46, %d" % (4 * 128 * 896))
        e("s_cmp_ge_u32 s46, %d" % (1792 * 896))
        e("s_cselect_b32 s47, %d, 0" % (1792 * 896 - 64 * 896))
        e("s_sub_u32 s46, s46, s47")
        e("s_addk_i32 s48, 4")
        e("s_cmp_lt_u32 s48, 28")
        e("s_cbranch_scc1 L_hl")
    e("s_waitcnt vmcnt(0)")
    g.label("L_end2")
    e("s_endpgm")
    check_hazards(g.L)
    return g.L

from gen9 import emit
if __name__ == "__main__":
    out = sys.argv[1]
    stamps = 1 if "--stamps" in sys.argv else (2 if "--cyc" in sys.argv else 0)
    opt = {}
    for a in sys.argv[2:]:
        if a.startswith("-o"):
            k, _, v = a[2:].partition("=")
            opt[k] = int(v) if v else 1
    emit(build(stamps, opt), out)
```

```python
import sys
from asmlib import *
from hazard import check_hazards
from gen import Gen, rng

NS = 10
FLAGOFF = 8 << 20
FS = 128
MF = "v_mfma_f32_16x16x32_bf16"

def build(stamps=False, opt=None):
    opt = opt or {}
    O = lambda k, d=0: opt.get(k, d)
    g = Gen(stamps); e = g.e
    SB = 78
    def stamp():
        if stamps:
            r = SB + 2 * g.nst
            assert r + 1 < 102
            e("%s s[%d:%d]" % ("s_memtime" if stamps == 2 else "s_memrealtime", r, r + 1)); g.nst += 1
    FINE = O("fine")
    if O("both"):
        cntr = {"k": 0}
        sel = {1: (2, 3, 6, 7, 10), 2: (1, 2, 3, 7, 10)}[O("both")]
        def stamp2():
            cntr["k"] += 1
            if cntr["k"] in sel:
                r = SB + 2 * g.nst
                e("s_memrealtime s[%d:%d]" % (r, r + 1)); e("s_memtime s[%d:%d]" % (r + 2, r + 3)); g.nst += 2
    stA = (lambda: None) if FINE else (stamp2 if O("both") else stamp)
    stF = lambda k: stamp() if FINE == k else None
    srd = lambda b: rng("s", b, 4)
    sX, sW, sWD, sH, sO = 20, 24, 28, 32, 36
    sMB, sFB, sWV, sTB, sCB = 40, 41, 42, 43, 44
    sDo, sLB, sHs, sDb, sH2, sOut = "s45", "s46", "s47", "s48", "s50", "s8"
    sCx = lambda i: "s%d" % (64 + i)
    sCw = lambda i: "s%d" % (71 + i)
    vX = lambda j: 2 + j
    vW = lambda j: 6 + j
    vXB = lambda kk, b: 10 + b * 2 + kk
    vWA = lambda jf, b: 16 + b * 2 + jf
    vL16, vFlag = 22, 23
    vH = lambda t: 24 + t
    vAbuf = lambda buf, j: 32 + buf * 16 + j * 4
    ACC = [64, 128]
    vD = lambda j: 192 + j
    vFlag2, vArmA, vArm, vOut, vPol, vOne = 196, 197, 198, 199, 200, 201
    T = 204
    vDA = lambda c, b: 220 + b * 4 + c

    stamp()
    if O("fix"): e("s_memrealtime s[98:99]")
    e("s_load_dwordx8 s[4:11], s[0:1], 0")
    e("s_load_dwordx4 s[12:15], s[0:1], 32")
    e("s_load_dwordx2 s[16:17], s[0:1], 48")
    e("s_sub_u32 s2, s2, 32")
    e("s_cmp_lt_u32 s2, 224")
    e("s_cbranch_scc1 L_main")
    e("s_add_u32 s40, s2, 32")
    e("s_cmp_ge_u32 s40, 32")
    e("s_cbranch_scc1 L_end2")
    e("s_getpc_b64 s[30:31]")
    e("v_lshlrev_b32 v4, 7, v0")
    e("v_cmp_gt_u32 vcc, @NLINES@, v0")
    e("s_and_saveexec_b64 s[32:33], vcc")
    e("s_cbranch_execz L_ncp")
    e("global_load_dword v7, v4, s[30:31]")
    g.label("L_ncp")
    e("s_mov_b64 exec, -1")
    e("s_branch L_help2")
    g.label("L_main")
    e("v_lshrrev_b32 v%d, 6, v0" % T)
    e("v_and_b32 v0, 63, v0")
    e("v_readfirstlane_b32 s%d, v%d" % (sWV, T))
    e("s_and_b32 s51, s2, 7")
    e("s_lshr_b32 s52, s2, 3")
    e("s_mul_i32 s53, s52, 37")
    e("s_lshr_b32 s53, s53, 8")
    e("s_mul_i32 s54, s53, 7")
    e("s_sub_u32 s54, s52, s54")
    e("s_lshr_b32 s55, s51, 1")
    e("s_lshl_b32 s%d, s55, 2" % sMB)
    e("s_add_u32 s%d, s%d, s53" % (sMB, sMB))
    e("s_and_b32 s56, s51, 1")
    e("s_mul_i32 s%d, s56, 7" % sFB)
    e("s_add_u32 s%d, s%d, s54" % (sFB, sFB))
    e("s_lshl_b32 s56, s53, 1")
    e("s_add_u32 s56, s56, s54")
    e("s_add_u32 s56, s56, s55")
    e("s_mul_i32 s57, s56, 37")
    e("s_lshr_b32 s57, s57, 8")
    e("s_mul_i32 s57, s57, 7")
    e("s_sub_u32 s3, s56, s57")
    r8, p7, rh, t0, t1, rl = T, T + 1, T + 2, T + 3, T + 4, T + 5
    e("v_lshrrev_b32 v%d, 3, v0" % r8)
    e("v_and_b32 v%d, 7, v0" % p7)
    e("v_lshrrev_b32 v%d, 1, v%d" % (rh, r8))
    e("v_xor_b32 v%d, v%d, v%d" % (t0, p7, rh))
    e("v_lshlrev_b32 v%d, 4, v%d" % (t0, t0))
    e("v_mul_u32_u24 v%d, 896, v%d" % (t1, r8))
    e("v_add_u32 v%d, v%d, v%d" % (vX(0), t1, t0))
    e("v_xor_b32 v%d, 64, v%d" % (t0, t0))
    e("s_movk_i32 s57, %d" % (7168 - 1024))
    e("v_add3_u32 v%d, v%d, v%d, s57" % (vX(1), t1, t0))
    e("v_add_u32 v%d, %d, v%d" % (vX(2), 2 * (7168 - 1024), vX(0)))
    e("v_add_u32 v%d, %d, v%d" % (vX(3), 2 * (7168 - 1024), vX(1)))
    e("s_lshr_b32 s55, s%d, 1" % sWV)
    e("v_and_b32 v%d, 1, v%d" % (rl, rh))
    e("v_lshlrev_b32 v%d, 5, v%d" % (t0, rl))
    e("v_lshlrev_b32 v%d, 4, v%d" % (p7, p7))
    e("v_xor_b32 v%d, v%d, v%d" % (t0, t0, p7))
    e("v_mul_u32_u24 v%d, 3584, v%d" % (rl, r8))
    e("v_add_u32 v%d, v%d, v%d" % (vW(0), rl, t0))
    e("v_xor_b32 v%d, 64, v%d" % (t0, t0))
    e("s_movk_i32 s57, %d" % (28672 - 1024))
    e("v_add3_u32 v%d, v%d, v%d, s57" % (vW(1), rl, t0))
    e("v_add_u32 v%d, %d, v%d" % (vW(2), 2 * (28672 - 1024), vW(0)))
    e("v_add_u32 v%d, %d, v%d" % (vW(3), 2 * (28672 - 1024), vW(1)))
    e("s_mul_i32 s18, s%d, %d" % (sMB, 128 * 896))
    e("s_mul_i32 s57, s%d, %d" % (sWV, 32 * 896))
    e("s_add_u32 s18, s18, s57")
    e("s_and_b32 s57, s%d, 1" % sWV)
    e("s_mul_i32 s19, s57, %d" % (32 * 3584))
    e("s_lshl_b32 s58, s%d, 8" % sFB)
    e("s_add_u32 s19, s19, s58")
    e("s_lshl_b32 %s, s%d, 12" % (sLB, sWV))
    def table(i):
        e("s_lshl_b32 s57, s3, 7")
        e("s_add_u32 %s, s57, s18" % sCx(i))
        e("s_mul_i32 s57, s3, %d" % (64 * 3584))
        e("s_add_u32 %s, s57, s19" % sCw(i))
        e("s_add_u32 s3, s3, 1")
        e("s_cmp_eq_u32 s3, 7")
        e("s_cselect_b32 s3, 0, s3")
    table(0); table(1)
    e("s_mov_b32 s%d, %d" % (sX + 2, 2048 * 896))
    e("s_mov_b32 s%d, 0x20000" % (sX + 3))
    e("s_mov_b32 s%d, %d" % (sW + 2, 448 * 3584))
    e("s_mov_b32 s%d, 0x20000" % (sW + 3))
    stF(5)
    e("s_waitcnt lgkmcnt(0)")
    stF(5)
    e("s_mov_b32 s%d, s4" % sX)
    e("s_and_b32 s%d, s5, 0xffff" % (sX + 1))
    e("s_cmp_eq_u32 s55, 0")
    e("s_cselect_b32 s%d, s6, s8" % sW)
    e("s_cselect_b32 s%d, s7, s9" % (sW + 1))
    e("s_and_b32 s%d, s%d, 0xffff" % (sW + 1, sW + 1))
    g.cur[sHs] = 0

    SCH = {0: "aaaaaaabbbbbbb", 1: "aabaabaaabbbbb", 2: "aaabaaaabbbbbb", 3: "aaabaabaabbbbb", 4: "aaaabaaabbbbbb"}[O("sch", 0)]
    units = []; cnt_ = {"a": 0, "b": 0}
    for ch in SCH: units.append((0 if ch == "a" else 1, cnt_[ch])); cnt_[ch] += 1
    uitems = lambda n: [2 * units[n][1], 2 * units[n][1] + 1] if units[n][0] == 0 else [14 + units[n][1]]
    order = sum((uitems(n) for n in range(14)), []) + list(range(21, 35))
    pos = {it: k for k, it in enumerate(order)}
    LA = max(n for n in range(14) if units[n][0] == 0)
    vWb = lambda j: 232 + j
    allp = [(i, jj) for i in order for jj in range(4)]
    st = {"np": 0}
    pool = list(range(NS)); smap = {}
    def slot(i): return smap[i] * 16384
    def release(i): pool.append(smap[i])
    def setup_needed(): return allp[st["np"]][1] == 0 and st.get("su") != st["np"]
    def setup(nop=False):
        i, jj = allp[st["np"]]
        smap[i] = pool.pop(0)
        st["su"] = st["np"]
        e("s_add_u32 m0, %s, 0x%x" % (sLB, slot(i)))
        if i >= 21:
            c, ph = (i - 21) % 7, (i - 21) // 7
            e("s_add_u32 %s, %s, 0x%x" % (sDo, sDb, (256 * c + 64 * ph) * 896))
            return 2
        if nop: e("s_nop 0")
        return 1
    def one():
        n = 1
        if setup_needed(): n += setup(True)
        i, jj = allp[st["np"]]; st["np"] += 1
        off = " offset:%d" % (jj * 1024) if jj else ""
        if i < 14 and i % 2 == 0:
            g.vmop("buffer_load_dwordx4 v%d, %s, %s offen%s lds" % (vX(jj), srd(sX), sCx(i // 2), off), ("it", i))
        elif i < 21:
            g.vmop("buffer_load_dwordx4 v%d, %s, %s offen%s lds" % (vW(jj) if i < 14 else vWb(jj), srd(sW), sCw(i // 2 if i < 14 else i - 14), off), ("it", i))
        else:
            g.vmop("buffer_load_dwordx4 v%d, %s, %s offen%s lds" % (vD(jj), srd(sWD), sDo, off), ("it", i))
        return n
    def can(): return st["np"] < len(allp) and (not setup_needed() or len(pool) > 0)
    def issue(n=1):
        k = 0
        for _ in range(n):
            if can(): k += one()
        return k
    def through(item):
        while st["np"] < len(allp) and st["np"] // 4 <= pos[item]: one()
    def mk_srd(d, b, n):
        e("s_mov_b32 s%d, s%d" % (d, b))
        e("s_and_b32 s%d, s%d, 0xffff" % (d + 1, b + 1))
        e("s_mov_b32 s%d, %d" % (d + 2, n))
        e("s_mov_b32 s%d, 0x20000" % (d + 3))
    def bases(vf, n):
        for j in range(n):
            e("v_add_u32 v%d, 0x10000, v%d" % (vf(j, 1), vf(j, 0)))
            e("v_add_u32 v%d, 0x20000, v%d" % (vf(j, 2), vf(j, 0)))

    SW = PW = 1
    issue(O("pro", 10))
    stF(5)
    for i in range(2, 7): table(i)
    for j in range(4): e("v_add_u32 v%d, 128, v%d" % (vWb(j), vW(j)))
    e("s_mul_i32 s59, s%d, %d" % (sMB, 14 * FS))
    e("s_lshl_b32 s61, s%d, 2" % sFB)
    e("s_add_u32 s59, s59, s61")
    e("s_add_u32 s59, s59, 0x%x" % FLAGOFF)
    e("v_lshl_add_u32 v%d, v0, 7, s59" % vFlag)
    e("s_lshl_b32 s%d, s51, 2" % sTB)
    e("s_add_u32 s%d, s%d, s53" % (sTB, sTB))
    e("s_mov_b32 s%d, s54" % sCB)
    mk_srd(sWD, 10, 1792 * 896); mk_srd(sH, 16, 2048 * 1792 * 2); mk_srd(sO, 12, 2048 * 896)
    e("s_mov_b32 s4, 0xbfb8aa3b"); e("s_mov_b32 s5, 0xbfb8aa3b"); e("s_mov_b32 s6, 1.0"); e("s_mov_b32 s7, 1.0")
    e("s_and_b32 s57, s%d, 1" % sWV)
    e("s_lshr_b32 s58, s%d, 1" % sWV)
    e("s_lshl_b32 s62, s58, 2")
    e("s_add_u32 s62, s62, s57")
    e("s_mul_i32 %s, s62, %d" % (sDb, 32 * 896))
    e("s_lshl_b32 s59, s%d, 7" % sCB)
    e("s_add_u32 %s, %s, s59" % (sDb, sDb))
    e("v_lshlrev_b32 v%d, 5, v%d" % (t0, rh))
    e("v_xor_b32 v%d, v%d, v%d" % (t0, t0, p7))
    e("v_add_u32 v%d, v%d, v%d" % (vD(0), t1, t0))
    for j in range(1, 4): e("v_add_u32 v%d, %d, v%d" % (vD(j), j * (7168 - 1024), vD(0)))
    e("v_lshlrev_b32 v%d, 4, v0" % vL16)
    e("s_lshl_b32 s59, s%d, 3" % sMB)
    e("s_lshl_b32 s60, s57, 2")
    e("s_add_u32 s59, s59, s60")
    e("s_mul_i32 s59, s59, 56")
    e("s_lshl_b32 s60, s%d, 2" % sFB)
    e("s_add_u32 s59, s59, s60")
    e("s_add_u32 s59, s59, s58")
    e("s_lshl_b32 %s, s59, 10" % sHs)
    e("s_mul_i32 s59, s%d, 224" % sTB)
    e("s_add_u32 s59, s59, s62")
    for m in range(4):
        e("s_xor_b32 s60, s%d, %d" % (sWV, m))
        e("s_mul_i32 s60, s60, 56")
        e("s_add_u32 s60, s60, s59")
        e("s_lshl_b32 s60, s60, 10")
        e("v_add_u32 v%d, s60, v%d" % (vH(m), vL16))
    e("s_mul_i32 s59, s51, 28")
    e("s_add_u32 s59, s59, s52")
    e("s_mul_i32 s59, s59, %d" % FS)
    e("s_add_u32 s59, s59, 0x%x" % FLAGOFF)
    e("v_min_u32 v%d, 13, v0" % vFlag2)
    e("v_lshl_add_u32 v%d, v%d, 2, s59" % (vFlag2, vFlag2))
    e("s_and_b32 s59, s51, 1")
    e("s_lshl_b32 s59, s59, 7")
    e("v_mov_b32 v%d, s59" % vArmA)
    e("v_mov_b32 v%d, 1" % vOne)
    tk, q4, sw, rr, cc, a0, q1 = T + 6, T + 7, T + 8, T + 9, T + 10, T + 11, T + 5
    e("v_and_b32 v%d, 15, v0" % tk)
    e("v_lshrrev_b32 v%d, 4, v0" % q4)
    e("v_bfe_u32 v%d, v0, 1, 3" % sw)
    e("v_xor_b32 v%d, v%d, v%d" % (sw, sw, q4))
    e("v_lshlrev_b32 v%d, 4, v%d" % (sw, sw))
    e("v_lshl_add_u32 v%d, v%d, 7, v%d" % (sw, tk, sw))
    e("s_lshl_b32 s59, s57, 13")
    e("v_add_u32 v%d, s59, v%d" % (vXB(0, 0), sw))
    e("v_xor_b32 v%d, 64, v%d" % (vXB(1, 0), vXB(0, 0)))
    bases(vXB, 2)
    e("v_bfe_u32 v%d, v0, 2, 2" % rr)
    e("v_and_b32 v%d, 3, v0" % cc)
    e("v_lshlrev_b32 v%d, 3, v%d" % (cc, cc))
    e("v_and_b32 v%d, 1, v%d" % (q1, q4))
    e("v_lshrrev_b32 v%d, 1, v%d" % (t0, rr))
    e("v_lshl_or_b32 v%d, v%d, 1, v%d" % (t0, q1, t0))
    e("v_lshl_add_u32 v%d, v%d, 3, v%d" % (a0, q4, rr))
    e("v_lshl_add_u32 v%d, v%d, 7, v%d" % (a0, a0, cc))
    e("s_lshl_b32 s59, s58, 1")
    e("v_xor_b32 v%d, s59, v%d" % (t1, t0))
    e("v_lshl_add_u32 v%d, v%d, 5, v%d" % (vWA(0, 0), t1, a0))
    e("v_xor_b32 v%d, 32, v%d" % (vWA(1, 0), vWA(0, 0)))
    bases(vWA, 2)
    e("v_lshl_add_u32 v%d, v%d, 2, v%d" % (a0, q4, rr))
    e("v_lshl_add_u32 v%d, v%d, 7, v%d" % (a0, a0, cc))
    e("v_lshl_add_u32 v%d, v%d, 5, v%d" % (a0, t0, a0))
    e("v_add_u32 v%d, %s, v%d" % (vDA(0, 0), sLB, a0))
    for c in range(1, 4): e("v_xor_b32 v%d, %d, v%d" % (vDA(c, 0), 32 * c, vDA(0, 0)))
    bases(vDA, 4)
    e("v_mul_u32_u24 v%d, 896, v%d" % (vOut, tk))
    if O("st2"):
        e("v_lshl_add_u32 v%d, v%d, 3, v%d" % (vOut, q4, vOut))
    else:
        e("v_lshl_add_u32 v%d, v%d, 5, v%d" % (vOut, q1, vOut))
        e("v_lshrrev_b32 v%d, 1, v%d" % (t1, q4))
        e("v_lshl_add_u32 v%d, v%d, 4, v%d" % (vOut, t1, vOut))
    e("s_lshl_b32 s60, s%d, 2" % sTB)
    e("s_add_u32 s60, s60, s%d" % sWV)
    e("s_mul_i32 s60, s60, %d" % (16 * 896))
    e("s_lshl_b32 s59, s%d, 7" % sCB)
    e("s_add_u32 %s, s60, s59" % sOut)
    e("v_add_u32 v%d, %s, v%d" % (T + 12, sLB, vL16))
    for mm in (1, 2, 3): e("v_xor_b32 v%d, %d, v%d" % (T + 12 + mm, mm * 4096, T + 12))

    def lds_ref(vf, byte): return "v%d offset:%d" % (vf(byte >> 16), byte & 0xffff)
    def s1_reads(s):
        n, kk = s // 2, s % 2
        ph, c = units[n]
        wb = slot(uitems(n)[-1])
        xs = 2 * c + kk
        def ard(a, j2):
            jf, mat = a >> 1, a & 1
            return lambda: g.lgop("ds_read_b64_tr_b16 %s, %s" % (rng("v", vAbuf(s & 1, a) + 2 * j2, 2), lds_ref(lambda b: vWA(jf, b), wb + mat * 8192 + kk * 4096 + j2 * 512)), ("rd", s, a & 2))
        out = [ard(0, 0), ard(0, 1)]
        if ph == 0:
            out += [lambda t=t: g.lgop("ds_read_b128 %s, %s" % (rng("a", (xs * 4 + t) * 4, 4), lds_ref(lambda b: vXB(kk, b), slot(2 * c) + t * 2048)), ("rd", s, 0)) for t in range(4)]
        out += [ard(a, j2) for a in (1, 2, 3) for j2 in range(2)]
        return out
    D1 = lambda ph, a, t: ACC[ph] + (a * 4 + t) * 4
    def epilogue_ops(ph, pk):
        ops = []
        for t in range(4):
            G = [D1(ph, 0, t) + i for i in range(4)] + [D1(ph, 2, t) + i for i in range(4)]
            U = [D1(ph, 1, t) + i for i in range(4)] + [D1(ph, 3, t) + i for i in range(4)]
            def V(s, c=4): ops.append((c, lambda s=s: e(s)))
            if pk:
                for i in range(0, 8, 2): V("v_pk_mul_f32 %s, %s, s[4:5]" % (rng("v", G[i], 2), rng("v", G[i], 2)))
                for i in range(8): V("v_exp_f32 v%d, v%d" % (G[i], G[i]), 8)
                for i in range(0, 8, 2): V("v_pk_add_f32 %s, %s, s[6:7]" % (rng("v", G[i], 2), rng("v", G[i], 2)))
                for i in range(8): V("v_rcp_f32 v%d, v%d" % (G[i], G[i]), 8)
                for i in range(0, 8, 2): V("v_pk_mul_f32 %s, %s, %s" % (rng("v", G[i], 2), rng("v", G[i], 2), rng("v", U[i], 2)))
            else:
                for i in range(8): V("v_mul_f32 v%d, s4, v%d" % (G[i], G[i]))
                for i in range(8): V("v_exp_f32 v%d, v%d" % (G[i], G[i]), 8)
                for i in range(8): V("v_add_f32 v%d, 1.0, v%d" % (G[i], G[i]))
                for i in range(8): V("v_rcp_f32 v%d, v%d" % (G[i], G[i]), 8)
                for i in range(8): V("v_mul_f32 v%d, v%d, v%d" % (G[i], G[i], U[i]))
            for i in range(4): V("v_cvt_pk_bf16_f32 v%d, v%d, v%d" % (U[i], G[2 * i], G[2 * i + 1]))
            def stf(t=t, U=U):
                e(g.setoff(sHs, (t * 56 + 2 * ph) * 1024))
                g.vmop("buffer_store_dwordx4 %s, v%d, %s, %s offen sc1" % (rng("v", U[0], 4), vL16, srd(sH), sHs), ("hst", ph))
            ops.append((8, stf))
        return ops
    def only(w, nm):
        e("s_cmp_lg_u32 s%d, %d" % (sWV, w)); e("s_cbranch_scc1 %s" % nm)
    def signal(ph):
        only(SW, "L_nosig%d" % ph)
        if ph == 0:
            e("s_mov_b32 s61, 0")
            g.label("L_arm")
            e("v_readfirstlane_b32 s57, v%d" % vArm)
            e("s_addk_i32 s61, 1")
            e("s_cmp_ge_u32 s61, 0x40000")
            e("s_cbranch_scc1 L_armd")
            e("s_cmp_ge_u32 s57, 32")
            e("s_cbranch_scc1 L_armd")
            e("s_sleep 8")
            e("global_load_dword v%d, v%d, s[14:15] sc1" % (vArm, vArmA))
            e("s_waitcnt vmcnt(0)")
            e("s_branch L_arm")
            g.label("L_armd")
        e("s_mov_b64 exec, 0x3fff")
        e("global_store_dword v%d, v%d, s[16:17] offset:%d sc1" % (vFlag, vOne, 64 * ph))
        e("s_mov_b64 exec, -1")
        g.label("L_nosig%d" % ph)
    def poll_issue(ph):
        only(PW, "L_npi%d" % ph)
        e("global_load_dword v%d, v%d, s[16:17] offset:%d sc1" % (vPol, vFlag2, 64 * ph))
        g.label("L_npi%d" % ph)
        g.pi = len(g.vm)
    def gate(ph):
        only(PW, "L_pok%d" % ph)
        e("s_waitcnt vmcnt(%d)" % min(63, len(g.vm) - g.pi))
        e("s_mov_b32 s61, 0")
        g.label("L_poll%d" % ph)
        e("v_cmp_ne_u32 vcc, 1, v%d" % vPol)
        e("s_addk_i32 s61, 1")
        e("s_cmp_ge_u32 s61, 0x40000")
        e("s_cbranch_scc1 L_pok%d" % ph)
        e("s_cmp_eq_u64 vcc, 0")
        e("s_cbranch_scc1 L_pok%d" % ph)
        e("s_sleep %d" % O("slp", 2))
        e("global_load_dword v%d, v%d, s[16:17] offset:%d sc1" % (vPol, vFlag2, 64 * ph))
        e("s_waitcnt vmcnt(0)")
        e("s_branch L_poll%d" % ph)
        g.label("L_pok%d" % ph)
        e("s_barrier")

    SREG = [("v", 64 + 4 * k) for k in range(16)] + [("a", 224 + 4 * k) for k in range(8)] + [("v", 240 + 4 * k) for k in range(4)]
    NSTG = O("nstg", 7)
    def areg(u, c):
        if u < NSTG: return SREG[u * 4 + c]
        if u > 14 - O("ml", 2): return ("v", 64 + (13 - u) * 16 + c * 4)
        return ("v", vAbuf(u & 1, c))
    def wd_reads(u):
        dst = lambda c: areg(u, c)
        return [lambda c=c, j2=j2: g.lgop("ds_read_b64_tr_b16 %s, %s" % (rng(dst(c)[0], dst(c)[1] + 2 * j2, 2), lds_ref(lambda b: vDA(c, b), slot(21 + u) + j2 * 2048)), ("r2", u))
                for c in range(4) for j2 in range(2)]
    sg = {"n": 0, "rel": 0}
    def stage_ready(minafter):
        u = sg["n"]
        return u < NSTG and st["np"] >= 4 * (22 + u) and g._n(g.vm, ("it", 21 + u)) >= minafter
    def stage_release():
        while sg["rel"] < sg["done"]: release(21 + sg["rel"]); sg["rel"] += 1
    sg["done"] = 0
    hreg = lambda u, t: u * 16 + t * 4
    def h_load(u, t):
        ph, i = u // 7, u % 7
        if g.cur.get("h2") != i: e("s_mov_b32 %s, 0x%x" % (sH2, i * 8192)); g.cur["h2"] = i
        g.vmop("buffer_load_dwordx4 %s, v%d, %s, %s offen%s sc1" % (rng("a", hreg(u, t), 4), vH(t), srd(sH), sH2, " offset:2048" if ph else ""), ("hl", u, t))
    HD = O("hd", 12); PI1 = O("pi1", 2); G1 = O("g1", 4)
    hs = {"n": 0, "lim": 0}
    ML = O("ml", 2)
    HORD = [(u, t) for u in range(14 - ML) for t in range(4)] + [(u, t) for t in (1, 2, 3, 0) for u in range(14 - ML, 14)]
    def hnext():
        h_load(*HORD[hs["n"]]); hs["n"] += 1
    WF = O("wf", 28)
    def mem():
        if st["np"] < 4 * WF and can(): return issue(1)
        if hs["n"] < min(hs["lim"], 28):
            k = 2 if hs["n"] % 4 == 0 else 1
            hnext(); return k
        if can(): return issue(1)
        if hs["n"] < hs["lim"]:
            hnext(); return 1
        return 0
    stF(5)
    issue(O("pro2", 8))
    stF(5)
    if FINE == 5: g.wait(vm=("it", 0)); stF(5)
    g.wait(vm=("it", 1))
    stF(5)
    e("s_barrier")
    stF(5)
    stF(1)
    for r in s1_reads(0): r()
    issue(O("pro3", 2))
    epq = []
    GS = O("gs", 23)
    SIGS = 2 * LA + 2 + O("sigd", 3)
    BUD = O("bud", 8); RB = O("rb", 2)
    carry = 0
    sgq = []; STG1 = 1; sgmark = []
    for s in range(28):
        n, kk = s // 2, s % 2
        ph, cu = units[n]
        if s == 2 * LA + 2:
            stA()
            e("s_nop 4")
            for k, (c, f) in enumerate(epilogue_ops(0, 1)):
                f()
                if k % O("rea", 10) == 0: issue(1)
            stA()
        if kk == 1:
            nb = n + 1
            need = []
            if nb <= 13:
                last = uitems(nb)[-1]
                through(last); need.append(("it", last))
            if s == SIGS:
                while epq: epq.pop(0)[1]()
                need.append(("hst", 0))
                assert g.al <= len(g.vm) - g._n(g.vm, ("hst", 0)) - 1
            if STG1 and stage_ready(O("sma", 8)) and s > 2 * LA + 2 and not sgq:
                need.append(("it", 21 + sg["n"])); sgq = [(4, r) for r in wd_reads(sg["n"])]; sg["n"] += 1
            g.wait(vm=need or None, lg=(0 if nb == 14 else ("rd", s, 0)))
            if s == GS: stA(); gate(0); stA()
            else: e("s_barrier")
            if nb <= 10: stF(1)
            if nb >= 7: stF(2)
            if s == SIGS: signal(0)
            for c in ([nb - 2] if nb < 14 else [12, 13]):
                if c >= 0:
                    for it in uitems(c): release(it)
        else:
            need = []
            if STG1 and stage_ready(O("sma", 8)) and s > 2 * LA + 2 and not sgq:
                need.append(("it", 21 + sg["n"])); sgq = [(4, r) for r in wd_reads(sg["n"])]; sg["n"] += 1
            g.wait(vm=need or None, lg=("rd", s, 0))
        for (s0, n0) in sgmark:
            if s >= s0 + 2 or s == 27: sg["done"] = max(sg["done"], n0)
        stage_release()
        if s == 2 * LA:
            only(PW, "L_nal")
            e("global_load_dword v%d, v%d, s[14:15] sc1" % (vArm, vArmA))
            g.label("L_nal")
            g.al = len(g.vm)
        rds = s1_reads(s + 1) if s + 1 < 28 else []
        xs = 2 * cu + kk
        nph = units[(s + 1) // 2][0] if s < 27 else 1
        rate = 4 if st["np"] < 21 * 4 else RB
        RG = [0, 1, 2, 3, 4, 5, 6, 8, 9, 10, 11, 12] if nph == 0 else [0, 1, 2, 3, 8, 9, 10, 11]
        DG = {4: [2, 6, 10, 14], 3: [5, 9, 13], 2: [5, 13], 1: [13], 0: []}[rate] if nph == 1 else [3, 9, 13, 14]
        for m in range(16):
            a, t = m >> 2, m & 3
            if m == 8 and s < 27: g.wait(lg=("rd", s, 2))
            if s == O("ps", 21) and m == 8: poll_issue(0)
            D = D1(ph, a, t)
            e("%s %s, %s, %s, %s" % (MF, rng("v", D, 4), rng("v", vAbuf(s & 1, a), 4), rng("a", (xs * 4 + t) * 4, 4), "0" if xs == 0 else rng("v", D, 4)))
            budget = BUD + carry - (4 if m in (7, 15) else 0)
            if rds and m in RG: rds.pop(0)(); budget -= 4
            if s >= GS: hs["lim"] = min(28, 4 * (s - 14))
            if m in DG: budget -= 4 * mem()
            if (m + 1) in DG and m not in DG and can() and setup_needed(): budget -= 4 * setup()
            for _ in range(0 if m in DG or m == 7 or m == 15 else (1 if m in RG else 2)):
                if sgq and m >= 4:
                    sgq.pop(0)[1]()
                    if not sgq: sgmark.append((s, sg["n"]))
            while epq and budget >= epq[0][0]:
                c, f = epq.pop(0); f(); budget -= c
            carry = max(-8, min(budget, O("cmax", 4))) if epq else 0
        assert not rds
    stA(); stF(2)
    print("issued by T:", st["np"], hs["n"], "staged", sg["n"])
    while sgq: sgq.pop(0)[1]()
    def stage_now():
        u = sg["n"]
        through(21 + u)
        g.wait(vm=("it", 21 + u), lg=0)
        sg["done"] = sg["n"]; stage_release()
        for r in wd_reads(u): r()
        sg["n"] += 1
    RE = O("re", 10)
    O2 = {1: (1,), 2: (1, 3)}[O("r2", 1)]
    hs["lim"] = 28
    e("s_nop 4")
    for cnt, (c, f) in enumerate(epilogue_ops(1, 1)):
        f()
        if cnt % RE == 0 and cnt < O("rstop", 999): mem()
        if cnt % 16 == 3 and stage_ready(O("smb", 6)): stage_now()
    while sg["n"] < NSTG: stage_now()
    if NSTG == 0:
        g.wait(vm=("it", 21))
        for r in wd_reads(0): r()
    stA(); stF(2); stF(3)
    SGQ = O("sgq", 6)
    A2 = ACC[1]
    D2 = lambda t, c: A2 + (t * 4 + c) * 4
    RW = T + 12
    def red_writes(m):
        return [lambda q=q: e("ds_write_b128 v%d, %s offset:%d" % (RW, rng("v", A2 + m * 16 + 4 * q, 4), m * 16384 + q * 1024)) for q in range(4)]
    GQ = O("gq", 22); PQ = O("pq", 18)
    rds = []; wq = []
    for qi, (u, t) in enumerate(HORD):
        if qi == PQ: poll_issue(1)
        if qi == GQ:
            for _ in range(O("gb", 4)): mem()
            stA(); gate(1); stA()
            hs["lim"] = 56
            for _ in range(O("ga2", 8)): mem()
        while hs["n"] <= min(55, (qi | 3)): mem()
        need = [("hl", u, t)]
        if qi == SGQ: need.append(("hst", 1))
        merged = u >= 14 - ML
        if qi == 4 * (14 - ML):
            assert not rds
            g.wait(vm=need, lg=0)
        elif not merged and t == 0:
            assert not rds
            g.wait(vm=need, lg=(0 if u == 0 else ("r2", u) if u >= NSTG else None))
            if u == 0: sg["done"] = NSTG; stage_release()
            if u >= NSTG: release(21 + u)
            if u < 8: stF(3)
            if u >= 5: stF(4)
        elif not merged and t == 1 and NSTG <= u + 1:
            lastu = u + 1 if u + 1 < 14 - ML else 13
            through(21 + lastu); need.append(("it", 21 + lastu))
            g.wait(vm=need)
            rds = sum((wd_reads(k) for k in range(u + 1, lastu + 1)), [])
        else:
            g.wait(vm=need)
        if qi == SGQ:
            e("s_barrier"); signal(1); stA()
        for c in range(4):
            D = D2(t, c)
            A = areg(u, c)
            e("%s %s, %s, %s, %s" % (MF, rng("v", D, 4), rng(A[0], A[1], 4), rng("a", hreg(u, t), 4), "0" if u == 0 else rng("v", D, 4)))
            for _ in range(1 if len(rds) <= 8 - O("zz", 0) else ML):
                if rds: rds.pop(0)()
            wq = [(d - 1, w) for d, w in wq]
            if wq and wq[0][0] <= 0 and c % 2 == 1: wq.pop(0)[1]()
            if c in O2: mem()
        if u == 13 and t != 0: wq += [(5, w) for w in red_writes(t)]
    assert st["np"] == len(allp) and hs["n"] == 56
    stA(); stF(4)
    if ML == 1: e("s_nop 1")
    for d, w in wq: w()
    e("s_waitcnt lgkmcnt(0)")
    e("s_barrier")
    R = A2
    for m in (1, 2, 3):
        for q in range(4):
            e("ds_read_b128 %s, v%d offset:%d" % (rng("v", R + m * 16 + q * 4, 4), RW + m, m * 16384 + q * 1024))
    for m in (1, 2, 3):
        e("s_waitcnt lgkmcnt(%d)" % (12 - 4 * m))
        for i in range(0, 16, 2): e("v_pk_add_f32 %s, %s, %s" % (rng("v", R + i, 2), rng("v", R + i, 2), rng("v", R + 16 * m + i, 2)))
    for i in range(8): e("v_cvt_pk_bf16_f32 v%d, v%d, v%d" % (R + 16 + i, R + 2 * i, R + 2 * i + 1))
    if O("st2"):
        for c in range(4):
            e("buffer_store_dwordx2 %s, v%d, %s, %s offen offset:%d" % (rng("v", R + 16 + 2 * c, 2), vOut, srd(sO), sOut, 32 * c))
    else:
        e("s_nop 1")
        for pr in range(2):
            e("v_permlane16_swap_b32 v%d, v%d" % (R + 16 + 4 * pr, R + 18 + 4 * pr))
            e("v_permlane16_swap_b32 v%d, v%d" % (R + 17 + 4 * pr, R + 19 + 4 * pr))
        e("buffer_store_dwordx4 %s, v%d, %s, %s offen" % (rng("v", R + 16, 4), vOut, srd(sO), sOut))
        e("buffer_store_dwordx4 %s, v%d, %s, %s offen offset:64" % (rng("v", R + 20, 4), vOut, srd(sO), sOut))
    if O("fix"):
        g.label("L_fix")
        e("s_memrealtime s[96:97]")
        e("s_waitcnt lgkmcnt(0)")
        e("s_sub_u32 s95, s96, s98")
        e("s_cmp_lt_u32 s95, %d" % O("fix"))
        e("s_cbranch_scc1 L_fix")
    if stamps:
        e("s_waitcnt vmcnt(0)")
        stA()
        e("s_waitcnt lgkmcnt(0)")
        e("s_add_u32 s16, s16, 0x8000000")
        e("s_addc_u32 s17, s17, 0")
        e("s_lshl_b32 s57, s2, 2")
        e("s_add_u32 s57, s57, s%d" % sWV)
        e("s_lshl_b32 s57, s57, 7")
        e("v_mov_b32 v1, s57")
        e("s_mov_b64 exec, 1")
        for j in range(g.nst):
            e("v_mov_b32 v2, s%d" % (SB + 2 * j))
            e("v_mov_b32 v3, s%d" % (SB + 1 + 2 * j))
            e("global_store_dwordx2 v1, v[2:3], s[16:17] offset:%d" % (8 * j))
            e("s_nop 1")
    e("s_endpgm")
    HELP = O("help", 7)
    g.label("L_help2")
    e("s_and_b32 s41, s40, 7")
    e("s_lshr_b32 s42, s40, 3")
    e("s_lshr_b32 s43, s41, 1")
    e("s_lshl_b32 s43, s43, 2")
    e("s_add_u32 s43, s43, s42")
    e("s_mul_i32 s44, s43, %d" % (28 * 3584))
    e("s_and_b32 s45, s41, 1")
    e("s_mul_i32 s45, s45, %d" % (7 * 256))
    e("s_add_u32 s44, s44, s45")
    e("s_addk_i32 s44, 128")
    e("v_mul_u32_u24 v1, 9363, v0")
    e("v_lshrrev_b32 v1, 16, v1")
    e("v_mul_u32_u24 v2, 7, v1")
    e("v_sub_u32 v2, v0, v2")
    e("v_mul_u32_u24 v1, 3584, v1")
    e("v_lshl_add_u32 v1, v2, 8, v1")
    e("v_mov_b32 v3, 0x7fffffff")
    e("v_cmp_gt_u32 vcc, 196, v0")
    e("v_lshlrev_b32 v4, 7, v0")
    e("s_lshl_b32 s46, s41, 2")
    e("v_cndmask_b32 v1, v3, v1, vcc")
    e("v_cndmask_b32 v5, v3, v4, vcc")
    e("v_cmp_gt_u32 vcc, 224, v0")
    e("s_add_u32 s46, s46, s42")
    e("s_mul_i32 s46, s46, %d" % (392 * 128))
    e("v_cndmask_b32 v6, v3, v4, vcc")
    e("s_waitcnt lgkmcnt(0)")
    mk_srd(20, 6, 448 * 3584); mk_srd(24, 8, 448 * 3584); mk_srd(28, 10, 1792 * 896)
    e("s_mul_i32 s49, s40, %d" % (7 * FS))
    e("s_add_u32 s49, s49, 0x%x" % FLAGOFF)
    e("v_lshl_add_u32 v14, v0, 2, s49")
    e("v_mov_b32 v15, 0")
    e("s_and_saveexec_b64 s[32:33], vcc")
    e("global_store_dword v14, v15, s[16:17] sc1")
    e("s_mov_b64 exec, -1")
    e("s_waitcnt vmcnt(0)")
    e("s_barrier")
    e("v_lshlrev_b32 v14, 7, v0")
    e("v_mov_b32 v15, 1")
    e("v_cmp_gt_u32 vcc, 2, v0")
    e("s_and_saveexec_b64 s[32:33], vcc")
    e("s_cbranch_execz L_nha")
    e("global_atomic_add v14, v15, s[14:15] sc1")
    g.label("L_nha")
    e("s_mov_b64 exec, -1")
    if HELP & 1:
        e("buffer_load_dword v8, v1, s[20:23], s44 offen")
        e("buffer_load_dword v9, v1, s[24:27], s44 offen")
    if HELP & 2:
        e("buffer_load_dword v10, v5, s[28:31], s46 offen")
        e("s_add_u32 s46, s46, %d" % (196 * 128))
        e("buffer_load_dword v11, v5, s[28:31], s46 offen")
    if HELP & 4:
        e("s_mul_i32 s46, s42, %d" % (128 * 896))
        e("s_mov_b32 s48, s42")
        e("s_waitcnt vmcnt(0)"); e("s_barrier")
        g.label("L_hl")
        e("buffer_load_dword v12, v6, s[28:31], s46 offen")
        e("s_add_u32 s47, s46, %d" % (224 * 128))
        e("buffer_load_dword v13, v6, s[28:31], s47 offen")
        e("s_add_u32 s46, s46, %d" % (4 * 128 * 896))
        e("s_cmp_ge_u32 s46, %d" % (1792 * 896))
        e("s_cselect_b32 s47, %d, 0" % (1792 * 896 - 64 * 896))
        e("s_sub_u32 s46, s46, s47")
        e("s_addk_i32 s48, 4")
        e("s_cmp_lt_u32 s48, 28")
        e("s_cbranch_scc1 L_hl")
    e("s_waitcnt vmcnt(0)")
    g.label("L_end2")
    e("s_endpgm")
    check_hazards(g.L)
    return g.L

from gen9 import emit
if __name__ == "__main__":
    out = sys.argv[1]
    stamps = 1 if "--stamps" in sys.argv else (2 if "--cyc" in sys.argv else 0)
    opt = {}
    for a in sys.argv[2:]:
        if a.startswith("-o"):
            k, _, v = a[2:].partition("=")
            opt[k] = int(v) if v else 1
    emit(build(stamps, opt), out)
```

```python
import sys
from asmlib import *
from hazard import check_hazards
from gen import Gen, rng

NS = 10
FLAGOFF = 8 << 20
FS = 128
MF = "v_mfma_f32_16x16x32_bf16"

def build(stamps=False, opt=None):
    opt = opt or {}
    O = lambda k, d=0: opt.get(k, d)
    g = Gen(stamps); e = g.e
    SB = 78
    def stamp():
        if stamps:
            r = SB + 2 * g.nst
            assert r + 1 < 102
            e("%s s[%d:%d]" % ("s_memtime" if stamps == 2 else "s_memrealtime", r, r + 1)); g.nst += 1
    FINE = O("fine")
    if O("both"):
        cntr = {"k": 0}
        sel = {1: (2, 3, 6, 7, 10), 2: (1, 2, 3, 7, 10), 3: (1, 2, 3, 4, 7)}[O("both")]
        def stamp2():
            cntr["k"] += 1
            if cntr["k"] in sel:
                r = SB + 2 * g.nst
                e("s_memrealtime s[%d:%d]" % (r, r + 1)); e("s_memtime s[%d:%d]" % (r + 2, r + 3)); g.nst += 2
    stA = (lambda: None) if FINE else (stamp2 if O("both") else stamp)
    stF = lambda k: stamp() if FINE == k else None
    srd = lambda b: rng("s", b, 4)
    sX, sW, sWD, sH, sO = 20, 24, 28, 32, 36
    sMB, sFB, sWV, sTB, sCB = 40, 41, 42, 43, 44
    sDo, sLB, sHs, sDb, sH2, sOut = "s45", "s46", "s47", "s48", "s50", "s8"
    sCx = lambda i: "s%d" % (64 + i)
    sCw = lambda i: "s%d" % (71 + i)
    vX = lambda j: 2 + j
    vW = lambda j: 6 + j
    vXB = lambda kk, b: 10 + b * 2 + kk
    vWA = lambda jf, b: 16 + b * 2 + jf
    vL16, vFlag = 22, 23
    vH = lambda t: 24 + t
    vAbuf = lambda buf, j: 32 + buf * 16 + j * 4
    ACC = [64, 128]
    vD = lambda j: 192 + j
    vFlag2, vArmA, vArm, vOut, vPol, vOne = 196, 197, 198, 199, 200, 201
    T = 204
    vDA = lambda c, b: 220 + b * 4 + c

    stamp()
    e("s_load_dwordx8 s[4:11], s[0:1], 0")
    e("s_load_dwordx4 s[12:15], s[0:1], 32")
    e("s_load_dwordx2 s[16:17], s[0:1], 48")
    e("s_sub_u32 s2, s2, 32")
    e("s_cmp_lt_u32 s2, 224")
    e("s_cbranch_scc1 L_main")
    e("s_add_u32 s40, s2, 32")
    e("s_cmp_ge_u32 s40, 32")
    e("s_cbranch_scc1 L_end2")
    e("s_getpc_b64 s[30:31]")
    e("v_lshlrev_b32 v4, 7, v0")
    e("v_cmp_gt_u32 vcc, @NLINES@, v0")
    e("s_and_saveexec_b64 s[32:33], vcc")
    e("s_cbranch_execz L_ncp")
    e("global_load_dword v7, v4, s[30:31]")
    g.label("L_ncp")
    e("s_mov_b64 exec, -1")
    e("s_branch L_help2")
    g.label("L_main")
    e("v_lshrrev_b32 v%d, 6, v0" % T)
    e("v_and_b32 v0, 63, v0")
    e("v_readfirstlane_b32 s%d, v%d" % (sWV, T))
    e("s_and_b32 s51, s2, 7")
    e("s_lshr_b32 s52, s2, 3")
    e("s_mul_i32 s53, s52, 37")
    e("s_lshr_b32 s53, s53, 8")
    e("s_mul_i32 s54, s53, 7")
    e("s_sub_u32 s54, s52, s54")
    e("s_lshr_b32 s55, s51, 1")
    e("s_lshl_b32 s%d, s55, 2" % sMB)
    e("s_add_u32 s%d, s%d, s53" % (sMB, sMB))
    e("s_and_b32 s56, s51, 1")
    e("s_mul_i32 s%d, s56, 7" % sFB)
    e("s_add_u32 s%d, s%d, s54" % (sFB, sFB))
    e("s_lshl_b32 s56, s53, 1")
    e("s_add_u32 s56, s56, s54")
    e("s_add_u32 s56, s56, s55")
    e("s_mul_i32 s57, s56, 37")
    e("s_lshr_b32 s57, s57, 8")
    e("s_mul_i32 s57, s57, 7")
    e("s_sub_u32 s3, s56, s57")
    r8, p7, rh, t0, t1, rl = T, T + 1, T + 2, T + 3, T + 4, T + 5
    e("v_lshrrev_b32 v%d, 3, v0" % r8)
    e("v_and_b32 v%d, 7, v0" % p7)
    e("v_lshrrev_b32 v%d, 1, v%d" % (rh, r8))
    e("v_xor_b32 v%d, v%d, v%d" % (t0, p7, rh))
    e("v_lshlrev_b32 v%d, 4, v%d" % (t0, t0))
    e("v_mul_u32_u24 v%d, 896, v%d" % (t1, r8))
    e("v_add_u32 v%d, v%d, v%d" % (vX(0), t1, t0))
    e("v_xor_b32 v%d, 64, v%d" % (t0, t0))
    e("s_movk_i32 s57, %d" % (7168 - 1024))
    e("v_add3_u32 v%d, v%d, v%d, s57" % (vX(1), t1, t0))
    e("v_add_u32 v%d, %d, v%d" % (vX(2), 2 * (7168 - 1024), vX(0)))
    e("v_add_u32 v%d, %d, v%d" % (vX(3), 2 * (7168 - 1024), vX(1)))
    e("s_lshr_b32 s55, s%d, 1" % sWV)
    e("v_and_b32 v%d, 1, v%d" % (rl, rh))
    e("v_lshlrev_b32 v%d, 5, v%d" % (t0, rl))
    e("v_lshlrev_b32 v%d, 4, v%d" % (p7, p7))
    e("v_xor_b32 v%d, v%d, v%d" % (t0, t0, p7))
    e("v_mul_u32_u24 v%d, 3584, v%d" % (rl, r8))
    e("v_add_u32 v%d, v%d, v%d" % (vW(0), rl, t0))
    e("v_xor_b32 v%d, 64, v%d" % (t0, t0))
    e("s_movk_i32 s57, %d" % (28672 - 1024))
    e("v_add3_u32 v%d, v%d, v%d, s57" % (vW(1), rl, t0))
    e("v_add_u32 v%d, %d, v%d" % (vW(2), 2 * (28672 - 1024), vW(0)))
    e("v_add_u32 v%d, %d, v%d" % (vW(3), 2 * (28672 - 1024), vW(1)))
    for j in range(4): e("v_add_u32 v%d, 128, v%d" % (232 + j, vW(j)))
    e("s_mul_i32 s18, s%d, %d" % (sMB, 128 * 896))
    e("s_mul_i32 s57, s%d, %d" % (sWV, 32 * 896))
    e("s_add_u32 s18, s18, s57")
    e("s_and_b32 s57, s%d, 1" % sWV)
    e("s_mul_i32 s19, s57, %d" % (32 * 3584))
    e("s_lshl_b32 s58, s%d, 8" % sFB)
    e("s_add_u32 s19, s19, s58")
    e("s_lshl_b32 %s, s%d, 12" % (sLB, sWV))
    def table(i):
        e("s_lshl_b32 s57, s3, 7")
        e("s_add_u32 %s, s57, s18" % sCx(i))
        e("s_mul_i32 s57, s3, %d" % (64 * 3584))
        e("s_add_u32 %s, s57, s19" % sCw(i))
        e("s_add_u32 s3, s3, 1")
        e("s_cmp_eq_u32 s3, 7")
        e("s_cselect_b32 s3, 0, s3")
    table(0); table(1)
    e("s_mov_b32 s%d, %d" % (sX + 2, 2048 * 896))
    e("s_mov_b32 s%d, 0x20000" % (sX + 3))
    e("s_mov_b32 s%d, %d" % (sW + 2, 448 * 3584))
    e("s_mov_b32 s%d, 0x20000" % (sW + 3))
    stF(5)
    e("s_waitcnt lgkmcnt(0)")
    stF(5)
    e("s_mov_b32 s%d, s4" % sX)
    e("s_and_b32 s%d, s5, 0xffff" % (sX + 1))
    e("s_cmp_eq_u32 s55, 0")
    e("s_cselect_b32 s%d, s6, s8" % sW)
    e("s_cselect_b32 s%d, s7, s9" % (sW + 1))
    e("s_and_b32 s%d, s%d, 0xffff" % (sW + 1, sW + 1))
    g.cur[sHs] = 0

    SCH = {0: "aaaaaaabbbbbbb", 1: "aabaabaaabbbbb", 2: "aaabaaaabbbbbb", 3: "aaabaabaabbbbb", 4: "aaaabaaabbbbbb", 5: "aababaababABBB".lower(), 6: "aabaabaabaBBBB".lower(), 7: "aabababababABB".lower(), 8: "abaabaababABBB".lower(), 9: "ababaaaaaBBBBB".lower(), 10: "ababaabaaaBBBB".lower(), 11: "abaaaaaaBBBBBB".lower(), 12: "abaabaaaaBBBBB".lower()}[O("sch", 0)]
    units = []; cnt_ = {"a": 0, "b": 0}
    for ch in SCH: units.append((0 if ch == "a" else 1, cnt_[ch])); cnt_[ch] += 1
    uitems = lambda n: [2 * units[n][1], 2 * units[n][1] + 1] if units[n][0] == 0 else [14 + units[n][1]]
    order = sum((uitems(n) for n in range(14)), []) + list(range(21, 35))
    pos = {it: k for k, it in enumerate(order)}
    LA = max(n for n in range(14) if units[n][0] == 0)
    vWb = lambda j: 232 + j
    allp = [(i, jj) for i in order for jj in range(4)]
    st = {"np": 0}
    pool = list(range(NS)); smap = {}
    def slot(i): return smap[i] * 16384
    def release(i): pool.append(smap[i])
    def setup_needed(): return allp[st["np"]][1] == 0 and st.get("su") != st["np"]
    def setup(nop=False):
        i, jj = allp[st["np"]]
        smap[i] = pool.pop(0)
        st["su"] = st["np"]
        e("s_add_u32 m0, %s, 0x%x" % (sLB, slot(i)))
        if i >= 21:
            c, ph = (i - 21) % 7, (i - 21) // 7
            e("s_add_u32 %s, %s, 0x%x" % (sDo, sDb, (256 * c + 64 * ph) * 896))
            return 2
        if nop: e("s_nop 0")
        return 1
    def one():
        n = 1
        if setup_needed(): n += setup(True)
        i, jj = allp[st["np"]]; st["np"] += 1
        off = " offset:%d" % (jj * 1024) if jj else ""
        if O("nodma") and st["np"] > 40 and st["np"] <= O("nodma"):
            g.vm.append(("it", i)); return n
        if i < 14 and i % 2 == 0:
            g.vmop("buffer_load_dwordx4 v%d, %s, %s offen%s lds" % (vX(jj), srd(sX), sCx(i // 2), off), ("it", i))
        elif i < 21:
            g.vmop("buffer_load_dwordx4 v%d, %s, %s offen%s lds" % (vW(jj) if i < 14 else vWb(jj), srd(sW), sCw(i // 2 if i < 14 else i - 14), off), ("it", i))
        else:
            g.vmop("buffer_load_dwordx4 v%d, %s, %s offen%s lds" % (vD(jj), srd(sWD), sDo, off), ("it", i))
        return n
    def can(): return st["np"] < len(allp) and (not setup_needed() or len(pool) > 0)
    def issue(n=1):
        k = 0
        for _ in range(n):
            if can(): k += one()
        return k
    def through(item):
        while st["np"] < len(allp) and st["np"] // 4 <= pos[item]: one()
    def mk_srd(d, b, n):
        e("s_mov_b32 s%d, s%d" % (d, b))
        e("s_and_b32 s%d, s%d, 0xffff" % (d + 1, b + 1))
        e("s_mov_b32 s%d, %d" % (d + 2, n))
        e("s_mov_b32 s%d, 0x20000" % (d + 3))
    def bases(vf, n):
        for j in range(n):
            e("v_add_u32 v%d, 0x10000, v%d" % (vf(j, 1), vf(j, 0)))
            e("v_add_u32 v%d, 0x20000, v%d" % (vf(j, 2), vf(j, 0)))

    SW = PW = 1
    issue(O("pro", 10))
    stF(5)
    for i in range(2, 7): table(i)
    e("s_mul_i32 s59, s%d, %d" % (sMB, 14 * FS))
    e("s_lshl_b32 s61, s%d, 2" % sFB)
    e("s_add_u32 s59, s59, s61")
    e("s_add_u32 s59, s59, 0x%x" % FLAGOFF)
    e("v_lshl_add_u32 v%d, v0, 7, s59" % vFlag)
    e("s_lshl_b32 s%d, s51, 2" % sTB)
    e("s_add_u32 s%d, s%d, s53" % (sTB, sTB))
    e("s_mov_b32 s%d, s54" % sCB)
    mk_srd(sWD, 10, 1792 * 896); mk_srd(sH, 16, 2048 * 1792 * 2); mk_srd(sO, 12, 2048 * 896)
    e("s_mov_b32 s4, 0xbfb8aa3b"); e("s_mov_b32 s5, 0xbfb8aa3b"); e("s_mov_b32 s6, 1.0"); e("s_mov_b32 s7, 1.0")
    e("s_and_b32 s57, s%d, 1" % sWV)
    e("s_lshr_b32 s58, s%d, 1" % sWV)
    e("s_lshl_b32 s62, s58, 2")
    e("s_add_u32 s62, s62, s57")
    e("s_mul_i32 %s, s62, %d" % (sDb, 32 * 896))
    e("s_lshl_b32 s59, s%d, 7" % sCB)
    e("s_add_u32 %s, %s, s59" % (sDb, sDb))
    e("v_lshlrev_b32 v%d, 5, v%d" % (t0, rh))
    e("v_xor_b32 v%d, v%d, v%d" % (t0, t0, p7))
    e("v_add_u32 v%d, v%d, v%d" % (vD(0), t1, t0))
    for j in range(1, 4): e("v_add_u32 v%d, %d, v%d" % (vD(j), j * (7168 - 1024), vD(0)))
    e("v_lshlrev_b32 v%d, 4, v0" % vL16)
    e("s_lshl_b32 s59, s%d, 3" % sMB)
    e("s_lshl_b32 s60, s57, 2")
    e("s_add_u32 s59, s59, s60")
    e("s_mul_i32 s59, s59, 56")
    e("s_lshl_b32 s60, s%d, 2" % sFB)
    e("s_add_u32 s59, s59, s60")
    e("s_add_u32 s59, s59, s58")
    e("s_lshl_b32 %s, s59, 10" % sHs)
    e("s_mul_i32 s59, s%d, 224" % sTB)
    e("s_add_u32 s59, s59, s62")
    for m in range(4):
        e("s_xor_b32 s60, s%d, %d" % (sWV, m))
        e("s_mul_i32 s60, s60, 56")
        e("s_add_u32 s60, s60, s59")
        e("s_lshl_b32 s60, s60, 10")
        e("v_add_u32 v%d, s60, v%d" % (vH(m), vL16))
    e("s_mul_i32 s59, s51, 28")
    e("s_add_u32 s59, s59, s52")
    e("s_mul_i32 s59, s59, %d" % FS)
    e("s_add_u32 s59, s59, 0x%x" % FLAGOFF)
    e("v_min_u32 v%d, 13, v0" % vFlag2)
    e("v_lshl_add_u32 v%d, v%d, 2, s59" % (vFlag2, vFlag2))
    e("s_and_b32 s59, s51, 1")
    e("s_lshl_b32 s59, s59, 7")
    e("v_mov_b32 v%d, s59" % vArmA)
    e("v_mov_b32 v%d, 1" % vOne)
    tk, q4, sw, rr, cc, a0, q1 = T + 6, T + 7, T + 8, T + 9, T + 10, T + 11, T + 5
    e("v_and_b32 v%d, 15, v0" % tk)
    e("v_lshrrev_b32 v%d, 4, v0" % q4)
    e("v_bfe_u32 v%d, v0, 1, 3" % sw)
    e("v_xor_b32 v%d, v%d, v%d" % (sw, sw, q4))
    e("v_lshlrev_b32 v%d, 4, v%d" % (sw, sw))
    e("v_lshl_add_u32 v%d, v%d, 7, v%d" % (sw, tk, sw))
    e("s_lshl_b32 s59, s57, 13")
    e("v_add_u32 v%d, s59, v%d" % (vXB(0, 0), sw))
    e("v_xor_b32 v%d, 64, v%d" % (vXB(1, 0), vXB(0, 0)))
    bases(vXB, 2)
    e("v_bfe_u32 v%d, v0, 2, 2" % rr)
    e("v_and_b32 v%d, 3, v0" % cc)
    e("v_lshlrev_b32 v%d, 3, v%d" % (cc, cc))
    e("v_and_b32 v%d, 1, v%d" % (q1, q4))
    e("v_lshrrev_b32 v%d, 1, v%d" % (t0, rr))
    e("v_lshl_or_b32 v%d, v%d, 1, v%d" % (t0, q1, t0))
    e("v_lshl_add_u32 v%d, v%d, 3, v%d" % (a0, q4, rr))
    e("v_lshl_add_u32 v%d, v%d, 7, v%d" % (a0, a0, cc))
    e("s_lshl_b32 s59, s58, 1")
    e("v_xor_b32 v%d, s59, v%d" % (t1, t0))
    e("v_lshl_add_u32 v%d, v%d, 5, v%d" % (vWA(0, 0), t1, a0))
    e("v_xor_b32 v%d, 32, v%d" % (vWA(1, 0), vWA(0, 0)))
    bases(vWA, 2)
    e("v_lshl_add_u32 v%d, v%d, 2, v%d" % (a0, q4, rr))
    e("v_lshl_add_u32 v%d, v%d, 7, v%d" % (a0, a0, cc))
    e("v_lshl_add_u32 v%d, v%d, 5, v%d" % (a0, t0, a0))
    e("v_add_u32 v%d, %s, v%d" % (vDA(0, 0), sLB, a0))
    for c in range(1, 4): e("v_xor_b32 v%d, %d, v%d" % (vDA(c, 0), 32 * c, vDA(0, 0)))
    bases(vDA, 4)
    e("v_mul_u32_u24 v%d, 896, v%d" % (vOut, tk))
    if O("st2"):
        e("v_lshl_add_u32 v%d, v%d, 3, v%d" % (vOut, q4, vOut))
    else:
        e("v_lshl_add_u32 v%d, v%d, 5, v%d" % (vOut, q1, vOut))
        e("v_lshrrev_b32 v%d, 1, v%d" % (t1, q4))
        e("v_lshl_add_u32 v%d, v%d, 4, v%d" % (vOut, t1, vOut))
    e("s_lshl_b32 s60, s%d, 2" % sTB)
    e("s_add_u32 s60, s60, s%d" % sWV)
    e("s_mul_i32 s60, s60, %d" % (16 * 896))
    e("s_lshl_b32 s59, s%d, 7" % sCB)
    e("s_add_u32 %s, s60, s59" % sOut)
    e("v_add_u32 v%d, %s, v%d" % (T + 12, sLB, vL16))
    for mm in (1, 2, 3): e("v_xor_b32 v%d, %d, v%d" % (T + 12 + mm, mm * 4096, T + 12))

    def lds_ref(vf, byte): return "v%d offset:%d" % (vf(byte >> 16), byte & 0xffff)
    def s1_reads(s):
        n, kk = s // 2, s % 2
        ph, c = units[n]
        wb = slot(uitems(n)[-1])
        xs = 2 * c + kk
        def ard(a, j2):
            jf, mat = a >> 1, a & 1
            return lambda: g.lgop("ds_read_b64_tr_b16 %s, %s" % (rng("v", vAbuf(s & 1, a) + 2 * j2, 2), lds_ref(lambda b: vWA(jf, b), wb + mat * 8192 + kk * 4096 + j2 * 512)), ("rd", s, a & 2))
        out = [ard(0, 0), ard(0, 1)]
        if ph == 0:
            out += [lambda t=t: g.lgop("ds_read_b128 %s, %s" % (rng("a", (xs * 4 + t) * 4, 4), lds_ref(lambda b: vXB(kk, b), slot(2 * c) + t * 2048)), ("rd", s, 0)) for t in range(4)]
        out += [ard(a, j2) for a in (1, 2, 3) for j2 in range(2)]
        return out
    D1 = lambda ph, a, t: ACC[ph] + (a * 4 + t) * 4
    def epilogue_ops(ph, pk):
        ops = []
        for t in range(4):
            G = [D1(ph, 0, t) + i for i in range(4)] + [D1(ph, 2, t) + i for i in range(4)]
            U = [D1(ph, 1, t) + i for i in range(4)] + [D1(ph, 3, t) + i for i in range(4)]
            def V(s, c=4): ops.append((c, lambda s=s: e(s)))
            if pk:
                for i in range(0, 8, 2): V("v_pk_mul_f32 %s, %s, s[4:5]" % (rng("v", G[i], 2), rng("v", G[i], 2)))
                for i in range(8): V("v_exp_f32 v%d, v%d" % (G[i], G[i]), 8)
                for i in range(0, 8, 2): V("v_pk_add_f32 %s, %s, s[6:7]" % (rng("v", G[i], 2), rng("v", G[i], 2)))
                for i in range(8): V("v_rcp_f32 v%d, v%d" % (G[i], G[i]), 8)
                for i in range(0, 8, 2): V("v_pk_mul_f32 %s, %s, %s" % (rng("v", G[i], 2), rng("v", G[i], 2), rng("v", U[i], 2)))
            else:
                for i in range(8): V("v_mul_f32 v%d, s4, v%d" % (G[i], G[i]))
                for i in range(8): V("v_exp_f32 v%d, v%d" % (G[i], G[i]), 8)
                for i in range(8): V("v_add_f32 v%d, 1.0, v%d" % (G[i], G[i]))
                for i in range(8): V("v_rcp_f32 v%d, v%d" % (G[i], G[i]), 8)
                for i in range(8): V("v_mul_f32 v%d, v%d, v%d" % (G[i], G[i], U[i]))
            for i in range(4): V("v_cvt_pk_bf16_f32 v%d, v%d, v%d" % (U[i], G[2 * i], G[2 * i + 1]))
            def stf(t=t, U=U):
                e(g.setoff(sHs, (t * 56 + 2 * ph) * 1024))
                g.vmop("buffer_store_dwordx4 %s, v%d, %s, %s offen sc1" % (rng("v", U[0], 4), vL16, srd(sH), sHs), ("hst", ph))
            ops.append((8, stf))
        return ops
    def only(w, nm):
        e("s_cmp_lg_u32 s%d, %d" % (sWV, w)); e("s_cbranch_scc1 %s" % nm)
    def signal(ph):
        only(SW, "L_nosig%d" % ph)
        if ph == 0:
            e("s_mov_b32 s61, 0")
            g.label("L_arm")
            e("v_readfirstlane_b32 s57, v%d" % vArm)
            e("s_addk_i32 s61, 1")
            e("s_cmp_ge_u32 s61, 0x40000")
            e("s_cbranch_scc1 L_armd")
            e("s_cmp_ge_u32 s57, 32")
            e("s_cbranch_scc1 L_armd")
            e("s_sleep 8")
            e("global_load_dword v%d, v%d, s[14:15] sc1" % (vArm, vArmA))
            e("s_waitcnt vmcnt(0)")
            e("s_branch L_arm")
            g.label("L_armd")
        e("s_mov_b64 exec, 0x3fff")
        e("global_store_dword v%d, v%d, s[16:17] offset:%d sc1" % (vFlag, vOne, 64 * ph))
        e("s_mov_b64 exec, -1")
        g.label("L_nosig%d" % ph)
    def poll_issue(ph):
        only(PW, "L_npi%d" % ph)
        e("global_load_dword v%d, v%d, s[16:17] offset:%d sc1" % (vPol, vFlag2, 64 * ph))
        g.label("L_npi%d" % ph)
        g.pi = len(g.vm)
    def gate(ph):
        only(PW, "L_pok%d" % ph)
        e("s_waitcnt vmcnt(%d)" % min(63, len(g.vm) - g.pi))
        e("s_mov_b32 s61, 0")
        g.label("L_poll%d" % ph)
        e("v_cmp_ne_u32 vcc, 1, v%d" % vPol)
        e("s_addk_i32 s61, 1")
        e("s_cmp_ge_u32 s61, 0x40000")
        e("s_cbranch_scc1 L_pok%d" % ph)
        e("s_cmp_eq_u64 vcc, 0")
        e("s_cbranch_scc1 L_pok%d" % ph)
        e("s_sleep %d" % O("slp", 2))
        e("global_load_dword v%d, v%d, s[16:17] offset:%d sc1" % (vPol, vFlag2, 64 * ph))
        e("s_waitcnt vmcnt(0)")
        e("s_branch L_poll%d" % ph)
        g.label("L_pok%d" % ph)
        e("s_barrier")

    SREG = [("v", 64 + 4 * k) for k in range(16)] + [("a", 224 + 4 * k) for k in range(8)] + [("v", 240 + 4 * k) for k in range(4)]
    NSTG = O("nstg", 7)
    def areg(u, c):
        if u < NSTG: return SREG[u * 4 + c]
        if u > 14 - O("ml", 2): return ("v", 64 + (13 - u) * 16 + c * 4)
        return ("v", vAbuf(u & 1, c))
    def wd_reads(u):
        dst = lambda c: areg(u, c)
        return [lambda c=c, j2=j2: g.lgop("ds_read_b64_tr_b16 %s, %s" % (rng(dst(c)[0], dst(c)[1] + 2 * j2, 2), lds_ref(lambda b: vDA(c, b), slot(21 + u) + j2 * 2048)), ("r2", u))
                for c in range(4) for j2 in range(2)]
    sg = {"n": 0, "rel": 0}
    def stage_ready(minafter):
        u = sg["n"]
        return u < NSTG and st["np"] >= 4 * (22 + u) and g._n(g.vm, ("it", 21 + u)) >= minafter
    def stage_release():
        while sg["rel"] < sg["done"]: release(21 + sg["rel"]); sg["rel"] += 1
    sg["done"] = 0
    hreg = lambda u, t: u * 16 + t * 4
    def h_load(u, t):
        ph, i = u // 7, u % 7
        if g.cur.get("h2") != i: e("s_mov_b32 %s, 0x%x" % (sH2, i * 8192)); g.cur["h2"] = i
        g.vmop("buffer_load_dwordx4 %s, v%d, %s, %s offen%s sc1" % (rng("a", hreg(u, t), 4), vH(t), srd(sH), sH2, " offset:2048" if ph else ""), ("hl", u, t))
    HD = O("hd", 12); PI1 = O("pi1", 2); G1 = O("g1", 4)
    hs = {"n": 0, "lim": 0}
    ML = O("ml", 2)
    HORD = [(u, t) for u in range(14 - ML) for t in range(4)] + [(u, t) for t in (1, 2, 3, 0) for u in range(14 - ML, 14)]
    def hnext():
        h_load(*HORD[hs["n"]]); hs["n"] += 1
    WF = O("wf", 28)
    def mem():
        if st["np"] < 4 * WF and can(): return issue(1)
        if hs["n"] < min(hs["lim"], 28):
            k = 2 if hs["n"] % 4 == 0 else 1
            hnext(); return k
        if can(): return issue(1)
        if hs["n"] < hs["lim"]:
            hnext(); return 1
        return 0
    stF(5)
    issue(O("pro2", 8))
    stF(5)
    if FINE == 5: g.wait(vm=("it", 0)); stF(5)
    g.wait(vm=("it", 1))
    stF(5)
    e("s_barrier")
    if O("both") == 3: stA()
    stF(5)
    stF(1)
    for r in s1_reads(0): r()
    issue(O("pro3", 2))
    epq = []
    GS = O("gs", 23)
    SIGS = 2 * LA + 2 + O("sigd", 3)
    BUD = O("bud", 8); RB = O("rb", 2)
    carry = 0; racc = 0.0
    sgq = []; STG1 = 1; sgmark = []
    for s in range(28):
        n, kk = s // 2, s % 2
        ph, cu = units[n]
        if s == 2 * LA + 2:
            stA()
            e("s_nop 4")
            for k, (c, f) in enumerate(epilogue_ops(0, 1)):
                f()
                if k % O("rea", 10) == 0: issue(1)
            stA()
        if kk == 1:
            nb = n + 1
            need = []
            if nb <= 13:
                last = uitems(nb)[-1]
                through(last); need.append(("it", last))
            if s == SIGS:
                while epq: epq.pop(0)[1]()
                need.append(("hst", 0))
                assert g.al <= len(g.vm) - g._n(g.vm, ("hst", 0)) - 1
            if STG1 and stage_ready(O("sma", 8)) and s > 2 * LA + 2 and not sgq:
                need.append(("it", 21 + sg["n"])); sgq = [(4, r) for r in wd_reads(sg["n"])]; sg["n"] += 1
            g.wait(vm=need or None, lg=(0 if nb == 14 else ("rd", s, 0)))
            if s == GS: stA(); gate(0); stA()
            elif not O("nobar"): e("s_barrier")
            if nb <= 10: stF(1)
            if nb >= 7: stF(2)
            if s == SIGS: signal(0)
            for c in ([nb - 2] if nb < 14 else [12, 13]):
                if c >= 0:
                    for it in uitems(c): release(it)
        else:
            need = []
            if STG1 and stage_ready(O("sma", 8)) and s > 2 * LA + 2 and not sgq:
                need.append(("it", 21 + sg["n"])); sgq = [(4, r) for r in wd_reads(sg["n"])]; sg["n"] += 1
            g.wait(vm=need or None, lg=("rd", s, 0))
        for (s0, n0) in sgmark:
            if s >= s0 + 2 or s == 27: sg["done"] = max(sg["done"], n0)
        stage_release()
        if s == 2 * LA:
            only(PW, "L_nal")
            e("global_load_dword v%d, v%d, s[14:15] sc1" % (vArm, vArmA))
            g.label("L_nal")
            g.al = len(g.vm)
        rds = s1_reads(s + 1) if s + 1 < 28 else []
        xs = 2 * cu + kk
        nph = units[(s + 1) // 2][0] if s < 27 else 1
        racc += (O("ra10", 40) if st["np"] < 21 * 4 else O("rb10", 10 * RB)) / 10.0
        rate = min(4, int(racc)); racc -= rate
        RG = [0, 1, 2, 3, 4, 5, 6, 8, 9, 10, 11, 12] if nph == 0 else [0, 1, 2, 3, 8, 9, 10, 11]
        DG = {4: [2, 6, 10, 14], 3: [5, 9, 13], 2: [5, 13], 1: [13], 0: []}[rate] if nph == 1 else {4: [3, 9, 13, 14], 3: [3, 9, 14], 2: [5, 13], 1: [13], 0: []}[rate]
        for m in range(16):
            a, t = m >> 2, m & 3
            if m == 8 and s < 27: g.wait(lg=("rd", s, 2))
            if s == O("ps", 21) and m == 8 and GS <= 27: poll_issue(0)
            D = D1(ph, a, t)
            e("%s %s, %s, %s, %s" % (MF, rng("v", D, 4), rng("v", vAbuf(s & 1, a), 4), rng("a", (xs * 4 + t) * 4, 4), "0" if xs == 0 else rng("v", D, 4)))
            budget = BUD + carry - (4 if m in (7, 15) else 0)
            if rds and m in RG: rds.pop(0)(); budget -= 4
            if s >= GS: hs["lim"] = min(28, 4 * (s - 14))
            if m in DG: budget -= 4 * mem()
            if (m + 1) in DG and m not in DG and can() and setup_needed(): budget -= 4 * setup()
            for _ in range(0 if m in DG or m == 7 or m == 15 else (1 if m in RG else 2)):
                if sgq and m >= 4:
                    sgq.pop(0)[1]()
                    if not sgq: sgmark.append((s, sg["n"]))
            while epq and budget >= epq[0][0]:
                c, f = epq.pop(0); f(); budget -= c
            carry = max(-8, min(budget, O("cmax", 4))) if epq else 0
        assert not rds
    stA(); stF(2)
    print("issued by T:", st["np"], hs["n"], "staged", sg["n"])
    while sgq: sgq.pop(0)[1]()
    def stage_now():
        u = sg["n"]
        through(21 + u)
        g.wait(vm=("it", 21 + u), lg=0)
        sg["done"] = sg["n"]; stage_release()
        for r in wd_reads(u): r()
        sg["n"] += 1
    RE = O("re", 10)
    O2 = {1: (1,), 2: (1, 3)}[O("r2", 1)]
    if GS <= 27: hs["lim"] = 28
    e("s_nop 4")
    for cnt, (c, f) in enumerate(epilogue_ops(1, 1)):
        if GS > 27 and cnt == O("pie", 20): poll_issue(0)
        if GS > 27 and cnt == O("ga", 90): stA(); gate(0); stA(); hs["lim"] = 28
        f()
        if cnt % RE == 0 and cnt < O("rstop", 999): mem()
        if cnt % 16 == 3 and stage_ready(O("smb", 6)): stage_now()
    while sg["n"] < NSTG: stage_now()
    if NSTG == 0:
        g.wait(vm=("it", 21))
        for r in wd_reads(0): r()
    stA(); stF(2); stF(3)
    for _ in range(O("pre", 0)): mem()
    SGQ = O("sgq", 6)
    A2 = ACC[1]
    D2 = lambda t, c: A2 + (t * 4 + c) * 4
    RW = T + 12
    def red_writes(m):
        return [lambda q=q: e("ds_write_b128 v%d, %s offset:%d" % (RW, rng("v", A2 + m * 16 + 4 * q, 4), m * 16384 + q * 1024)) for q in range(4)]
    GQ = O("gq", 22); PQ = O("pq", 18)
    rds = []; wq = []
    for qi, (u, t) in enumerate(HORD):
        if qi == PQ: poll_issue(1)
        if qi == GQ:
            for _ in range(O("gb", 4)): mem()
            stA(); gate(1); stA()
            hs["lim"] = 56
            for _ in range(O("ga2", 8)): mem()
        while hs["n"] <= min(55, (qi | 3)): mem()
        need = [("hl", u, t)]
        if qi == SGQ: need.append(("hst", 1))
        merged = u >= 14 - ML
        if qi == 4 * (14 - ML):
            assert not rds
            g.wait(vm=need, lg=0)
        elif not merged and t == 0:
            assert not rds
            g.wait(vm=need, lg=(0 if u == 0 else ("r2", u) if u >= NSTG else None))
            if u == 0: sg["done"] = NSTG; stage_release()
            if u >= NSTG: release(21 + u)
            if u < 8: stF(3)
            if u >= 5: stF(4)
        elif not merged and t == 1 and NSTG <= u + 1:
            lastu = u + 1 if u + 1 < 14 - ML else 13
            through(21 + lastu); need.append(("it", 21 + lastu))
            g.wait(vm=need)
            rds = sum((wd_reads(k) for k in range(u + 1, lastu + 1)), [])
        else:
            g.wait(vm=need)
        if qi == SGQ:
            e("s_barrier"); signal(1); stA()
        for c in range(4):
            D = D2(t, c)
            A = areg(u, c)
            e("%s %s, %s, %s, %s" % (MF, rng("v", D, 4), rng(A[0], A[1], 4), rng("a", hreg(u, t), 4), "0" if u == 0 else rng("v", D, 4)))
            for _ in range(1 if len(rds) <= 8 - O("zz", 0) else ML):
                if rds: rds.pop(0)()
            wq = [(d - 1, w) for d, w in wq]
            if wq and wq[0][0] <= 0 and c % 2 == 1: wq.pop(0)[1]()
            if c in O2: mem()
        if u == 13 and t != 0: wq += [(5, w) for w in red_writes(t)]
    assert st["np"] == len(allp) and hs["n"] == 56
    stA(); stF(4)
    if ML == 1: e("s_nop 1")
    for d, w in wq: w()
    e("s_waitcnt lgkmcnt(0)")
    e("s_barrier")
    R = A2
    for m in (1, 2, 3):
        for q in range(4):
            e("ds_read_b128 %s, v%d offset:%d" % (rng("v", R + m * 16 + q * 4, 4), RW + m, m * 16384 + q * 1024))
    for m in (1, 2, 3):
        e("s_waitcnt lgkmcnt(%d)" % (12 - 4 * m))
        for i in range(0, 16, 2): e("v_pk_add_f32 %s, %s, %s" % (rng("v", R + i, 2), rng("v", R + i, 2), rng("v", R + 16 * m + i, 2)))
    for i in range(8): e("v_cvt_pk_bf16_f32 v%d, v%d, v%d" % (R + 16 + i, R + 2 * i, R + 2 * i + 1))
    if O("st2"):
        for c in range(4):
            e("buffer_store_dwordx2 %s, v%d, %s, %s offen offset:%d" % (rng("v", R + 16 + 2 * c, 2), vOut, srd(sO), sOut, 32 * c))
    else:
        e("s_nop 1")
        for pr in range(2):
            e("v_permlane16_swap_b32 v%d, v%d" % (R + 16 + 4 * pr, R + 18 + 4 * pr))
            e("v_permlane16_swap_b32 v%d, v%d" % (R + 17 + 4 * pr, R + 19 + 4 * pr))
        e("buffer_store_dwordx4 %s, v%d, %s, %s offen" % (rng("v", R + 16, 4), vOut, srd(sO), sOut))
        e("buffer_store_dwordx4 %s, v%d, %s, %s offen offset:64" % (rng("v", R + 20, 4), vOut, srd(sO), sOut))
    if stamps:
        e("s_waitcnt vmcnt(0)")
        stA(); stF(9)
        e("s_waitcnt lgkmcnt(0)")
        e("s_add_u32 s16, s16, 0x8000000")
        e("s_addc_u32 s17, s17, 0")
        e("s_lshl_b32 s57, s2, 2")
        e("s_add_u32 s57, s57, s%d" % sWV)
        e("s_lshl_b32 s57, s57, 7")
        e("v_mov_b32 v1, s57")
        e("s_mov_b64 exec, 1")
        for j in range(g.nst):
            e("v_mov_b32 v2, s%d" % (SB + 2 * j))
            e("v_mov_b32 v3, s%d" % (SB + 1 + 2 * j))
            e("global_store_dwordx2 v1, v[2:3], s[16:17] offset:%d" % (8 * j))
            e("s_nop 1")
    e("s_endpgm")
    HELP = O("help", 7)
    g.label("L_help2")
    e("s_and_b32 s41, s40, 7")
    e("s_lshr_b32 s42, s40, 3")
    e("s_lshr_b32 s43, s41, 1")
    e("s_lshl_b32 s43, s43, 2")
    e("s_add_u32 s43, s43, s42")
    e("s_mul_i32 s44, s43, %d" % (28 * 3584))
    e("s_and_b32 s45, s41, 1")
    e("s_mul_i32 s45, s45, %d" % (7 * 256))
    e("s_add_u32 s44, s44, s45")
    e("s_addk_i32 s44, 128")
    e("v_mul_u32_u24 v1, 9363, v0")
    e("v_lshrrev_b32 v1, 16, v1")
    e("v_mul_u32_u24 v2, 7, v1")
    e("v_sub_u32 v2, v0, v2")
    e("v_mul_u32_u24 v1, 3584, v1")
    e("v_lshl_add_u32 v1, v2, 8, v1")
    e("v_mov_b32 v3, 0x7fffffff")
    e("v_cmp_gt_u32 vcc, 196, v0")
    e("v_lshlrev_b32 v4, 7, v0")
    e("s_lshl_b32 s46, s41, 2")
    e("v_cndmask_b32 v1, v3, v1, vcc")
    e("v_cndmask_b32 v5, v3, v4, vcc")
    e("v_cmp_gt_u32 vcc, 224, v0")
    e("s_add_u32 s46, s46, s42")
    e("s_mul_i32 s46, s46, %d" % (392 * 128))
    e("v_cndmask_b32 v6, v3, v4, vcc")
    e("s_waitcnt lgkmcnt(0)")
    mk_srd(20, 6, 448 * 3584); mk_srd(24, 8, 448 * 3584); mk_srd(28, 10, 1792 * 896)
    e("s_mul_i32 s49, s40, %d" % (7 * FS))
    e("s_add_u32 s49, s49, 0x%x" % FLAGOFF)
    e("v_lshl_add_u32 v14, v0, 2, s49")
    e("v_mov_b32 v15, 0")
    e("s_and_saveexec_b64 s[32:33], vcc")
    e("global_store_dword v14, v15, s[16:17] sc1")
    e("s_mov_b64 exec, -1")
    e("s_waitcnt vmcnt(0)")
    e("s_barrier")
    e("v_lshlrev_b32 v14, 7, v0")
    e("v_mov_b32 v15, 1")
    e("v_cmp_gt_u32 vcc, 2, v0")
    e("s_and_saveexec_b64 s[32:33], vcc")
    e("s_cbranch_execz L_nha")
    e("global_atomic_add v14, v15, s[14:15] sc1")
    g.label("L_nha")
    e("s_mov_b64 exec, -1")
    if HELP & 1:
        e("buffer_load_dword v8, v1, s[20:23], s44 offen")
        e("buffer_load_dword v9, v1, s[24:27], s44 offen")
    if HELP & 2:
        e("buffer_load_dword v10, v5, s[28:31], s46 offen")
        e("s_add_u32 s46, s46, %d" % (196 * 128))
        e("buffer_load_dword v11, v5, s[28:31], s46 offen")
    if HELP & 4:
        e("s_mul_i32 s46, s42, %d" % (128 * 896))
        e("s_mov_b32 s48, s42")
        e("s_waitcnt vmcnt(0)"); e("s_barrier")
        g.label("L_hl")
        e("buffer_load_dword v12, v6, s[28:31], s46 offen")
        e("s_add_u32 s47, s46, %d" % (224 * 128))
        e("buffer_load_dword v13, v6, s[28:31], s47 offen")
        e("s_add_u32 s46, s46, %d" % (4 * 128 * 896))
        e("s_cmp_ge_u32 s46, %d" % (1792 * 896))
        e("s_cselect_b32 s47, %d, 0" % (1792 * 896 - 64 * 896))
        e("s_sub_u32 s46, s46, s47")
        e("s_addk_i32 s48, 4")
        e("s_cmp_lt_u32 s48, 28")
        e("s_cbranch_scc1 L_hl")
    e("s_waitcnt vmcnt(0)")
    g.label("L_end2")
    e("s_endpgm")
    check_hazards(g.L)
    return g.L

from gen9 import emit
if __name__ == "__main__":
    out = sys.argv[1]
    stamps = 1 if "--stamps" in sys.argv else (2 if "--cyc" in sys.argv else 0)
    opt = {}
    for a in sys.argv[2:]:
        if a.startswith("-o"):
            k, _, v = a[2:].partition("=")
            opt[k] = int(v) if v else 1
    emit(build(stamps, opt), out)
```

```python
import sys
from asmlib import *
from hazard import check_hazards
from gen import Gen, rng

NS = 10
FLAGOFF = 8 << 20
FS = 128
MF = "v_mfma_f32_16x16x32_bf16"

def build(stamps=False, opt=None):
    opt = opt or {}
    O = lambda k, d=0: opt.get(k, d)
    g = Gen(stamps); e = g.e
    SB = 78
    def stamp():
        if stamps:
            r = SB + 2 * g.nst
            assert r + 1 < 102
            e("%s s[%d:%d]" % ("s_memtime" if stamps == 2 else "s_memrealtime", r, r + 1)); g.nst += 1
    FINE = O("fine")
    if O("both"):
        cntr = {"k": 0}
        sel = {1: (2, 3, 6, 7, 10), 2: (1, 2, 3, 7, 10), 3: (1, 2, 3, 4, 7)}[O("both")]
        def stamp2():
            cntr["k"] += 1
            if cntr["k"] in sel:
                r = SB + 2 * g.nst
                e("s_memrealtime s[%d:%d]" % (r, r + 1)); e("s_memtime s[%d:%d]" % (r + 2, r + 3)); g.nst += 2
    stA = (lambda: None) if FINE else (stamp2 if O("both") else stamp)
    stF = lambda k: stamp() if FINE == k else None
    srd = lambda b: rng("s", b, 4)
    sX, sW, sWD, sH, sO = 20, 24, 28, 32, 36
    sMB, sFB, sWV, sTB, sCB = 40, 41, 42, 43, 44
    sDo, sLB, sHs, sDb, sH2, sOut = "s45", "s46", "s47", "s48", "s50", "s8"
    sCx = lambda i: "s%d" % (64 + i)
    sCw = lambda i: "s%d" % (71 + i)
    vX = lambda j: 2 + j
    vW = lambda j: 6 + j
    vXB = lambda kk, b: 10 + b * 2 + kk
    vWA = lambda jf, b: 16 + b * 2 + jf
    vL16, vFlag = 22, 23
    vH = lambda t: 24 + t
    vAbuf = lambda buf, j: 32 + buf * 16 + j * 4
    ACC = [64, 128]
    vD = lambda j: 192 + j
    vFlag2, vArmA, vArm, vOut, vPol, vOne, vTwo = 196, 197, 198, 199, 200, 201, 202
    T = 204
    vDA = lambda c, b: 220 + b * 4 + c

    stamp()
    e("s_load_dwordx8 s[4:11], s[0:1], 0")
    e("s_load_dwordx4 s[12:15], s[0:1], 32")
    e("s_load_dwordx2 s[16:17], s[0:1], 48")
    e("s_sub_u32 s2, s2, 32")
    e("s_cmp_lt_u32 s2, 224")
    e("s_cbranch_scc1 L_main")
    e("s_add_u32 s40, s2, 32")
    e("s_cmp_ge_u32 s40, 32")
    e("s_cbranch_scc1 L_end2")
    e("s_getpc_b64 s[30:31]")
    e("v_lshlrev_b32 v4, 7, v0")
    e("v_cmp_gt_u32 vcc, @NLINES@, v0")
    e("s_and_saveexec_b64 s[32:33], vcc")
    e("s_cbranch_execz L_ncp")
    e("global_load_dword v7, v4, s[30:31]")
    g.label("L_ncp")
    e("s_mov_b64 exec, -1")
    e("s_branch L_help2")
    g.label("L_main")
    e("v_lshrrev_b32 v%d, 6, v0" % T)
    e("v_and_b32 v0, 63, v0")
    e("v_readfirstlane_b32 s%d, v%d" % (sWV, T))
    e("s_and_b32 s51, s2, 7")
    e("s_lshr_b32 s52, s2, 3")
    e("s_mul_i32 s53, s52, 37")
    e("s_lshr_b32 s53, s53, 8")
    e("s_mul_i32 s54, s53, 7")
    e("s_sub_u32 s54, s52, s54")
    e("s_lshr_b32 s55, s51, 1")
    e("s_lshl_b32 s%d, s55, 2" % sMB)
    e("s_add_u32 s%d, s%d, s53" % (sMB, sMB))
    e("s_and_b32 s56, s51, 1")
    e("s_mul_i32 s%d, s56, 7" % sFB)
    e("s_add_u32 s%d, s%d, s54" % (sFB, sFB))
    e("s_lshl_b32 s56, s53, 1")
    e("s_add_u32 s56, s56, s54")
    e("s_add_u32 s56, s56, s55")
    e("s_mul_i32 s57, s56, 37")
    e("s_lshr_b32 s57, s57, 8")
    e("s_mul_i32 s57, s57, 7")
    e("s_sub_u32 s3, s56, s57")
    r8, p7, rh, t0, t1, rl = T, T + 1, T + 2, T + 3, T + 4, T + 5
    e("v_lshrrev_b32 v%d, 3, v0" % r8)
    e("v_and_b32 v%d, 7, v0" % p7)
    e("v_lshrrev_b32 v%d, 1, v%d" % (rh, r8))
    e("v_xor_b32 v%d, v%d, v%d" % (t0, p7, rh))
    e("v_lshlrev_b32 v%d, 4, v%d" % (t0, t0))
    e("v_mul_u32_u24 v%d, 896, v%d" % (t1, r8))
    e("v_add_u32 v%d, v%d, v%d" % (vX(0), t1, t0))
    e("v_xor_b32 v%d, 64, v%d" % (t0, t0))
    e("s_movk_i32 s57, %d" % (7168 - 1024))
    e("v_add3_u32 v%d, v%d, v%d, s57" % (vX(1), t1, t0))
    e("v_add_u32 v%d, %d, v%d" % (vX(2), 2 * (7168 - 1024), vX(0)))
    e("v_add_u32 v%d, %d, v%d" % (vX(3), 2 * (7168 - 1024), vX(1)))
    e("s_lshr_b32 s55, s%d, 1" % sWV)
    e("v_and_b32 v%d, 1, v%d" % (rl, rh))
    e("v_lshlrev_b32 v%d, 5, v%d" % (t0, rl))
    e("v_lshlrev_b32 v%d, 4, v%d" % (p7, p7))
    e("v_xor_b32 v%d, v%d, v%d" % (t0, t0, p7))
    e("v_mul_u32_u24 v%d, 3584, v%d" % (rl, r8))
    e("v_add_u32 v%d, v%d, v%d" % (vW(0), rl, t0))
    e("v_xor_b32 v%d, 64, v%d" % (t0, t0))
    e("s_movk_i32 s57, %d" % (28672 - 1024))
    e("v_add3_u32 v%d, v%d, v%d, s57" % (vW(1), rl, t0))
    e("v_add_u32 v%d, %d, v%d" % (vW(2), 2 * (28672 - 1024), vW(0)))
    e("v_add_u32 v%d, %d, v%d" % (vW(3), 2 * (28672 - 1024), vW(1)))
    for j in range(4): e("v_add_u32 v%d, 128, v%d" % (232 + j, vW(j)))
    e("s_mul_i32 s18, s%d, %d" % (sMB, 128 * 896))
    e("s_mul_i32 s57, s%d, %d" % (sWV, 32 * 896))
    e("s_add_u32 s18, s18, s57")
    e("s_and_b32 s57, s%d, 1" % sWV)
    e("s_mul_i32 s19, s57, %d" % (32 * 3584))
    e("s_lshl_b32 s58, s%d, 8" % sFB)
    e("s_add_u32 s19, s19, s58")
    e("s_lshl_b32 %s, s%d, 12" % (sLB, sWV))
    def table(i):
        e("s_lshl_b32 s57, s3, 7")
        e("s_add_u32 %s, s57, s18" % sCx(i))
        e("s_mul_i32 s57, s3, %d" % (64 * 3584))
        e("s_add_u32 %s, s57, s19" % sCw(i))
        e("s_add_u32 s3, s3, 1")
        e("s_cmp_eq_u32 s3, 7")
        e("s_cselect_b32 s3, 0, s3")
    table(0); table(1)
    e("s_mov_b32 s%d, %d" % (sX + 2, 2048 * 896))
    e("s_mov_b32 s%d, 0x20000" % (sX + 3))
    e("s_mov_b32 s%d, %d" % (sW + 2, 448 * 3584))
    e("s_mov_b32 s%d, 0x20000" % (sW + 3))
    stF(5)
    e("s_waitcnt lgkmcnt(0)")
    stF(5)
    e("s_mov_b32 s%d, s4" % sX)
    e("s_and_b32 s%d, s5, 0xffff" % (sX + 1))
    e("s_cmp_eq_u32 s55, 0")
    e("s_cselect_b32 s%d, s6, s8" % sW)
    e("s_cselect_b32 s%d, s7, s9" % (sW + 1))
    e("s_and_b32 s%d, s%d, 0xffff" % (sW + 1, sW + 1))
    g.cur[sHs] = 0

    SCH = {0: "aaaaaaabbbbbbb", 1: "aabaabaaabbbbb", 2: "aaabaaaabbbbbb", 3: "aaabaabaabbbbb", 4: "aaaabaaabbbbbb", 5: "aababaababABBB".lower(), 6: "aabaabaabaBBBB".lower(), 7: "aabababababABB".lower(), 8: "abaabaababABBB".lower(), 9: "ababaaaaaBBBBB".lower(), 10: "ababaabaaaBBBB".lower(), 11: "abaaaaaaBBBBBB".lower(), 12: "abaabaaaaBBBBB".lower()}[O("sch", 0)]
    units = []; cnt_ = {"a": 0, "b": 0}
    for ch in SCH: units.append((0 if ch == "a" else 1, cnt_[ch])); cnt_[ch] += 1
    uitems = lambda n: [2 * units[n][1], 2 * units[n][1] + 1] if units[n][0] == 0 else [14 + units[n][1]]
    order = sum((uitems(n) for n in range(14)), []) + list(range(21, 35))
    pos = {it: k for k, it in enumerate(order)}
    LA = max(n for n in range(14) if units[n][0] == 0)
    vWb = lambda j: 232 + j
    allp = [(i, jj) for i in order for jj in range(4)]
    st = {"np": 0}
    pool = list(range(NS)); smap = {}
    def slot(i): return smap[i] * 16384
    def release(i): pool.append(smap[i])
    def setup_needed(): return allp[st["np"]][1] == 0 and st.get("su") != st["np"]
    def setup(nop=False):
        i, jj = allp[st["np"]]
        smap[i] = pool.pop(0)
        st["su"] = st["np"]
        e("s_add_u32 m0, %s, 0x%x" % (sLB, slot(i)))
        if i >= 21:
            c, ph = (i - 21) % 7, (i - 21) // 7
            e("s_add_u32 %s, %s, 0x%x" % (sDo, sDb, (256 * c + 64 * ph) * 896))
            return 2
        if nop: e("s_nop 0")
        return 1
    def one():
        n = 1
        if setup_needed(): n += setup(True)
        i, jj = allp[st["np"]]; st["np"] += 1
        off = " offset:%d" % (jj * 1024) if jj else ""
        if O("nodma") and st["np"] > 40 and st["np"] <= O("nodma"):
            g.vm.append(("it", i)); return n
        if i < 14 and i % 2 == 0:
            g.vmop("buffer_load_dwordx4 v%d, %s, %s offen%s lds" % (vX(jj), srd(sX), sCx(i // 2), off), ("it", i))
        elif i < 21:
            g.vmop("buffer_load_dwordx4 v%d, %s, %s offen%s lds" % (vW(jj) if i < 14 else vWb(jj), srd(sW), sCw(i // 2 if i < 14 else i - 14), off), ("it", i))
        else:
            g.vmop("buffer_load_dwordx4 v%d, %s, %s offen%s lds" % (vD(jj), srd(sWD), sDo, off), ("it", i))
        return n
    def can(): return st["np"] < len(allp) and (not setup_needed() or len(pool) > 0)
    def issue(n=1):
        k = 0
        for _ in range(n):
            if can(): k += one()
        return k
    def through(item):
        while st["np"] < len(allp) and st["np"] // 4 <= pos[item]: one()
    def mk_srd(d, b, n):
        e("s_mov_b32 s%d, s%d" % (d, b))
        e("s_and_b32 s%d, s%d, 0xffff" % (d + 1, b + 1))
        e("s_mov_b32 s%d, %d" % (d + 2, n))
        e("s_mov_b32 s%d, 0x20000" % (d + 3))
    def bases(vf, n):
        for j in range(n):
            e("v_add_u32 v%d, 0x10000, v%d" % (vf(j, 1), vf(j, 0)))
            e("v_add_u32 v%d, 0x20000, v%d" % (vf(j, 2), vf(j, 0)))

    SW = PW = 1
    issue(O("pro", 10))
    stF(5)
    for i in range(2, 7): table(i)
    e("s_lshl_b32 s59, s%d, 1" % sMB)
    e("s_and_b32 s61, s%d, 1" % sWV)
    e("s_add_u32 s59, s59, s61")
    e("s_mul_i32 s59, s59, %d" % (7 * FS))
    e("s_lshl_b32 s61, s%d, 3" % sFB)
    e("s_add_u32 s59, s59, s61")
    e("s_lshr_b32 s61, s%d, 1" % sWV)
    e("s_lshl_b32 s61, s61, 2")
    e("s_add_u32 s59, s59, s61")
    e("s_add_u32 s59, s59, 0x%x" % FLAGOFF)
    e("v_lshl_add_u32 v%d, v0, 7, s59" % vFlag)
    e("v_mov_b32 v%d, 2" % vTwo)
    e("s_lshl_b32 s%d, s51, 2" % sTB)
    e("s_add_u32 s%d, s%d, s53" % (sTB, sTB))
    e("s_mov_b32 s%d, s54" % sCB)
    mk_srd(sWD, 10, 1792 * 896); mk_srd(sH, 16, 2048 * 1792 * 2); mk_srd(sO, 12, 2048 * 896)
    e("s_mov_b32 s4, 0xbfb8aa3b"); e("s_mov_b32 s5, 0xbfb8aa3b"); e("s_mov_b32 s6, 1.0"); e("s_mov_b32 s7, 1.0")
    e("s_and_b32 s57, s%d, 1" % sWV)
    e("s_lshr_b32 s58, s%d, 1" % sWV)
    e("s_lshl_b32 s62, s58, 2")
    e("s_add_u32 s62, s62, s57")
    e("s_mul_i32 %s, s62, %d" % (sDb, 32 * 896))
    e("s_lshl_b32 s59, s%d, 7" % sCB)
    e("s_add_u32 %s, %s, s59" % (sDb, sDb))
    e("v_lshlrev_b32 v%d, 5, v%d" % (t0, rh))
    e("v_xor_b32 v%d, v%d, v%d" % (t0, t0, p7))
    e("v_add_u32 v%d, v%d, v%d" % (vD(0), t1, t0))
    for j in range(1, 4): e("v_add_u32 v%d, %d, v%d" % (vD(j), j * (7168 - 1024), vD(0)))
    e("v_lshlrev_b32 v%d, 4, v0" % vL16)
    e("s_lshl_b32 s59, s%d, 3" % sMB)
    e("s_lshl_b32 s60, s57, 2")
    e("s_add_u32 s59, s59, s60")
    e("s_mul_i32 s59, s59, 56")
    e("s_lshl_b32 s60, s%d, 2" % sFB)
    e("s_add_u32 s59, s59, s60")
    e("s_add_u32 s59, s59, s58")
    e("s_lshl_b32 %s, s59, 10" % sHs)
    e("s_mul_i32 s59, s%d, 224" % sTB)
    e("s_add_u32 s59, s59, s62")
    for m in range(4):
        e("s_xor_b32 s60, s%d, %d" % (sWV, m))
        e("s_mul_i32 s60, s60, 56")
        e("s_add_u32 s60, s60, s59")
        e("s_lshl_b32 s60, s60, 10")
        e("v_add_u32 v%d, s60, v%d" % (vH(m), vL16))
    e("s_mul_i32 s59, s51, 28")
    e("s_add_u32 s59, s59, s52")
    e("s_mul_i32 s59, s59, %d" % FS)
    e("s_add_u32 s59, s59, 0x%x" % FLAGOFF)
    e("v_min_u32 v%d, 27, v0" % vFlag2)
    e("v_lshl_add_u32 v%d, v%d, 2, s59" % (vFlag2, vFlag2))
    e("s_and_b32 s59, s51, 1")
    e("s_lshl_b32 s59, s59, 7")
    e("v_mov_b32 v%d, s59" % vArmA)
    e("v_mov_b32 v%d, 1" % vOne)
    tk, q4, sw, rr, cc, a0, q1 = T + 6, T + 7, T + 8, T + 9, T + 10, T + 11, T + 5
    e("v_and_b32 v%d, 15, v0" % tk)
    e("v_lshrrev_b32 v%d, 4, v0" % q4)
    e("v_bfe_u32 v%d, v0, 1, 3" % sw)
    e("v_xor_b32 v%d, v%d, v%d" % (sw, sw, q4))
    e("v_lshlrev_b32 v%d, 4, v%d" % (sw, sw))
    e("v_lshl_add_u32 v%d, v%d, 7, v%d" % (sw, tk, sw))
    e("s_lshl_b32 s59, s57, 13")
    e("v_add_u32 v%d, s59, v%d" % (vXB(0, 0), sw))
    e("v_xor_b32 v%d, 64, v%d" % (vXB(1, 0), vXB(0, 0)))
    bases(vXB, 2)
    e("v_bfe_u32 v%d, v0, 2, 2" % rr)
    e("v_and_b32 v%d, 3, v0" % cc)
    e("v_lshlrev_b32 v%d, 3, v%d" % (cc, cc))
    e("v_and_b32 v%d, 1, v%d" % (q1, q4))
    e("v_lshrrev_b32 v%d, 1, v%d" % (t0, rr))
    e("v_lshl_or_b32 v%d, v%d, 1, v%d" % (t0, q1, t0))
    e("v_lshl_add_u32 v%d, v%d, 3, v%d" % (a0, q4, rr))
    e("v_lshl_add_u32 v%d, v%d, 7, v%d" % (a0, a0, cc))
    e("s_lshl_b32 s59, s58, 1")
    e("v_xor_b32 v%d, s59, v%d" % (t1, t0))
    e("v_lshl_add_u32 v%d, v%d, 5, v%d" % (vWA(0, 0), t1, a0))
    e("v_xor_b32 v%d, 32, v%d" % (vWA(1, 0), vWA(0, 0)))
    bases(vWA, 2)
    e("v_lshl_add_u32 v%d, v%d, 2, v%d" % (a0, q4, rr))
    e("v_lshl_add_u32 v%d, v%d, 7, v%d" % (a0, a0, cc))
    e("v_lshl_add_u32 v%d, v%d, 5, v%d" % (a0, t0, a0))
    e("v_add_u32 v%d, %s, v%d" % (vDA(0, 0), sLB, a0))
    for c in range(1, 4): e("v_xor_b32 v%d, %d, v%d" % (vDA(c, 0), 32 * c, vDA(0, 0)))
    bases(vDA, 4)
    e("v_mul_u32_u24 v%d, 896, v%d" % (vOut, tk))
    if O("st2"):
        e("v_lshl_add_u32 v%d, v%d, 3, v%d" % (vOut, q4, vOut))
    else:
        e("v_lshl_add_u32 v%d, v%d, 5, v%d" % (vOut, q1, vOut))
        e("v_lshrrev_b32 v%d, 1, v%d" % (t1, q4))
        e("v_lshl_add_u32 v%d, v%d, 4, v%d" % (vOut, t1, vOut))
    e("s_lshl_b32 s60, s%d, 2" % sTB)
    e("s_add_u32 s60, s60, s%d" % sWV)
    e("s_mul_i32 s60, s60, %d" % (16 * 896))
    e("s_lshl_b32 s59, s%d, 7" % sCB)
    e("s_add_u32 %s, s60, s59" % sOut)
    e("v_add_u32 v%d, %s, v%d" % (T + 12, sLB, vL16))
    for mm in (1, 2, 3): e("v_xor_b32 v%d, %d, v%d" % (T + 12 + mm, mm * 4096, T + 12))

    def lds_ref(vf, byte): return "v%d offset:%d" % (vf(byte >> 16), byte & 0xffff)
    def s1_reads(s):
        n, kk = s // 2, s % 2
        ph, c = units[n]
        wb = slot(uitems(n)[-1])
        xs = 2 * c + kk
        def ard(a, j2):
            jf, mat = a >> 1, a & 1
            return lambda: g.lgop("ds_read_b64_tr_b16 %s, %s" % (rng("v", vAbuf(s & 1, a) + 2 * j2, 2), lds_ref(lambda b: vWA(jf, b), wb + mat * 8192 + kk * 4096 + j2 * 512)), ("rd", s, a & 2))
        out = [ard(0, 0), ard(0, 1)]
        if ph == 0:
            out += [lambda t=t: g.lgop("ds_read_b128 %s, %s" % (rng("a", (xs * 4 + t) * 4, 4), lds_ref(lambda b: vXB(kk, b), slot(2 * c) + t * 2048)), ("rd", s, 0)) for t in range(4)]
        out += [ard(a, j2) for a in (1, 2, 3) for j2 in range(2)]
        return out
    D1 = lambda ph, a, t: ACC[ph] + (a * 4 + t) * 4
    def epilogue_ops(ph, pk):
        ops = []
        for t in range(4):
            G = [D1(ph, 0, t) + i for i in range(4)] + [D1(ph, 2, t) + i for i in range(4)]
            U = [D1(ph, 1, t) + i for i in range(4)] + [D1(ph, 3, t) + i for i in range(4)]
            def V(s, c=4): ops.append((c, lambda s=s: e(s)))
            if pk:
                for i in range(0, 8, 2): V("v_pk_mul_f32 %s, %s, s[4:5]" % (rng("v", G[i], 2), rng("v", G[i], 2)))
                for i in range(8): V("v_exp_f32 v%d, v%d" % (G[i], G[i]), 8)
                for i in range(0, 8, 2): V("v_pk_add_f32 %s, %s, s[6:7]" % (rng("v", G[i], 2), rng("v", G[i], 2)))
                for i in range(8): V("v_rcp_f32 v%d, v%d" % (G[i], G[i]), 8)
                for i in range(0, 8, 2): V("v_pk_mul_f32 %s, %s, %s" % (rng("v", G[i], 2), rng("v", G[i], 2), rng("v", U[i], 2)))
            else:
                for i in range(8): V("v_mul_f32 v%d, s4, v%d" % (G[i], G[i]))
                for i in range(8): V("v_exp_f32 v%d, v%d" % (G[i], G[i]), 8)
                for i in range(8): V("v_add_f32 v%d, 1.0, v%d" % (G[i], G[i]))
                for i in range(8): V("v_rcp_f32 v%d, v%d" % (G[i], G[i]), 8)
                for i in range(8): V("v_mul_f32 v%d, v%d, v%d" % (G[i], G[i], U[i]))
            for i in range(4): V("v_cvt_pk_bf16_f32 v%d, v%d, v%d" % (U[i], G[2 * i], G[2 * i + 1]))
            def stf(t=t, U=U):
                e(g.setoff(sHs, (t * 56 + 2 * ph) * 1024))
                g.vmop("buffer_store_dwordx4 %s, v%d, %s, %s offen sc1" % (rng("v", U[0], 4), vL16, srd(sH), sHs), ("hst", ph))
            ops.append((8, stf))
        return ops
    def only(w, nm):
        e("s_cmp_lg_u32 s%d, %d" % (sWV, w)); e("s_cbranch_scc1 %s" % nm)
    def arm_check():
        only(PW, "L_armd")
        e("s_waitcnt vmcnt(%d)" % min(63, len(g.vm) - g.al))
        e("s_mov_b32 s61, 0")
        g.label("L_arm")
        e("v_readfirstlane_b32 s57, v%d" % vArm)
        e("s_addk_i32 s61, 1")
        e("s_cmp_ge_u32 s61, 0x40000")
        e("s_cbranch_scc1 L_armd")
        e("s_cmp_ge_u32 s57, 32")
        e("s_cbranch_scc1 L_armd")
        e("s_sleep 8")
        e("global_load_dword v%d, v%d, s[14:15] sc1" % (vArm, vArmA))
        e("s_waitcnt vmcnt(0)")
        e("s_branch L_arm")
        g.label("L_armd")
    sSig = "s49"
    g.nsg = 0
    def sig_arm(): e("s_mov_b32 %s, 0" % sSig)
    def sig_try(ph, force=False):
        n = g._n(g.vm, ("hst", ph)); g.nsg += 1
        nm = "L_st%d" % g.nsg
        if force:
            g.wait(vm=("hst", ph))
            e("s_cmp_lg_u32 %s, 0" % sSig)
        else:
            e("s_getreg_b32 s57, hwreg(HW_REG_IB_STS, 0, 24)")
            e("s_and_b32 s57, s57, 0xc0000f")
            e("s_or_b32 s57, s57, %s" % sSig)
            e("s_cmp_gt_u32 s57, %d" % min(n, 15))
        e("s_cbranch_scc1 %s" % nm)
        e("s_mov_b64 exec, 0x7f")
        e("global_store_dword v%d, v%d, s[16:17] sc1" % (vFlag, vTwo if ph else vOne))
        e("s_mov_b64 exec, -1")
        e("s_mov_b32 %s, 0x1000000" % sSig)
        g.label(nm)
    def poll_issue(ph):
        only(PW, "L_npi%d" % ph)
        e("global_load_dword v%d, v%d, s[16:17] offset:%d sc1" % (vPol, vFlag2, 0))
        g.label("L_npi%d" % ph)
        g.pi = len(g.vm)
    def gate(ph):
        only(PW, "L_pok%d" % ph)
        e("s_waitcnt vmcnt(%d)" % min(63, len(g.vm) - g.pi))
        e("s_mov_b32 s61, 0")
        g.label("L_poll%d" % ph)
        e("v_cmp_gt_u32 vcc, %d, v%d" % (ph + 1, vPol))
        e("s_addk_i32 s61, 1")
        e("s_cmp_ge_u32 s61, 0x40000")
        e("s_cbranch_scc1 L_pok%d" % ph)
        e("s_cmp_eq_u64 vcc, 0")
        e("s_cbranch_scc1 L_pok%d" % ph)
        e("s_sleep %d" % O("slp", 2))
        e("global_load_dword v%d, v%d, s[16:17] offset:%d sc1" % (vPol, vFlag2, 0))
        e("s_waitcnt vmcnt(0)")
        e("s_branch L_poll%d" % ph)
        g.label("L_pok%d" % ph)
        e("s_barrier")

    SREG = [("v", 64 + 4 * k) for k in range(16)] + [("a", 224 + 4 * k) for k in range(8)] + [("v", 240 + 4 * k) for k in range(4)]
    NSTG = O("nstg", 7)
    def areg(u, c):
        if u < NSTG: return SREG[u * 4 + c]
        if u > 14 - O("ml", 2): return ("v", 64 + (13 - u) * 16 + c * 4)
        return ("v", vAbuf(u & 1, c))
    def wd_reads(u):
        dst = lambda c: areg(u, c)
        return [lambda c=c, j2=j2: g.lgop("ds_read_b64_tr_b16 %s, %s" % (rng(dst(c)[0], dst(c)[1] + 2 * j2, 2), lds_ref(lambda b: vDA(c, b), slot(21 + u) + j2 * 2048)), ("r2", u))
                for c in range(4) for j2 in range(2)]
    sg = {"n": 0, "rel": 0}
    def stage_ready(minafter):
        u = sg["n"]
        return u < NSTG and st["np"] >= 4 * (22 + u) and g._n(g.vm, ("it", 21 + u)) >= minafter
    def stage_release():
        while sg["rel"] < sg["done"]: release(21 + sg["rel"]); sg["rel"] += 1
    sg["done"] = 0
    hreg = lambda u, t: u * 16 + t * 4
    def h_load(u, t):
        ph, i = u // 7, u % 7
        if g.cur.get("h2") != i: e("s_mov_b32 %s, 0x%x" % (sH2, i * 8192)); g.cur["h2"] = i
        g.vmop("buffer_load_dwordx4 %s, v%d, %s, %s offen%s sc1" % (rng("a", hreg(u, t), 4), vH(t), srd(sH), sH2, " offset:2048" if ph else ""), ("hl", u, t))
    HD = O("hd", 12); PI1 = O("pi1", 2); G1 = O("g1", 4)
    hs = {"n": 0, "lim": 0}
    ML = O("ml", 2)
    HORD = [(u, t) for u in range(14 - ML) for t in range(4)] + [(u, t) for t in (1, 2, 3, 0) for u in range(14 - ML, 14)]
    def hnext():
        h_load(*HORD[hs["n"]]); hs["n"] += 1
    WF = O("wf", 28)
    def mem():
        if st["np"] < 4 * WF and can(): return issue(1)
        if hs["n"] < min(hs["lim"], 28):
            k = 2 if hs["n"] % 4 == 0 else 1
            hnext(); return k
        if can(): return issue(1)
        if hs["n"] < hs["lim"]:
            hnext(); return 1
        return 0
    stF(5)
    issue(O("pro2", 8))
    stF(5)
    if FINE == 5: g.wait(vm=("it", 0)); stF(5)
    g.wait(vm=("it", 1))
    stF(5)
    e("s_barrier")
    if O("both") == 3: stA()
    stF(5)
    stF(1)
    for r in s1_reads(0): r()
    issue(O("pro3", 2))
    epq = []
    GS = O("gs", 23)
    SIGS = 2 * LA + 2 + O("sigd", 3)
    BUD = O("bud", 8); RB = O("rb", 2)
    carry = 0; racc = 0.0
    sgq = []; STG1 = 1; sgmark = []
    for s in range(28):
        n, kk = s // 2, s % 2
        ph, cu = units[n]
        if s == 2 * LA + 2:
            stA()
            e("s_nop 4")
            sig_arm()
            for k, (c, f) in enumerate(epilogue_ops(0, 1)):
                f()
                if k % O("rea", 10) == 0: issue(1)
            stA()
        if kk == 1:
            nb = n + 1
            need = []
            if nb <= 13:
                last = uitems(nb)[-1]
                through(last); need.append(("it", last))
            if s == 2 * LA + 1: arm_check()
            if STG1 and stage_ready(O("sma", 8)) and s > 2 * LA + 2 and not sgq:
                need.append(("it", 21 + sg["n"])); sgq = [(4, r) for r in wd_reads(sg["n"])]; sg["n"] += 1
            g.wait(vm=need or None, lg=(0 if nb == 14 else ("rd", s, 0)))
            if s == GS: stA(); gate(0); stA()
            elif not O("nobar"): e("s_barrier")
            if nb <= 10: stF(1)
            if nb >= 7: stF(2)
            for c in ([nb - 2] if nb < 14 else [12, 13]):
                if c >= 0:
                    for it in uitems(c): release(it)
        else:
            need = []
            if STG1 and stage_ready(O("sma", 8)) and s > 2 * LA + 2 and not sgq:
                need.append(("it", 21 + sg["n"])); sgq = [(4, r) for r in wd_reads(sg["n"])]; sg["n"] += 1
            g.wait(vm=need or None, lg=("rd", s, 0))
        for (s0, n0) in sgmark:
            if s >= s0 + 2 or s == 27: sg["done"] = max(sg["done"], n0)
        stage_release()
        if s == 2 * LA - O("armd", 3):
            only(PW, "L_nal")
            e("global_load_dword v%d, v%d, s[14:15] sc1" % (vArm, vArmA))
            g.label("L_nal")
            g.al = len(g.vm)
        rds = s1_reads(s + 1) if s + 1 < 28 else []
        xs = 2 * cu + kk
        nph = units[(s + 1) // 2][0] if s < 27 else 1
        racc += (O("ra10", 40) if st["np"] < 21 * 4 else O("rb10", 10 * RB)) / 10.0
        rate = min(4, int(racc)); racc -= rate
        RG = [0, 1, 2, 3, 4, 5, 6, 8, 9, 10, 11, 12] if nph == 0 else [0, 1, 2, 3, 8, 9, 10, 11]
        DG = {4: [2, 6, 10, 14], 3: [5, 9, 13], 2: [5, 13], 1: [13], 0: []}[rate] if nph == 1 else {4: [3, 9, 13, 14], 3: [3, 9, 14], 2: [5, 13], 1: [13], 0: []}[rate]
        for m in range(16):
            a, t = m >> 2, m & 3
            if m == 8 and s < 27: g.wait(lg=("rd", s, 2))
            if s == O("ps", 21) and m == 8 and GS <= 27: poll_issue(0)
            rel = (s - 2 * LA - 2) * 16 + m
            if rel >= O("sa0", 20) and rel <= O("sa1", 84) and (rel - O("sa0", 20)) % 8 == 0: sig_try(0, rel + 8 > O("sa1", 84))
            D = D1(ph, a, t)
            e("%s %s, %s, %s, %s" % (MF, rng("v", D, 4), rng("v", vAbuf(s & 1, a), 4), rng("a", (xs * 4 + t) * 4, 4), "0" if xs == 0 else rng("v", D, 4)))
            budget = BUD + carry - (4 if m in (7, 15) else 0)
            if rds and m in RG: rds.pop(0)(); budget -= 4
            if s >= GS: hs["lim"] = min(28, 4 * (s - 14))
            if m in DG: budget -= 4 * mem()
            if (m + 1) in DG and m not in DG and can() and setup_needed(): budget -= 4 * setup()
            for _ in range(0 if m in DG or m == 7 or m == 15 else (1 if m in RG else 2)):
                if sgq and m >= 4:
                    sgq.pop(0)[1]()
                    if not sgq: sgmark.append((s, sg["n"]))
            while epq and budget >= epq[0][0]:
                c, f = epq.pop(0); f(); budget -= c
            carry = max(-8, min(budget, O("cmax", 4))) if epq else 0
        assert not rds
    stA(); stF(2)
    print("issued by T:", st["np"], hs["n"], "staged", sg["n"])
    while sgq: sgq.pop(0)[1]()
    def stage_now():
        u = sg["n"]
        through(21 + u)
        g.wait(vm=("it", 21 + u), lg=0)
        sg["done"] = sg["n"]; stage_release()
        for r in wd_reads(u): r()
        sg["n"] += 1
    RE = O("re", 10)
    O2 = {1: (1,), 2: (1, 3)}[O("r2", 1)]
    if GS <= 27: hs["lim"] = 28
    sig_arm()
    e("s_nop 4")
    for cnt, (c, f) in enumerate(epilogue_ops(1, 1)):
        if GS > 27 and cnt == O("pie", 20): poll_issue(0)
        if GS > 27 and cnt == O("ga", 90): stA(); gate(0); stA(); hs["lim"] = 28
        f()
        if cnt % RE == 0 and cnt < O("rstop", 999): mem()
        if cnt % 16 == 3 and stage_ready(O("smb", 6)): stage_now()
    while sg["n"] < NSTG: stage_now()
    if NSTG == 0:
        g.wait(vm=("it", 21))
        for r in wd_reads(0): r()
    stA(); stF(2); stF(3)
    for _ in range(O("pre", 0)): mem()
    SGQ = O("sgq", 6)
    A2 = ACC[1]
    D2 = lambda t, c: A2 + (t * 4 + c) * 4
    RW = T + 12
    def red_writes(m):
        return [lambda q=q: e("ds_write_b128 v%d, %s offset:%d" % (RW, rng("v", A2 + m * 16 + 4 * q, 4), m * 16384 + q * 1024)) for q in range(4)]
    GQ = O("gq", 22); PQ = O("pq", 18)
    rds = []; wq = []
    for qi, (u, t) in enumerate(HORD):
        if qi == PQ: poll_issue(1)
        if qi == GQ:
            for _ in range(O("gb", 4)): mem()
            stA(); gate(1); stA()
            hs["lim"] = 56
            for _ in range(O("ga2", 8)): mem()
        while hs["n"] <= min(55, (qi | 3)): mem()
        need = [("hl", u, t)]
        merged = u >= 14 - ML
        if qi == 4 * (14 - ML):
            assert not rds
            g.wait(vm=need, lg=0)
        elif not merged and t == 0:
            assert not rds
            g.wait(vm=need, lg=(0 if u == 0 else ("r2", u) if u >= NSTG else None))
            if u == 0: sg["done"] = NSTG; stage_release()
            if u >= NSTG: release(21 + u)
            if u < 8: stF(3)
            if u >= 5: stF(4)
        elif not merged and t == 1 and NSTG <= u + 1:
            lastu = u + 1 if u + 1 < 14 - ML else 13
            through(21 + lastu); need.append(("it", 21 + lastu))
            g.wait(vm=need)
            rds = sum((wd_reads(k) for k in range(u + 1, lastu + 1)), [])
        else:
            g.wait(vm=need)
        if O("sb0", 3) <= qi <= O("sb1", 14) and (qi - O("sb0", 3)) % O("sbs", 1) == 0: sig_try(1, qi + O("sbs", 1) > O("sb1", 14))
        if qi == SGQ: stA()
        for c in range(4):
            D = D2(t, c)
            A = areg(u, c)
            e("%s %s, %s, %s, %s" % (MF, rng("v", D, 4), rng(A[0], A[1], 4), rng("a", hreg(u, t), 4), "0" if u == 0 else rng("v", D, 4)))
            for _ in range(1 if len(rds) <= 8 - O("zz", 0) else ML):
                if rds: rds.pop(0)()
            wq = [(d - 1, w) for d, w in wq]
            if wq and wq[0][0] <= 0 and c % 2 == 1: wq.pop(0)[1]()
            if c in O2: mem()
        if u == 13 and t != 0: wq += [(5, w) for w in red_writes(t)]
    assert st["np"] == len(allp) and hs["n"] == 56
    stA(); stF(4)
    if ML == 1: e("s_nop 1")
    for d, w in wq: w()
    e("s_waitcnt lgkmcnt(0)")
    e("s_barrier")
    R = A2
    for m in (1, 2, 3):
        for q in range(4):
            e("ds_read_b128 %s, v%d offset:%d" % (rng("v", R + m * 16 + q * 4, 4), RW + m, m * 16384 + q * 1024))
    for m in (1, 2, 3):
        e("s_waitcnt lgkmcnt(%d)" % (12 - 4 * m))
        for i in range(0, 16, 2): e("v_pk_add_f32 %s, %s, %s" % (rng("v", R + i, 2), rng("v", R + i, 2), rng("v", R + 16 * m + i, 2)))
    for i in range(8): e("v_cvt_pk_bf16_f32 v%d, v%d, v%d" % (R + 16 + i, R + 2 * i, R + 2 * i + 1))
    if O("st2"):
        for c in range(4):
            e("buffer_store_dwordx2 %s, v%d, %s, %s offen offset:%d" % (rng("v", R + 16 + 2 * c, 2), vOut, srd(sO), sOut, 32 * c))
    else:
        e("s_nop 1")
        for pr in range(2):
            e("v_permlane16_swap_b32 v%d, v%d" % (R + 16 + 4 * pr, R + 18 + 4 * pr))
            e("v_permlane16_swap_b32 v%d, v%d" % (R + 17 + 4 * pr, R + 19 + 4 * pr))
        e("buffer_store_dwordx4 %s, v%d, %s, %s offen" % (rng("v", R + 16, 4), vOut, srd(sO), sOut))
        e("buffer_store_dwordx4 %s, v%d, %s, %s offen offset:64" % (rng("v", R + 20, 4), vOut, srd(sO), sOut))
    if stamps:
        e("s_waitcnt vmcnt(0)")
        stA(); stF(9)
        e("s_waitcnt lgkmcnt(0)")
        e("s_add_u32 s16, s16, 0x8000000")
        e("s_addc_u32 s17, s17, 0")
        e("s_lshl_b32 s57, s2, 2")
        e("s_add_u32 s57, s57, s%d" % sWV)
        e("s_lshl_b32 s57, s57, 7")
        e("v_mov_b32 v1, s57")
        e("s_mov_b64 exec, 1")
        for j in range(g.nst):
            e("v_mov_b32 v2, s%d" % (SB + 2 * j))
            e("v_mov_b32 v3, s%d" % (SB + 1 + 2 * j))
            e("global_store_dwordx2 v1, v[2:3], s[16:17] offset:%d" % (8 * j))
            e("s_nop 1")
    e("s_endpgm")
    HELP = O("help", 7)
    g.label("L_help2")
    e("s_and_b32 s41, s40, 7")
    e("s_lshr_b32 s42, s40, 3")
    e("s_lshr_b32 s43, s41, 1")
    e("s_lshl_b32 s43, s43, 2")
    e("s_add_u32 s43, s43, s42")
    e("s_mul_i32 s44, s43, %d" % (28 * 3584))
    e("s_and_b32 s45, s41, 1")
    e("s_mul_i32 s45, s45, %d" % (7 * 256))
    e("s_add_u32 s44, s44, s45")
    e("s_addk_i32 s44, 128")
    e("v_mul_u32_u24 v1, 9363, v0")
    e("v_lshrrev_b32 v1, 16, v1")
    e("v_mul_u32_u24 v2, 7, v1")
    e("v_sub_u32 v2, v0, v2")
    e("v_mul_u32_u24 v1, 3584, v1")
    e("v_lshl_add_u32 v1, v2, 8, v1")
    e("v_mov_b32 v3, 0x7fffffff")
    e("v_cmp_gt_u32 vcc, 196, v0")
    e("v_lshlrev_b32 v4, 7, v0")
    e("s_lshl_b32 s46, s41, 2")
    e("v_cndmask_b32 v1, v3, v1, vcc")
    e("v_cndmask_b32 v5, v3, v4, vcc")
    e("v_cmp_gt_u32 vcc, 224, v0")
    e("s_add_u32 s46, s46, s42")
    e("s_mul_i32 s46, s46, %d" % (392 * 128))
    e("v_cndmask_b32 v6, v3, v4, vcc")
    e("s_waitcnt lgkmcnt(0)")
    mk_srd(20, 6, 448 * 3584); mk_srd(24, 8, 448 * 3584); mk_srd(28, 10, 1792 * 896)
    e("s_mul_i32 s49, s40, %d" % (7 * FS))
    e("s_add_u32 s49, s49, 0x%x" % FLAGOFF)
    e("v_lshl_add_u32 v14, v0, 2, s49")
    e("v_mov_b32 v15, 0")
    e("s_and_saveexec_b64 s[32:33], vcc")
    e("global_store_dword v14, v15, s[16:17] sc1")
    e("s_mov_b64 exec, -1")
    e("s_waitcnt vmcnt(0)")
    e("s_barrier")
    e("v_lshlrev_b32 v14, 7, v0")
    e("v_mov_b32 v15, 1")
    e("v_cmp_gt_u32 vcc, 2, v0")
    e("s_and_saveexec_b64 s[32:33], vcc")
    e("s_cbranch_execz L_nha")
    e("global_atomic_add v14, v15, s[14:15] sc1")
    g.label("L_nha")
    e("s_mov_b64 exec, -1")
    if HELP & 1:
        e("buffer_load_dword v8, v1, s[20:23], s44 offen")
        e("buffer_load_dword v9, v1, s[24:27], s44 offen")
    if HELP & 2:
        e("buffer_load_dword v10, v5, s[28:31], s46 offen")
        e("s_add_u32 s46, s46, %d" % (196 * 128))
        e("buffer_load_dword v11, v5, s[28:31], s46 offen")
    if HELP & 4:
        e("s_mul_i32 s46, s42, %d" % (128 * 896))
        e("s_mov_b32 s48, s42")
        e("s_waitcnt vmcnt(0)"); e("s_barrier")
        g.label("L_hl")
        e("buffer_load_dword v12, v6, s[28:31], s46 offen")
        e("s_add_u32 s47, s46, %d" % (224 * 128))
        e("buffer_load_dword v13, v6, s[28:31], s47 offen")
        e("s_add_u32 s46, s46, %d" % (4 * 128 * 896))
        e("s_cmp_ge_u32 s46, %d" % (1792 * 896))
        e("s_cselect_b32 s47, %d, 0" % (1792 * 896 - 64 * 896))
        e("s_sub_u32 s46, s46, s47")
        e("s_addk_i32 s48, 4")
        e("s_cmp_lt_u32 s48, 28")
        e("s_cbranch_scc1 L_hl")
    e("s_waitcnt vmcnt(0)")
    g.label("L_end2")
    e("s_endpgm")
    check_hazards(g.L)
    return g.L

from gen9 import emit
if __name__ == "__main__":
    out = sys.argv[1]
    stamps = 1 if "--stamps" in sys.argv else (2 if "--cyc" in sys.argv else 0)
    opt = {}
    for a in sys.argv[2:]:
        if a.startswith("-o"):
            k, _, v = a[2:].partition("=")
            opt[k] = int(v) if v else 1
    emit(build(stamps, opt), out)
```

```python
import sys
from asmlib import *
from hazard import check_hazards
from gen import Gen, rng

NS = 10
FLAGOFF = 8 << 20
FS = 128
MF = "v_mfma_f32_16x16x32_bf16"

def build(stamps=False, opt=None):
    opt = opt or {}
    O = lambda k, d=0: opt.get(k, d)
    g = Gen(stamps); e = g.e
    SB = 78
    def stamp():
        if stamps:
            r = SB + 2 * g.nst
            assert r + 1 < 102
            e("%s s[%d:%d]" % ("s_memtime" if stamps == 2 else "s_memrealtime", r, r + 1)); g.nst += 1
    FINE = O("fine")
    if O("both"):
        cntr = {"k": 0}
        sel = {1: (2, 3, 6, 7, 10), 2: (1, 2, 3, 7, 10)}[O("both")]
        def stamp2():
            cntr["k"] += 1
            if cntr["k"] in sel:
                r = SB + 2 * g.nst
                e("s_memrealtime s[%d:%d]" % (r, r + 1)); e("s_memtime s[%d:%d]" % (r + 2, r + 3)); g.nst += 2
    stA = (lambda: None) if FINE else (stamp2 if O("both") else stamp)
    stF = lambda k: stamp() if FINE == k else None
    srd = lambda b: rng("s", b, 4)
    sX, sW, sWD, sH, sO = 20, 24, 28, 32, 36
    sMB, sFB, sWV, sTB, sCB = 40, 41, 42, 43, 44
    sDo, sLB, sHs, sDb, sH2, sOut = "s45", "s46", "s47", "s48", "s50", "s8"
    sCx = lambda i: "s%d" % (64 + i)
    sCw = lambda i: "s%d" % (71 + i)
    vX = lambda j: 2 + j
    vW = lambda j: 6 + j
    vXB = lambda kk, b: 10 + b * 2 + kk
    vWA = lambda jf, b: 16 + b * 2 + jf
    vL16, vFlag = 22, 23
    vH = lambda t: 24 + t
    vAbuf = lambda buf, j: 32 + buf * 16 + j * 4
    ACC = [64, 128]
    vD = lambda j: 192 + j
    vFlag2, vArmA, vArm, vOut, vPol, vOne, vTwo, vThree = 196, 197, 198, 199, 200, 201, 202, 203
    T = 204
    vDA = lambda c, b: 220 + b * 4 + c

    stamp()
    e("s_load_dwordx8 s[4:11], s[0:1], 0")
    e("s_load_dwordx4 s[12:15], s[0:1], 32")
    e("s_load_dwordx2 s[16:17], s[0:1], 48")
    e("s_sub_u32 s2, s2, 32")
    e("s_cmp_lt_u32 s2, 224")
    e("s_cbranch_scc1 L_main")
    e("s_add_u32 s40, s2, 32")
    e("s_cmp_ge_u32 s40, 32")
    e("s_cbranch_scc1 L_end2")
    e("s_getpc_b64 s[30:31]")
    e("v_lshlrev_b32 v4, 7, v0")
    e("v_cmp_gt_u32 vcc, @NLINES@, v0")
    e("s_and_saveexec_b64 s[32:33], vcc")
    e("s_cbranch_execz L_ncp")
    e("global_load_dword v7, v4, s[30:31]")
    g.label("L_ncp")
    e("s_mov_b64 exec, -1")
    e("s_branch L_help2")
    g.label("L_main")
    e("v_lshrrev_b32 v%d, 6, v0" % T)
    e("v_and_b32 v0, 63, v0")
    e("v_readfirstlane_b32 s%d, v%d" % (sWV, T))
    e("s_and_b32 s51, s2, 7")
    e("s_lshr_b32 s52, s2, 3")
    e("s_mul_i32 s53, s52, 37")
    e("s_lshr_b32 s53, s53, 8")
    e("s_mul_i32 s54, s53, 7")
    e("s_sub_u32 s54, s52, s54")
    e("s_lshr_b32 s55, s51, 1")
    e("s_lshl_b32 s%d, s55, 2" % sMB)
    e("s_add_u32 s%d, s%d, s53" % (sMB, sMB))
    e("s_and_b32 s56, s51, 1")
    e("s_mul_i32 s%d, s56, 7" % sFB)
    e("s_add_u32 s%d, s%d, s54" % (sFB, sFB))
    e("s_lshl_b32 s56, s53, 1")
    e("s_add_u32 s56, s56, s54")
    e("s_add_u32 s56, s56, s55")
    e("s_mul_i32 s57, s56, 37")
    e("s_lshr_b32 s57, s57, 8")
    e("s_mul_i32 s57, s57, 7")
    e("s_sub_u32 s3, s56, s57")
    r8, p7, rh, t0, t1, rl = T, T + 1, T + 2, T + 3, T + 4, T + 5
    e("v_lshrrev_b32 v%d, 3, v0" % r8)
    e("v_and_b32 v%d, 7, v0" % p7)
    e("v_lshrrev_b32 v%d, 1, v%d" % (rh, r8))
    e("v_xor_b32 v%d, v%d, v%d" % (t0, p7, rh))
    e("v_lshlrev_b32 v%d, 4, v%d" % (t0, t0))
    e("v_mul_u32_u24 v%d, 896, v%d" % (t1, r8))
    e("v_add_u32 v%d, v%d, v%d" % (vX(0), t1, t0))
    e("v_xor_b32 v%d, 64, v%d" % (t0, t0))
    e("s_movk_i32 s57, %d" % (7168 - 1024))
    e("v_add3_u32 v%d, v%d, v%d, s57" % (vX(1), t1, t0))
    e("v_add_u32 v%d, %d, v%d" % (vX(2), 2 * (7168 - 1024), vX(0)))
    e("v_add_u32 v%d, %d, v%d" % (vX(3), 2 * (7168 - 1024), vX(1)))
    e("s_lshr_b32 s55, s%d, 1" % sWV)
    e("v_and_b32 v%d, 1, v%d" % (rl, rh))
    e("v_lshlrev_b32 v%d, 5, v%d" % (t0, rl))
    e("v_lshlrev_b32 v%d, 4, v%d" % (p7, p7))
    e("v_xor_b32 v%d, v%d, v%d" % (t0, t0, p7))
    e("v_mul_u32_u24 v%d, 3584, v%d" % (rl, r8))
    e("v_add_u32 v%d, v%d, v%d" % (vW(0), rl, t0))
    e("v_xor_b32 v%d, 64, v%d" % (t0, t0))
    e("s_movk_i32 s57, %d" % (28672 - 1024))
    e("v_add3_u32 v%d, v%d, v%d, s57" % (vW(1), rl, t0))
    e("v_add_u32 v%d, %d, v%d" % (vW(2), 2 * (28672 - 1024), vW(0)))
    e("v_add_u32 v%d, %d, v%d" % (vW(3), 2 * (28672 - 1024), vW(1)))
    for j in range(4): e("v_add_u32 v%d, 128, v%d" % (232 + j, vW(j)))
    e("s_mul_i32 s18, s%d, %d" % (sMB, 128 * 896))
    e("s_mul_i32 s57, s%d, %d" % (sWV, 32 * 896))
    e("s_add_u32 s18, s18, s57")
    e("s_and_b32 s57, s%d, 1" % sWV)
    e("s_mul_i32 s19, s57, %d" % (32 * 3584))
    e("s_lshl_b32 s58, s%d, 8" % sFB)
    e("s_add_u32 s19, s19, s58")
    e("s_lshl_b32 %s, s%d, 12" % (sLB, sWV))
    def table(i):
        e("s_lshl_b32 s57, s3, 7")
        e("s_add_u32 %s, s57, s18" % sCx(i))
        e("s_mul_i32 s57, s3, %d" % (64 * 3584))
        e("s_add_u32 %s, s57, s19" % sCw(i))
        e("s_add_u32 s3, s3, 1")
        e("s_cmp_eq_u32 s3, 7")
        e("s_cselect_b32 s3, 0, s3")
    table(0); table(1)
    e("s_mov_b32 s%d, %d" % (sX + 2, 2048 * 896))
    e("s_mov_b32 s%d, 0x20000" % (sX + 3))
    e("s_mov_b32 s%d, %d" % (sW + 2, 448 * 3584))
    e("s_mov_b32 s%d, 0x20000" % (sW + 3))
    e("s_waitcnt lgkmcnt(0)")
    e("s_mov_b32 s%d, s4" % sX)
    e("s_and_b32 s%d, s5, 0xffff" % (sX + 1))
    e("s_cmp_eq_u32 s55, 0")
    e("s_cselect_b32 s%d, s6, s8" % sW)
    e("s_cselect_b32 s%d, s7, s9" % (sW + 1))
    e("s_and_b32 s%d, s%d, 0xffff" % (sW + 1, sW + 1))
    g.cur[sHs] = 0

    SCH = {0: "aaaaaaaEpppppppFqqqqqqq", 2: "aaabaaaaEppppppFqqqqqq", 3: "aaabaaaaEppppqppFqqqqq", 4: "aaabaaaaEbpppppFqqqqq", 5: "aaabaaaaEbbbpppFqqq", 6: "aaabaaaaEbbppppFqqqq", 7: "aaabaaaaEbbbbppFqq", 8: "aaaabaaaEbbbbbb", 9: "aaaabaaaEbbbbbpFq"}[O("sch", 2)]
    units = []; ca = cp = cq = 0
    for ch in SCH:
        if ch == "a": units.append(("a", ca)); ca += 1
        elif ch == "b": assert cp == cq; units.append(("b", cp)); cp += 1; cq += 1
        elif ch == "p": units.append(("p", cp)); cp += 1
        elif ch == "q": units.append(("q", cq)); cq += 1
        else: units.append((ch, 0))
    assert ca == cp == cq == 7
    order = []
    for k, c in units:
        if k == "a": order += [2 * c, 2 * c + 1]
        elif k in "bp": order.append(14 + c)
    order += list(range(21, 35))
    pos = {it: k for k, it in enumerate(order)}
    vWb = lambda j: 232 + j
    allp = [(i, jj) for i in order for jj in range(4)]
    st = {"np": 0}
    pool = list(range(NS)); smap = {}
    def slot(i): return smap[i] * 16384
    def release(i): pool.append(smap[i])
    def setup_needed(): return allp[st["np"]][1] == 0 and st.get("su") != st["np"]
    def setup(nop=False):
        i, jj = allp[st["np"]]
        smap[i] = pool.pop(0)
        st["su"] = st["np"]
        e("s_add_u32 m0, %s, 0x%x" % (sLB, slot(i)))
        if i >= 21:
            c, ph = (i - 21) % 7, (i - 21) // 7
            e("s_add_u32 %s, %s, 0x%x" % (sDo, sDb, (256 * c + 64 * ph) * 896))
            return 2
        if nop: e("s_nop 0")
        return 1
    def one():
        n = 1
        if setup_needed(): n += setup(True)
        i, jj = allp[st["np"]]; st["np"] += 1
        off = " offset:%d" % (jj * 1024) if jj else ""
        if i < 14 and i % 2 == 0:
            g.vmop("buffer_load_dwordx4 v%d, %s, %s offen%s lds" % (vX(jj), srd(sX), sCx(i // 2), off), ("it", i))
        elif i < 21:
            g.vmop("buffer_load_dwordx4 v%d, %s, %s offen%s lds" % (vW(jj) if i < 14 else vWb(jj), srd(sW), sCw(i // 2 if i < 14 else i - 14), off), ("it", i))
        else:
            g.vmop("buffer_load_dwordx4 v%d, %s, %s offen%s lds" % (vD(jj), srd(sWD), sDo, off), ("it", i))
        return n
    def can(): return st["np"] < len(allp) and (not setup_needed() or len(pool) > 0)
    def issue(n=1):
        k = 0
        for _ in range(n):
            if can(): k += one()
        return k
    def through(item):
        while st["np"] < len(allp) and st["np"] // 4 <= pos[item]: one()
    def mk_srd(d, b, n):
        e("s_mov_b32 s%d, s%d" % (d, b))
        e("s_and_b32 s%d, s%d, 0xffff" % (d + 1, b + 1))
        e("s_mov_b32 s%d, %d" % (d + 2, n))
        e("s_mov_b32 s%d, 0x20000" % (d + 3))
    def bases(vf, n):
        for j in range(n):
            e("v_add_u32 v%d, 0x10000, v%d" % (vf(j, 1), vf(j, 0)))
            e("v_add_u32 v%d, 0x20000, v%d" % (vf(j, 2), vf(j, 0)))

    SW = PW = 1
    issue(O("pro", 10))
    for i in range(2, 7): table(i)
    e("s_lshl_b32 s59, s%d, 1" % sMB)
    e("s_and_b32 s61, s%d, 1" % sWV)
    e("s_add_u32 s59, s59, s61")
    e("s_mul_i32 s59, s59, %d" % (7 * FS))
    e("s_lshl_b32 s61, s%d, 3" % sFB)
    e("s_add_u32 s59, s59, s61")
    e("s_lshr_b32 s61, s%d, 1" % sWV)
    e("s_lshl_b32 s61, s61, 2")
    e("s_add_u32 s59, s59, s61")
    e("s_add_u32 s59, s59, 0x%x" % FLAGOFF)
    e("v_lshl_add_u32 v%d, v0, 7, s59" % vFlag)
    e("v_mov_b32 v%d, 3" % vThree)
    e("s_mov_b32 s49, 0")
    e("s_lshl_b32 s%d, s51, 2" % sTB)
    e("s_add_u32 s%d, s%d, s53" % (sTB, sTB))
    e("s_mov_b32 s%d, s54" % sCB)
    mk_srd(sWD, 10, 1792 * 896); mk_srd(sH, 16, 2048 * 1792 * 2); mk_srd(sO, 12, 2048 * 896)
    e("s_mov_b32 s4, 0xbfb8aa3b"); e("s_mov_b32 s5, 0xbfb8aa3b"); e("s_mov_b32 s6, 1.0"); e("s_mov_b32 s7, 1.0")
    e("s_and_b32 s57, s%d, 1" % sWV)
    e("s_lshr_b32 s58, s%d, 1" % sWV)
    e("s_lshl_b32 s62, s58, 2")
    e("s_add_u32 s62, s62, s57")
    e("s_mul_i32 %s, s62, %d" % (sDb, 32 * 896))
    e("s_lshl_b32 s59, s%d, 7" % sCB)
    e("s_add_u32 %s, %s, s59" % (sDb, sDb))
    e("v_lshlrev_b32 v%d, 5, v%d" % (t0, rh))
    e("v_xor_b32 v%d, v%d, v%d" % (t0, t0, p7))
    e("v_add_u32 v%d, v%d, v%d" % (vD(0), t1, t0))
    for j in range(1, 4): e("v_add_u32 v%d, %d, v%d" % (vD(j), j * (7168 - 1024), vD(0)))
    e("v_lshlrev_b32 v%d, 4, v0" % vL16)
    e("s_lshl_b32 s59, s%d, 3" % sMB)
    e("s_lshl_b32 s60, s57, 2")
    e("s_add_u32 s59, s59, s60")
    e("s_mul_i32 s59, s59, 56")
    e("s_lshl_b32 s60, s%d, 2" % sFB)
    e("s_add_u32 s59, s59, s60")
    e("s_add_u32 s59, s59, s58")
    e("s_lshl_b32 %s, s59, 10" % sHs)
    e("s_mul_i32 s59, s%d, 224" % sTB)
    e("s_add_u32 s59, s59, s62")
    for m in range(4):
        e("s_add_u32 s60, s59, %d" % (56 * m))
        e("s_lshl_b32 s60, s60, 10")
        e("v_add_u32 v%d, s60, v%d" % (vH(m), vL16))
    e("s_mul_i32 s59, s51, 28")
    e("s_add_u32 s59, s59, s52")
    e("s_mul_i32 s59, s59, %d" % FS)
    e("s_add_u32 s59, s59, 0x%x" % FLAGOFF)
    e("v_min_u32 v%d, 27, v0" % vFlag2)
    e("v_lshl_add_u32 v%d, v%d, 2, s59" % (vFlag2, vFlag2))
    e("s_and_b32 s59, s51, 1")
    e("s_lshl_b32 s59, s59, 7")
    e("v_mov_b32 v%d, s59" % vArmA)
    e("v_mov_b32 v%d, 1" % vOne)
    tk, q4, sw, rr, cc, a0, q1 = T + 6, T + 7, T + 8, T + 9, T + 10, T + 11, T + 5
    e("v_and_b32 v%d, 15, v0" % tk)
    e("v_lshrrev_b32 v%d, 4, v0" % q4)
    e("v_bfe_u32 v%d, v0, 1, 3" % sw)
    e("v_xor_b32 v%d, v%d, v%d" % (sw, sw, q4))
    e("v_lshlrev_b32 v%d, 4, v%d" % (sw, sw))
    e("v_lshl_add_u32 v%d, v%d, 7, v%d" % (sw, tk, sw))
    e("s_lshl_b32 s59, s57, 13")
    e("v_add_u32 v%d, s59, v%d" % (vXB(0, 0), sw))
    e("v_xor_b32 v%d, 64, v%d" % (vXB(1, 0), vXB(0, 0)))
    bases(vXB, 2)
    e("v_bfe_u32 v%d, v0, 2, 2" % rr)
    e("v_and_b32 v%d, 3, v0" % cc)
    e("v_lshlrev_b32 v%d, 3, v%d" % (cc, cc))
    e("v_and_b32 v%d, 1, v%d" % (q1, q4))
    e("v_lshrrev_b32 v%d, 1, v%d" % (t0, rr))
    e("v_lshl_or_b32 v%d, v%d, 1, v%d" % (t0, q1, t0))
    e("v_lshl_add_u32 v%d, v%d, 3, v%d" % (a0, q4, rr))
    e("v_lshl_add_u32 v%d, v%d, 7, v%d" % (a0, a0, cc))
    e("s_lshl_b32 s59, s58, 1")
    e("v_xor_b32 v%d, s59, v%d" % (t1, t0))
    e("v_lshl_add_u32 v%d, v%d, 5, v%d" % (vWA(0, 0), t1, a0))
    e("v_xor_b32 v%d, 32, v%d" % (vWA(1, 0), vWA(0, 0)))
    bases(vWA, 2)
    e("v_lshl_add_u32 v%d, v%d, 2, v%d" % (a0, q4, rr))
    e("v_lshl_add_u32 v%d, v%d, 7, v%d" % (a0, a0, cc))
    e("v_lshl_add_u32 v%d, v%d, 5, v%d" % (a0, t0, a0))
    e("v_add_u32 v%d, %s, v%d" % (vDA(0, 0), sLB, a0))
    e("s_lshl_b32 s59, s%d, 5" % sWV)
    e("v_xor_b32 v%d, s59, v%d" % (vDA(0, 0), vDA(0, 0)))
    for c in range(1, 4): e("v_xor_b32 v%d, %d, v%d" % (vDA(c, 0), 32 * c, vDA(0, 0)))
    bases(vDA, 4)
    e("v_lshl_add_u32 v%d, v%d, 4, v%d" % (vOut, q1, tk))
    e("v_mul_u32_u24 v%d, 896, v%d" % (vOut, vOut))
    e("v_lshrrev_b32 v%d, 1, v%d" % (t1, q4))
    e("v_lshl_add_u32 v%d, v%d, 4, v%d" % (vOut, t1, vOut))
    e("s_mul_i32 s60, s%d, %d" % (sTB, 64 * 896))
    e("s_add_u32 s60, s60, s59")
    e("s_lshl_b32 s59, s%d, 7" % sCB)
    e("s_add_u32 %s, s60, s59" % sOut)
    e("s_add_u32 s9, %s, %d" % (sOut, 32 * 896))
    e("v_mov_b32 v%d, 2" % vTwo)
    e("v_add_u32 v%d, %s, v%d" % (T + 12, sLB, vL16))
    for mm in (1, 2, 3): e("v_xor_b32 v%d, %d, v%d" % (T + 12 + mm, mm * 4096, T + 12))

    def lds_ref(vf, byte): return "v%d offset:%d" % (vf(byte >> 16), byte & 0xffff)
    D1 = lambda ph, a, t: ACC[ph] + (a * 4 + t) * 4
    def epilogue_ops(ph, ts, tag):
        ops = []
        for t in ts:
            G = [D1(ph, 0, t) + i for i in range(4)] + [D1(ph, 2, t) + i for i in range(4)]
            U = [D1(ph, 1, t) + i for i in range(4)] + [D1(ph, 3, t) + i for i in range(4)]
            def V(s): ops.append(lambda s=s: e(s))
            for i in range(0, 8, 2): V("v_pk_mul_f32 %s, %s, s[4:5]" % (rng("v", G[i], 2), rng("v", G[i], 2)))
            for i in range(8): V("v_exp_f32 v%d, v%d" % (G[i], G[i]))
            for i in range(0, 8, 2): V("v_pk_add_f32 %s, %s, s[6:7]" % (rng("v", G[i], 2), rng("v", G[i], 2)))
            for i in range(8): V("v_rcp_f32 v%d, v%d" % (G[i], G[i]))
            for i in range(0, 8, 2): V("v_pk_mul_f32 %s, %s, %s" % (rng("v", G[i], 2), rng("v", G[i], 2), rng("v", U[i], 2)))
            for i in range(4): V("v_cvt_pk_bf16_f32 v%d, v%d, v%d" % (U[i], G[2 * i], G[2 * i + 1]))
            def stf(t=t, U=U):
                e(g.setoff(sHs, (t * 56 + 2 * ph) * 1024))
                g.vmop("buffer_store_dwordx4 %s, v%d, %s, %s offen sc1" % (rng("v", U[0], 4), vL16, srd(sH), sHs), ("hst", tag))
            ops.append(stf)
        return ops
    def only(w, nm):
        e("s_cmp_lg_u32 s%d, %d" % (sWV, w)); e("s_cbranch_scc1 %s" % nm)
    def arm_check():
        only(PW, "L_armd")
        e("s_waitcnt vmcnt(%d)" % min(63, len(g.vm) - g.al))
        e("s_mov_b32 s61, 0")
        g.label("L_arm")
        e("v_readfirstlane_b32 s57, v%d" % vArm)
        e("s_addk_i32 s61, 1")
        e("s_cmp_ge_u32 s61, 0x40000")
        e("s_cbranch_scc1 L_armd")
        e("s_cmp_ge_u32 s57, 32")
        e("s_cbranch_scc1 L_armd")
        e("s_sleep 8")
        e("global_load_dword v%d, v%d, s[14:15] sc1" % (vArm, vArmA))
        e("s_waitcnt vmcnt(0)")
        e("s_branch L_arm")
        g.label("L_armd")
    g.nsg = 0
    def sig_try(k, force=False):
        n = g._n(g.vm, ("hst", k)); g.nsg += 1
        nm = "L_st%d" % g.nsg
        e("s_cmp_gt_u32 s49, %d" % k)
        e("s_cbranch_scc1 %s" % nm)
        if force: g.wait(vm=("hst", k))
        else:
            e("s_getreg_b32 s57, hwreg(HW_REG_IB_STS, 0, 24)")
            e("s_and_b32 s57, s57, 0xc0000f")
            e("s_cmp_gt_u32 s57, %d" % min(n, 15))
            e("s_cbranch_scc1 %s" % nm)
        e("s_mov_b64 exec, 0x7f")
        e("global_store_dword v%d, v%d, s[16:17] sc1" % (vFlag, (vOne, vTwo, vThree)[k]))
        e("s_mov_b64 exec, -1")
        e("s_mov_b32 s49, %d" % (k + 1))
        g.label(nm)
    def poll_issue(k):
        only(PW, "L_npi%d" % k)
        e("global_load_dword v%d, v%d, s[16:17] offset:%d sc1" % (vPol, vFlag2, 0))
        g.label("L_npi%d" % k)
        g.pi = len(g.vm)
    def gate(k):
        only(PW, "L_pok%d" % k)
        e("s_waitcnt vmcnt(%d)" % min(63, len(g.vm) - g.pi))
        e("s_mov_b32 s61, 0")
        g.label("L_poll%d" % k)
        e("v_cmp_gt_u32 vcc, %d, v%d" % (k + 1, vPol))
        e("s_addk_i32 s61, 1")
        e("s_cmp_ge_u32 s61, 0x40000")
        e("s_cbranch_scc1 L_pok%d" % k)
        e("s_cmp_eq_u64 vcc, 0")
        e("s_cbranch_scc1 L_pok%d" % k)
        e("s_sleep %d" % O("slp", 2))
        e("global_load_dword v%d, v%d, s[16:17] offset:%d sc1" % (vPol, vFlag2, 0))
        e("s_waitcnt vmcnt(0)")
        e("s_branch L_poll%d" % k)
        g.label("L_pok%d" % k)
        e("s_barrier")

    SREG = [("v", 64 + 4 * k) for k in range(16)] + [("a", 224 + 4 * k) for k in range(8)] + [("v", 240 + 4 * k) for k in range(4)]
    areg = lambda u, c: SREG[(u % 7) * 4 + c]
    def wd_reads(u):
        return [lambda c=c, j2=j2: g.lgop("ds_read_b64_tr_b16 %s, %s" % (rng(areg(u, c)[0], areg(u, c)[1] + 2 * j2, 2), lds_ref(lambda b: vDA(c, b), slot(21 + u) + j2 * 2048)), ("r2", u))
                for c in range(4) for j2 in range(2)]
    sg = {"n": 0, "rel": 0, "q": []}
    def stage_ready(minafter, upto):
        u = sg["n"]
        return u < upto and not sg["q"] and st["np"] >= 4 * (22 + u) and g._n(g.vm, ("it", 21 + u)) >= minafter
    def lg_done(n_out):
        while sg["rel"] < sg["n"] and not (sg["q"] and sg["rel"] == sg["n"] - 1) and g._n(g.lg, ("r2", sg["rel"])) >= n_out:
            release(21 + sg["rel"]); sg["rel"] += 1
    def waitx(vm=None, lg=None):
        g.wait(vm=vm or None, lg=lg)
        if lg is not None: lg_done(0 if lg == 0 else g._n(g.lg, lg))
    xreg = lambda xs, t: (xs * 4 + t) * 4
    HORD = [(u, t) for u in range(7) for t in range(4)] + [(u, t) for u in range(7, 14) for t in (0, 1)] + [(u, t) for u in range(7, 14) for t in (2, 3)]
    hfree = []; hreg = {}
    hs = {"n": 0, "lim": 0}
    def hcan(lim=56): return hs["n"] < min(hs["lim"], lim) and hfree
    def hnext():
        u, t = HORD[hs["n"]]; hs["n"] += 1
        ph, i = u // 7, u % 7
        k = 1
        if g.cur.get("h2") != i: e("s_mov_b32 %s, 0x%x" % (sH2, i * 8192)); g.cur["h2"] = i; k = 2
        hreg[(u, t)] = hfree.pop(0)
        g.vmop("buffer_load_dwordx4 %s, v%d, %s, %s offen%s sc1" % (rng("a", hreg[(u, t)], 4), vH(t), srd(sH), sH2, " offset:2048" if ph else ""), ("hl", u, t))
        return k
    WF = O("wf", 28)
    def mem():
        if st["np"] < 4 * WF and can(): return issue(1)
        if hcan(28): return hnext()
        if can(): return issue(1)
        if hcan(): return hnext()
        return 0

    G = []
    for k, c in units:
        if k in "EF": G.append({"mark": k}); continue
        ph = 0 if k == "a" else 1
        ts = {"a": (0, 1, 2, 3), "b": (0, 1, 2, 3), "p": (0, 1), "q": (2, 3)}[k]
        for kk in range(2):
            for a in range(4):
                G.append({"ph": ph, "c": c, "kk": kk, "a": a, "ts": ts, "wit": 2 * c + 1 if ph == 0 else 14 + c, "x": ph == 0 and a == 0})
    R = [x for x in G if "mark" not in x]
    mi = 0
    for k, x in enumerate(R): x["k"] = k; x["m0"] = mi; mi += len(x["ts"])
    lastuse = {}
    for x in R:
        lastuse[x["wit"]] = x["k"]
        if x["x"]: lastuse[2 * x["c"]] = x["k"]
    vRing = lambda k: 32 + (k % 8) * 4
    def g_reads(x):
        jf, mat = x["a"] >> 1, x["a"] & 1
        out = [lambda j2=j2: g.lgop("ds_read_b64_tr_b16 %s, %s" % (rng("v", vRing(x["k"]) + 2 * j2, 2), lds_ref(lambda b: vWA(jf, b), slot(x["wit"]) + mat * 8192 + x["kk"] * 4096 + j2 * 512)), ("rd", x["k"])) for j2 in range(2)]
        if x["x"]:
            out += [lambda t=t: g.lgop("ds_read_b128 %s, %s" % (rng("a", xreg(2 * x["c"] + x["kk"], t), 4), lds_ref(lambda b: vXB(x["kk"], b), slot(2 * x["c"]) + t * 2048)), ("rd", x["k"])) for t in range(4)]
        return out
    LEAD = O("lead", 16); RB = O("rb", 4)
    vis = set(); released = set()
    S = {"rk": 0, "rq": [], "cur": 0, "m": 0, "lastbar": 0, "todo": {}}
    def barrier(need, cur, lgtag):
        acts = [k for k, m in S["todo"].items() if S["m"] >= m]
        need = list(need)
        if ("arm", 0) in acts: arm_check()
        if need or lgtag is not None: waitx(vm=need, lg=lgtag)
        if ("gate", 0) in acts: stA(); gate(0); stA(); hs["lim"] = 28
        else: e("s_barrier")
        for k in acts:
            del S["todo"][k]
        for it, lu in lastuse.items():
            if lu < cur and it not in released: released.add(it); release(it)
        S["lastbar"] = S["m"]
    def want_next_reads():
        return S["rk"] < len(R) and not S["rq"] and R[S["rk"]]["m0"] - S["m"] <= LEAD and S["rk"] - S["cur"] <= 6
    issue(O("pro2", 8))
    g.wait(vm=("it", 1)); e("s_barrier"); vis |= {0, 1}
    stF(1)
    for k in range(4):
        for r in g_reads(R[k]): r()
    S["rk"] = 4
    issue(O("pro3", 2))
    dacc = 0.0
    afterE = False
    for x in G:
        if "mark" in x:
            stA()
            e("s_nop 4")
            isE = x["mark"] == "E"
            for k, f in enumerate(epilogue_ops(0, (0, 1, 2, 3), 0) if isE else epilogue_ops(1, (0, 1), 1)):
                f()
                if k % O("rea", 10) == 0: mem()
            if isE:
                afterE = True
                assert ("arm", 0) not in S["todo"] and hasattr(g, "al")
                S["try"] = (0, S["m"])
                S["pm"] = S["m"] + O("pm", 110); S["todo"][("gate", 0)] = S["m"] + O("gm", 136)
            else:
                S["try"] = (1, S["m"])
            continue
        k = x["k"]; S["cur"] = k
        if k % 2 == 0:
            while S["rk"] <= k + 1 or (S["rq"] and S["rk"] - 1 <= k + 1):
                if not S["rq"]:
                    assert R[S["rk"]]["wit"] in vis
                    S["rq"] = g_reads(R[S["rk"]]); S["rk"] += 1
                while S["rq"]: S["rq"].pop(0)()
            lgtag = ("rd", k + 1)
            nxt = [y for y in R[S["rk"]:] if y["m0"] - (S["m"] + 2 * len(x["ts"])) < LEAD and y["k"] - k <= 7]
            newit = [y["wit"] for y in nxt if y["wit"] not in vis]
            due = any(S["m"] >= m for m in S["todo"].values())
            relb = afterE and S["m"] - S["lastbar"] >= O("rbar", 16) and any(lu < k and it not in released for it, lu in lastuse.items())
            need = []
            if afterE and stage_ready(O("sma", 8), O("s1stg", 7)):
                need.append(("it", 21 + sg["n"])); stq = wd_reads(sg["n"])
            else: stq = None
            if newit or due or relb:
                if newit:
                    through(newit[-1]); need.append(("it", newit[-1])); vis |= set(newit)
                barrier(need, k, lgtag)
                stF(1) if g.nst < 11 else None
            else: waitx(vm=need, lg=lgtag)
            if stq: sg["q"] = stq; sg["n"] += 1
        if k == O("arml", 44):
            only(PW, "L_nal")
            e("global_load_dword v%d, v%d, s[14:15] sc1" % (vArm, vArmA))
            g.label("L_nal")
            g.al = len(g.vm)
            S["todo"][("arm", 0)] = S["m"] + 40
        xs = 2 * x["c"] + x["kk"]
        for t in x["ts"]:
            if afterE and S["m"] == S["pm"]: poll_issue(0)
            if "try" in S:
                rel = S["m"] - S["try"][1]
                if 20 <= rel <= 84 and (rel - 20) % 8 == 0: sig_try(S["try"][0], rel == 84)
            D = D1(x["ph"], x["a"], t)
            e("%s %s, %s, %s, %s" % (MF, rng("v", D, 4), rng("v", vRing(k), 4), rng("a", xreg(xs, t), 4), "0" if xs == 0 else rng("v", D, 4)))
            S["m"] += 1
            if x["ph"] == 1 and x["a"] == 3: hfree.append(xreg(xs, t))
            slots = 2 - (1 if (k % 2 == 1 and t == x["ts"][-1]) else 0)
            if want_next_reads() and R[S["rk"]]["wit"] in vis:
                S["rq"] = g_reads(R[S["rk"]]); S["rk"] += 1
            if S["rq"]: S["rq"].pop(0)(); slots -= 1
            dacc += (O("ra10", 40) if st["np"] < 84 else O("rb10", 40)) / 160.0
            if slots > 0 and dacc >= 1.0:
                if (st["np"] < 4 * WF or not hcan(28)) and can() and setup_needed(): slots -= setup()
                else: slots -= mem(); dacc -= 1.0
            dacc = min(dacc, 2.0)
            while slots > 0 and sg["q"]: sg["q"].pop(0)(); slots -= 1
    assert not S["todo"], S["todo"]
    S["m"] += 1000
    print("issued by T:", st["np"], hs["n"], "staged", sg["n"])
    stA(); stF(2)
    while sg["q"]: sg["q"].pop(0)()
    barrier([], len(R), 0)
    def stage_now(upto):
        u = sg["n"]
        through(21 + u)
        waitx(vm=[("it", 21 + u)], lg=0)
        for r in wd_reads(u): r()
        sg["n"] += 1
    RE = O("re", 10)
    ep = ([] if "F" in SCH else epilogue_ops(1, (0, 1), 1)) + epilogue_ops(1, (2, 3), 2)
    e("s_nop 2")
    for cnt, f in enumerate(ep):
        f()
        if cnt % RE == 0: mem()
        if cnt % O("sgr", 16) == 3 and stage_ready(O("smb", 6), 7): stage_now(7)
        if cnt >= len(ep) - 30 and cnt % 10 == 0: sig_try(1)
    while sg["n"] < 7: stage_now(7)
    stF(2)
    A2 = ACC[1]
    D2 = lambda t, c: A2 + (t * 4 + c) * 4
    RW = T + 12
    def red_writes(ts): return [lambda t=t, c=c: g.lgop("ds_write_b128 v%d, %s offset:%d" % (RW, rng("v", D2(t, c), 4), c * 16384 + t * 1024), "rw") for c in (1, 2, 3) for t in ts]
    def red_finish(ts, so):
        ops = []
        for c in (1, 2, 3):
            for t in ts: ops.append(lambda t=t, c=c: g.lgop("ds_read_b128 %s, v%d offset:%d" % (rng("v", D2(t, c), 4), RW + c, c * 16384 + t * 1024), ("rr", c)))
        for c in (1, 2, 3):
            ops.append(lambda c=c: g.wait(lg=("rr", c)))
            for t in ts:
                for i in range(4): ops.append(lambda t=t, c=c, i=i: e("v_add_f32 v%d, v%d, v%d" % (D2(t, 0) + i, D2(t, 0) + i, D2(t, c) + i)))
        o = D2(ts[0], 1)
        for j, t in enumerate(ts):
            for i in range(2): ops.append(lambda t=t, j=j, i=i: e("v_cvt_pk_bf16_f32 v%d, v%d, v%d" % (o + 2 * j + i, D2(t, 0) + 2 * i, D2(t, 0) + 2 * i + 1)))
        ops.append(lambda: e("s_nop 1"))
        ops.append(lambda: e("v_permlane16_swap_b32 v%d, v%d" % (o, o + 2)))
        ops.append(lambda: e("v_permlane16_swap_b32 v%d, v%d" % (o + 1, o + 3)))
        ops.append(lambda: g.vmop("buffer_store_dwordx4 %s, v%d, %s, %s offen" % (rng("v", o, 4), vOut, srd(sO), so), "out"))
        return ops
    G1Q = O("g1q", 18)
    SGQ = O("sgq", 5); GQ = O("gq", 30); PQ = O("pq", 25); ML = O("ml", 2)
    O2 = {1: (1,), 2: (1, 3)}[O("r2", 1)]
    NM = 56 - 2 * ML
    fq = []
    def mf2(u, t, c):
        A = areg(u, c); D = D2(t, c)
        e("%s %s, %s, %s, %s" % (MF, rng("v", D, 4), rng(A[0], A[1], 4), rng("a", hreg[(u, t)], 4), "0" if u == 0 else rng("v", D, 4)))
    for qi, (u, t) in enumerate(HORD[:NM]):
        if qi == O("p1q", 14): poll_issue(1)
        if qi == PQ: poll_issue(2)
        if qi == GQ:
            for _ in range(O("gb", 4)): mem()
            stA(); gate(2); stA()
            hs["lim"] = 56
            for _ in range(O("ga2", 8)): mem()
        while hs["n"] <= qi: assert mem()
        need = [("hl", u, t)]; lg = None
        if qi == 0: lg = 0
        if 28 <= qi < 42 and t == 0:
            while sg["n"] <= u or (sg["q"] and sg["n"] - 1 <= u):
                if sg["q"]: sg["q"].pop(0)()
                else: stage_now(14)
            lg = ("r2", u)
        stq = None
        if sg["n"] - 7 < min(qi // 4, 7) and stage_ready(O("smc", 6), 14):
            need.append(("it", 21 + sg["n"])); stq = wd_reads(sg["n"])
            if lg is None and sg["n"] > 7: lg = ("r2", sg["n"] - 1)
        if qi == 46: lg = "rw"
        waitx(vm=need, lg=lg)
        if stq: sg["q"] = stq; sg["n"] += 1
        if qi <= 6: sig_try(1, qi == 6)
        if 3 <= qi <= 14: sig_try(2, qi == 14)
        if qi == G1Q:
            for _ in range(O("gb1", 2)): mem()
            stA(); gate(1); stA(); hs["lim"] = 42
            for _ in range(O("ga1", 6)): mem()
        if qi == 43: fq = red_writes((0, 1))
        if qi == 46:
            e("s_barrier"); fq = red_finish((0, 1), sOut)
        for c in range(4):
            mf2(u, t, c)
            k = 2
            if sg["q"]: sg["q"].pop(0)(); k -= 1
            if c in O2 and mem(): k -= 1
            while fq and k > 0: fq.pop(0)(); k -= 1
        hfree.append(hreg[(u, t)])
    while hs["n"] < 56: assert mem()
    wq = []
    first = True
    for c in (1, 2, 3, 0):
        for (u, t) in HORD[NM:]:
            if first: g.wait(vm=("hl", u, t))
            mf2(u, t, c)
            k = 2
            wq = [(d - 1, w) for d, w in wq]
            if wq and wq[0][0] <= 0: wq.pop(0)[1](); k -= 1
            while fq and k > 0: fq.pop(0)(); k -= 1
        first = False
        if c: wq += [(O("wd", 6), w) for w in red_writes((2, 3))[2 * (c - 1):2 * c]]
    assert st["np"] == len(allp)
    stA(); stF(4)
    while fq: fq.pop(0)()
    e("s_nop 3")
    for d, w in wq: w()
    e("s_waitcnt lgkmcnt(0)")
    e("s_barrier")
    for f in red_finish((2, 3), "s9"): f()
    if stamps:
        e("s_waitcnt vmcnt(0)")
        stA()
        e("s_waitcnt lgkmcnt(0)")
        e("s_add_u32 s16, s16, 0x8000000")
        e("s_addc_u32 s17, s17, 0")
        e("s_lshl_b32 s57, s2, 2")
        e("s_add_u32 s57, s57, s%d" % sWV)
        e("s_lshl_b32 s57, s57, 7")
        e("v_mov_b32 v1, s57")
        e("s_mov_b64 exec, 1")
        for j in range(g.nst):
            e("v_mov_b32 v2, s%d" % (SB + 2 * j))
            e("v_mov_b32 v3, s%d" % (SB + 1 + 2 * j))
            e("global_store_dwordx2 v1, v[2:3], s[16:17] offset:%d" % (8 * j))
            e("s_nop 1")
    e("s_endpgm")
    HELP = O("help", 7)
    g.label("L_help2")
    e("s_and_b32 s41, s40, 7")
    e("s_lshr_b32 s42, s40, 3")
    e("s_lshr_b32 s43, s41, 1")
    e("s_lshl_b32 s43, s43, 2")
    e("s_add_u32 s43, s43, s42")
    e("s_mul_i32 s44, s43, %d" % (28 * 3584))
    e("s_and_b32 s45, s41, 1")
    e("s_mul_i32 s45, s45, %d" % (7 * 256))
    e("s_add_u32 s44, s44, s45")
    e("s_addk_i32 s44, 128")
    e("v_mul_u32_u24 v1, 9363, v0")
    e("v_lshrrev_b32 v1, 16, v1")
    e("v_mul_u32_u24 v2, 7, v1")
    e("v_sub_u32 v2, v0, v2")
    e("v_mul_u32_u24 v1, 3584, v1")
    e("v_lshl_add_u32 v1, v2, 8, v1")
    e("v_mov_b32 v3, 0x7fffffff")
    e("v_cmp_gt_u32 vcc, 196, v0")
    e("v_lshlrev_b32 v4, 7, v0")
    e("s_lshl_b32 s46, s41, 2")
    e("v_cndmask_b32 v1, v3, v1, vcc")
    e("v_cndmask_b32 v5, v3, v4, vcc")
    e("v_cmp_gt_u32 vcc, 224, v0")
    e("s_add_u32 s46, s46, s42")
    e("s_mul_i32 s46, s46, %d" % (392 * 128))
    e("v_cndmask_b32 v6, v3, v4, vcc")
    e("s_waitcnt lgkmcnt(0)")
    mk_srd(20, 6, 448 * 3584); mk_srd(24, 8, 448 * 3584); mk_srd(28, 10, 1792 * 896)
    e("s_mul_i32 s49, s40, %d" % (7 * FS))
    e("s_add_u32 s49, s49, 0x%x" % FLAGOFF)
    e("v_lshl_add_u32 v14, v0, 2, s49")
    e("v_mov_b32 v15, 0")
    e("s_and_saveexec_b64 s[32:33], vcc")
    e("global_store_dword v14, v15, s[16:17] sc1")
    e("s_mov_b64 exec, -1")
    e("s_waitcnt vmcnt(0)")
    e("s_barrier")
    e("v_lshlrev_b32 v14, 7, v0")
    e("v_mov_b32 v15, 1")
    e("v_cmp_gt_u32 vcc, 2, v0")
    e("s_and_saveexec_b64 s[32:33], vcc")
    e("s_cbranch_execz L_nha")
    e("global_atomic_add v14, v15, s[14:15] sc1")
    g.label("L_nha")
    e("s_mov_b64 exec, -1")
    if HELP & 1:
        e("buffer_load_dword v8, v1, s[20:23], s44 offen")
        e("buffer_load_dword v9, v1, s[24:27], s44 offen")
    if HELP & 2:
        e("buffer_load_dword v10, v5, s[28:31], s46 offen")
        e("s_add_u32 s46, s46, %d" % (196 * 128))
        e("buffer_load_dword v11, v5, s[28:31], s46 offen")
    if HELP & 4:
        e("s_mul_i32 s46, s42, %d" % (128 * 896))
        e("s_mov_b32 s48, s42")
        e("s_waitcnt vmcnt(0)"); e("s_barrier")
        g.label("L_hl")
        e("buffer_load_dword v12, v6, s[28:31], s46 offen")
        e("s_add_u32 s47, s46, %d" % (224 * 128))
        e("buffer_load_dword v13, v6, s[28:31], s47 offen")
        e("s_add_u32 s46, s46, %d" % (4 * 128 * 896))
        e("s_cmp_ge_u32 s46, %d" % (1792 * 896))
        e("s_cselect_b32 s47, %d, 0" % (1792 * 896 - 64 * 896))
        e("s_sub_u32 s46, s46, s47")
        e("s_addk_i32 s48, 4")
        e("s_cmp_lt_u32 s48, 28")
        e("s_cbranch_scc1 L_hl")
    e("s_waitcnt vmcnt(0)")
    g.label("L_end2")
    e("s_endpgm")
    check_hazards(g.L)
    return g.L

from gen9 import emit
if __name__ == "__main__":
    out = sys.argv[1]
    stamps = 1 if "--stamps" in sys.argv else (2 if "--cyc" in sys.argv else 0)
    opt = {}
    for a in sys.argv[2:]:
        if a.startswith("-o"):
            k, _, v = a[2:].partition("=")
            opt[k] = int(v) if v else 1
    emit(build(stamps, opt), out)
```
